```python
import torch

def _softmax(x, axis=-1):
    return torch.softmax(x, dim=axis)
def _gelu(x):
    return torch.nn.functional.gelu(x, approximate="tanh")
def _silu(x):
    return torch.nn.functional.silu(x)
def _sigmoid(x):
    return torch.sigmoid(x)
def _layernorm(x, axis=-1, eps=1e-5):
    m = x.mean(dim=axis, keepdim=True)
    v = x.var(dim=axis, keepdim=True, unbiased=False)
    return (x - m) / torch.sqrt(v + eps)
def _scatter_add(tgt, idx, src, axis=0):
    return tgt.clone().index_add_(axis, idx, src)
def _segment_sum(src, seg, n):
    out = torch.zeros((n,) + src.shape[1:], dtype=src.dtype)
    return out.index_add_(0, seg, src)
def _pad(x, pw):
    flat = tuple(v for pair in reversed(pw) for v in pair)
    return torch.nn.functional.pad(x, flat)

kernel_name = 'standalone__kv_cache_quant_int4_int2_kv_with_per_channel_or_per_token_scales__prompt'

def setup_inputs():

    _w = (lambda a: (lambda t: t.to(torch.bfloat16) if t.is_floating_point() else t)(torch.as_tensor(a)))
    B = 1
    Sq = 2048
    Skv = 2048
    Hq = 32
    Hkv = 8
    Dh = 128
    bits = 8
    G = 128
    if G <= 0 or G >= Skv:
        G = max(1, Skv // 2)
    Skv = (Skv // G) * G
    ngk = Skv // G
    qmax = (1 << bits) - 1
    return {
        "q": _w((lambda *s: torch.randn(*s, dtype=torch.bfloat16) * 0.2)(B, Hq, Sq, Dh)),
        "qk": _w(torch.randint(0, qmax + 1, (B, Hkv, Skv, Dh)).to(torch.int32)),
        "qv": _w(torch.randint(0, qmax + 1, (B, Hkv, Skv, Dh)).to(torch.int32)),
        "k_scales": _w(torch.abs((lambda *s: torch.randn(*s, dtype=torch.bfloat16) * 0.2)(B, Hkv, ngk, Dh)) * 0.05 + 0.02),
        "k_zeros": _w((lambda *s: torch.randn(*s, dtype=torch.bfloat16) * 0.2)(B, Hkv, ngk, Dh) + float(qmax) / 2.0),
        "v_scales": _w(torch.abs((lambda *s: torch.randn(*s, dtype=torch.bfloat16) * 0.05)(B, Hkv, Skv, 1)) * 0.05 + 0.02),
        "v_zeros": _w((lambda *s: torch.randn(*s, dtype=torch.bfloat16) * 0.05)(B, Hkv, Skv, 1) + float(qmax) / 2.0),
    }

def reference(q, qk, qv, k_scales, k_zeros, v_scales, v_zeros):
    B, Hq, Sq, Dh = q.shape
    Hkv, Skv = qk.shape[1], qk.shape[2]
    ngk = k_scales.shape[2]
    G = Skv // ngk
    ks = (lambda x, n, axis: torch.repeat_interleave(x, n, dim=axis))(k_scales, G, axis=2)
    kz = (lambda x, n, axis: torch.repeat_interleave(x, n, dim=axis))(k_zeros, G, axis=2)
    k = ((lambda x, dt: x.to(dt))(qk, q.dtype) - kz) * ks
    v = ((lambda x, dt: x.to(dt))(qv, q.dtype) - v_zeros) * v_scales
    rep = Hq // Hkv
    if rep > 1:
        k = (lambda x, n, axis: torch.repeat_interleave(x, n, dim=axis))(k, rep, axis=1)
        v = (lambda x, n, axis: torch.repeat_interleave(x, n, dim=axis))(v, rep, axis=1)
    scale = float(Dh) ** -0.5
    logits = torch.einsum("bhqd,bhkd->bhqk", q, k) * scale
    p = _softmax(logits, axis=-1)
    o = torch.einsum("bhqk,bhkd->bhqd", p, v)
    return o
```

```python
import re

def regs_of(tok):
    tok = tok.strip()
    neg = tok.lstrip('-')
    if neg.startswith('abs(') and neg.endswith(')'):
        neg = neg[4:-1]
    if neg.startswith('|') and neg.endswith('|'):
        neg = neg[1:-1]
    m = re.fullmatch(r'([vas])(\d+)', neg)
    if m:
        return [(m.group(1), int(m.group(2)))]
    m = re.fullmatch(r'([vas])\[(\d+):(\d+)\]', neg)
    if m:
        return [(m.group(1), i) for i in range(int(m.group(2)), int(m.group(3)) + 1)]
    if neg in ('vcc', 'vcc_lo', 'vcc_hi'):
        return [('vcc', 0)]
    if neg == 'm0':
        return [('m0', 0)]
    if neg in ('exec', 'exec_lo', 'exec_hi'):
        return [('exec', 0)]
    return []

TRANS = ('v_exp_f32', 'v_log_f32', 'v_rcp_f32', 'v_rsq_f32', 'v_sqrt_f32', 'v_sin_f32', 'v_cos_f32')

class I:
    def __init__(self, text):
        self.text = text
        t = text.split(';')[0].strip()
        self.mn = t.split()[0]
        rest = t[len(self.mn):].strip()
        ops, depth, cur = [], 0, ''
        for ch in rest:
            if ch in '[(':
                depth += 1
            if ch in '])':
                depth -= 1
            if ch == ',' and depth == 0:
                ops.append(cur.strip()); cur = ''
            else:
                cur += ch
        if cur.strip():
            ops.append(cur.strip())
        self.mods = []
        if ops:
            parts = ops[-1].split()
            ops[-1] = parts[0]
            self.mods = parts[1:]
        self.ops = ops
        mn = re.sub(r'_(e32|e64|sdwa|dpp)$', '', self.mn)
        self.base = mn
        self.rd, self.wr = [], []
        self.kind = 'other'
        R = lambda k: regs_of(ops[k]) if k < len(ops) else []
        if mn.startswith('v_mfma'):
            self.kind = 'mfma'
            self.wr = R(0); self.A = R(1); self.B = R(2); self.C = R(3)
            self.rd = self.A + self.B + self.C
            self.passes = 8 if '32x32' in mn else 4
        elif mn.startswith('v_cmp'):
            self.kind = 'valu'
            self.wr = R(0); self.rd = R(1) + R(2)
        elif mn in ('v_readfirstlane_b32', 'v_readlane_b32'):
            self.kind = 'valu'
            self.wr = R(0); self.rd = sum((R(k) for k in range(1, len(ops))), [])
        elif mn.startswith('v_permlane') and 'swap' in mn:
            self.kind = 'valu'
            self.wr = R(0) + R(1); self.rd = R(0) + R(1)
        elif mn.startswith('v_'):
            self.kind = 'valu'
            self.wr = R(0)
            start = 1
            if mn in ('v_add_co_u32', 'v_addc_co_u32', 'v_sub_co_u32'):
                self.wr += R(1); start = 2
            self.rd = sum((R(k) for k in range(start, len(ops))), [])
            if mn in ('v_fmac_f32', 'v_dot2c_f32_bf16'):
                self.rd += R(0)
            if mn == 'v_nop':
                self.wr = []
        elif mn.startswith('ds_read') or mn.startswith('ds_bpermute') or mn.startswith('ds_swizzle'):
            self.kind = 'ds'
            self.wr = R(0); self.rd = sum((R(k) for k in range(1, len(ops))), [])
        elif mn.startswith('ds_write') or mn.startswith('ds_'):
            self.kind = 'ds'
            self.rd = sum((R(k) for k in range(0, len(ops))), [])
        elif mn.startswith('buffer_load') or mn.startswith('global_load'):
            self.kind = 'vmem'
            self.lds = ('lds' in self.mods) or ('_lds_' in mn)
            if self.lds:
                self.rd = sum((R(k) for k in range(0, len(ops))), []) + [('m0', 0)]
            else:
                self.wr = R(0); self.rd = sum((R(k) for k in range(1, len(ops))), [])
        elif mn.startswith('buffer_store') or mn.startswith('global_store') or mn.startswith('buffer_atomic') or mn.startswith('global_atomic'):
            self.kind = 'vmem'
            self.store = True
            self.rd = sum((R(k) for k in range(0, len(ops))), [])
            if mn.startswith('buffer_'):
                self.data = R(0)
            else:
                self.data = R(1)
            if 'atomic' in mn and 'sc0' in self.mods:
                self.wr = R(0)
        elif mn in ('buffer_inv', 'buffer_wbl2'):
            self.kind = 'vmem'
        elif mn.startswith('s_load') or mn in ('s_memtime', 's_memrealtime'):
            self.kind = 'smem'
            self.wr = R(0); self.rd = R(1)
        elif mn.startswith('s_cmp') or mn.startswith('s_bitcmp'):
            self.kind = 'salu'
            self.rd = R(0) + R(1)
        elif mn in ('s_waitcnt', 's_barrier', 's_nop', 's_endpgm', 's_setprio', 's_sleep', 's_branch') or mn.startswith('s_cbranch'):
            self.kind = 'ctl'
        elif mn.startswith('s_'):
            self.kind = 'salu'
            self.wr = R(0); self.rd = sum((R(k) for k in range(1, len(ops))), [])
            if 'saveexec' in mn:
                self.wr += [('exec', 0)]
        self.trans = mn in TRANS
        self.states = 1
        if mn == 's_nop':
            self.states = int(ops[0], 0) + 1

def ov(a, b):
    return bool(set(a) & set(b))

def check_hazards(lines, name=''):
    ins = [I(l) for l in lines if l.strip() and not l.strip().startswith(';') and not l.strip().endswith(':') and not l.strip().startswith('.')]
    errs = []
    n = len(ins)
    for j, c in enumerate(ins):
        dist = 0
        for i in range(j - 1, max(-1, j - 40), -1):
            p = ins[i]
            need = 0
            why = ''
            if p.kind == 'mfma':
                big = {8: 12, 4: 8}[p.passes]
                if c.kind == 'mfma':
                    if ov(p.wr, c.A + c.B):
                        need, why = big, 'mfma D -> mfma A/B'
                    if ov(p.wr, c.C):
                        if not (p.wr == c.C and p.passes == c.passes):
                            need, why = max(need, {8: 10, 4: 6}[p.passes]), 'mfma D -> mfma C partial'
                elif c.kind == 'valu':
                    if ov(p.wr, c.rd + c.wr):
                        need, why = big, 'mfma D -> valu'
                    if ov(p.C, c.wr):
                        w = {8: 7, 4: 3}[p.passes]
                        if w > need:
                            need, why = w, 'mfma C read -> valu write'
                elif c.kind in ('ds', 'vmem'):
                    if ov(p.wr, c.rd + c.wr):
                        need, why = big, 'mfma D -> mem'
            elif p.kind == 'valu':
                vw = [r for r in p.wr if r[0] in 'va']
                sw = [r for r in p.wr if r[0] in ('s', 'vcc')]
                if c.kind == 'mfma' and ov(vw, c.rd):
                    need, why = 2, 'valu -> mfma'
                if c.kind == 'valu':
                    if p.trans and not c.trans and ov(vw, c.rd):
                        need, why = max(need, 1), 'trans -> valu'
                    if c.base.startswith('v_permlane') and ov(vw, c.rd):
                        need, why = max(need, 2), 'valu -> permlane'
                    if c.mn.endswith('_dpp') and ov(vw, c.rd):
                        need, why = max(need, 2), 'valu -> dpp'
                    if c.base in ('v_readfirstlane_b32', 'v_readlane_b32') and ov(vw, c.rd):
                        need, why = max(need, 1), 'valu -> readlane'
                    if ov(sw, c.rd):
                        need, why = max(need, 2), 'valu sgpr -> valu'
                    if (p.mn.endswith('_sdwa')) and ov(vw, c.rd + c.wr):
                        need, why = max(need, 1), 'sdwa -> valu'
                if c.kind == 'vmem' and ov(sw, c.rd):
                    need, why = 5, 'valu sgpr -> vmem'
                if c.kind in ('salu',) and ov(sw, c.rd):
                    need, why = max(need, 1), 'valu sgpr -> salu (pad)'
            elif p.kind == 'salu':
                if ('m0', 0) in p.wr and c.kind == 'vmem' and getattr(c, 'lds', False):
                    need, why = 1, 'm0 -> lds dma'
            elif p.kind == 'vmem' and getattr(p, 'store', False):
                if len(p.data) >= 3 and ov(p.data, c.wr):
                    need, why = (2 if c.kind == 'valu' else 1), 'store data WAR'
            if need > dist:
                errs.append(f'{name}: hazard "{why}" need {need} have {dist}:\n   [{i}] {p.text.strip()}\n   [{j}] {c.text.strip()}')
            dist += p.states
            if dist >= 20:
                break
    return errs

def check_waits(lines, name='', lg_init=None, vm_init=None):
    ins = [I(l) for l in lines if l.strip() and not l.strip().startswith(';') and not l.strip().endswith(':') and not l.strip().startswith('.')]
    lg, vm = list(lg_init or []), list(vm_init or [])
    errs = []
    for j, c in enumerate(ins):
        if c.mn == 's_waitcnt':
            t = c.text.split(';')[0]
            m = re.search(r'vmcnt\((\d+)\)', t)
            if m:
                k = int(m.group(1))
                while len(vm) > k:
                    vm.pop(0)
            m = re.search(r'lgkmcnt\((\d+)\)', t)
            if m:
                k = int(m.group(1))
                if k > 0 and any(x[0] == 'smem' for x in lg):
                    errs.append(f'{name}: counted lgkmcnt with smem outstanding at [{j}]')
                while len(lg) > k:
                    lg.pop(0)
            continue
        touched = c.rd + c.wr
        for q in (lg, vm):
            for kind, w, txt in q:
                if ov(w, touched):
                    errs.append(f'{name}: unwaited load result touched:\n   load {txt.strip()}\n   [{j}] {c.text.strip()}')
        if c.kind == 'ds':
            lg.append(('ds', c.wr, c.text))
            if len(lg) > 15:
                lg.pop(0)
        elif c.kind == 'smem':
            lg.append(('smem', c.wr, c.text))
        elif c.kind == 'vmem':
            vm.append(('vm', c.wr, c.text))
            if len(vm) > 63:
                errs.append(f'{name}: vmcnt overflow at [{j}]')
    return errs

def isize(text):
    i = I(text)
    mn = i.mn
    lit = False
    for o in i.ops:
        if re.fullmatch(r'-?(0x[0-9a-fA-F]+|\d+)', o):
            v = int(o, 0)
            if not (-16 <= v <= 64):
                lit = True
    if i.kind in ('mfma', 'ds', 'vmem', 'smem'):
        return 8
    if i.kind == 'ctl':
        return 4
    if i.kind == 'salu':
        if mn.startswith('s_movk') or mn.startswith('s_addk') or mn.startswith('s_getreg') or mn.startswith('s_cmpk'):
            return 4
        return 8 if lit else 4
    if i.kind == 'valu':
        if mn.endswith('_e32'):
            return 8 if lit else 4
        return 8
    raise ValueError(text)
```

```python
import sys, struct, math
from asmlib import *

NAME = 'standalone__kv_cache_quant_int4_int2_kv_with_per_channel_or_per_token_scales__prompt'
OPT = dict(stamp=0, dma_gaps=(9, 13), sm_start=2, order='mem_first')
for a in sys.argv[2:]:
    k, v = a.split('=')
    OPT[k] = eval(v)

def f32bits(x):
    return struct.unpack('<I', struct.pack('<f', x))[0]

CSCALE = f32bits(128 ** -0.5 * math.log2(math.e))
V_OFF = 4 << 20
WS_BYTES = (8 << 20) + (64 << 10)

class Out:
    def __init__(self):
        self.l = []
    def __call__(self, s):
        for x in s.strip('\n').split('\n'):
            self.l.append(x)

def gen_dequant():
    o = Out()
    o(f'''
    s_cmp_ge_u32 s2, 512
    s_cbranch_scc1 L_dq_end
    s_load_dwordx4 s[4:7], s[0:1], 8
    s_load_dwordx8 s[8:15], s[0:1], 24
    s_load_dwordx2 s[16:17], s[0:1], 72       ; ws
    v_lshrrev_b32_e32 v1, 6, v0
    v_and_b32_e32 v2, 63, v0                  ; lane
    v_readfirstlane_b32 s3, v1                ; wave
    s_and_b32 s18, s2, 7                      ; head
    s_lshr_b32 s19, s2, 3                     ; unit
    v_lshrrev_b32_e32 v3, 5, v2               ; h = lane/32
    v_and_b32_e32 v4, 31, v2                  ; n = lane%32
    v_lshlrev_b32_e32 v5, 4, v2
    s_lshl_b32 s20, s18, 20
    s_lshl_b32 s21, s19, 14
    s_add_u32 s20, s20, s21
    s_lshl_b32 s22, s18, 19
    s_lshl_b32 s21, s19, 13
    s_add_u32 s22, s22, s21
    s_and_b32 s23, s3, 1                      ; half / t
    s_lshl_b32 s21, s23, 12
    s_add_u32 s22, s22, s21
    s_mov_b32 s46, 0x{CSCALE:08x}
    s_mov_b32 s47, 0xffff0000
    s_waitcnt lgkmcnt(0)
    s_mov_b32 s40, s16
    s_mov_b32 s41, s17
    s_mov_b32 s42, {WS_BYTES}
    s_mov_b32 s43, 0x20000
    s_mov_b32 s30, {8 << 20}
    s_mov_b32 s31, 0x20000
    s_mov_b32 s34, 32768
    s_mov_b32 s35, 0x20000
    s_mov_b32 s38, 32768
    s_mov_b32 s39, 0x20000
    s_cmp_ge_u32 s3, 2
    s_cbranch_scc1 L_dq_v
    ; ---------------- K path
    s_mov_b32 s28, s4
    s_mov_b32 s29, s5
    s_mov_b32 s32, s8
    s_mov_b32 s33, s9
    s_mov_b32 s36, s10
    s_mov_b32 s37, s11
    v_lshlrev_b32_e32 v6, 9, v4               ; token*512
    v_lshl_add_u32 v6, v3, 5, v6              ; + h*32
    s_lshl_b32 s21, s23, 8
    s_add_u32 s20, s20, s21                   ; + half*256
    v_lshlrev_b32_e32 v7, 4, v3               ; h*16
    s_lshl_b32 s24, s18, 12                   ; head*4096
    s_lshr_b32 s21, s19, 2
    s_lshl_b32 s21, s21, 8
    s_add_u32 s24, s24, s21                   ; + group*256
    s_lshl_b32 s21, s23, 7
    s_add_u32 s24, s24, s21                   ; + half*128
''')
    for f in range(4):
        o(f'    buffer_load_dwordx4 v[{16+8*f}:{19+8*f}], v6, s[28:31], s20 offen offset:{64*f}')
        o(f'    buffer_load_dwordx4 v[{20+8*f}:{23+8*f}], v6, s[28:31], s20 offen offset:{64*f+16}')
        o(f'    buffer_load_dwordx4 v[{48+4*f}:{51+4*f}], v7, s[32:35], s24 offen offset:{32*f}')
        o(f'    buffer_load_dwordx4 v[{64+4*f}:{67+4*f}], v7, s[36:39], s24 offen offset:{32*f}')
    for f in range(4):
        o(f'    s_waitcnt vmcnt({12-4*f + f})')
        for p in range(4):
            a, b = 16 + 8*f + 2*p, 17 + 8*f + 2*p
            sc, zr = 48 + 4*f + p, 64 + 4*f + p
            o(f'''
    v_cvt_f32_i32_e32 v{a}, v{a}
    v_cvt_f32_i32_e32 v{b}, v{b}
    v_lshlrev_b32_e32 v8, 16, v{zr}
    v_and_b32_e32 v9, s47, v{zr}
    v_cvt_pk_bf16_f32 v{a}, v{a}, v{b}
    v_lshlrev_b32_e32 v10, 16, v{sc}
    v_and_b32_e32 v11, s47, v{sc}
    v_and_b32_e32 v{b}, s47, v{a}
    v_lshlrev_b32_e32 v{a}, 16, v{a}
    v_sub_f32_e32 v{a}, v{a}, v8
    v_sub_f32_e32 v{b}, v{b}, v9
    v_cvt_pk_bf16_f32 v{a}, v{a}, v{b}
    v_and_b32_e32 v{b}, s47, v{a}
    v_lshlrev_b32_e32 v{a}, 16, v{a}
    v_mul_f32_e32 v{a}, v{a}, v10
    v_mul_f32_e32 v{b}, v{b}, v11
    v_cvt_pk_bf16_f32 v{a}, v{a}, v{b}
    v_and_b32_e32 v{b}, s47, v{a}
    v_lshlrev_b32_e32 v{a}, 16, v{a}
    v_mul_f32_e32 v{a}, s46, v{a}
    v_mul_f32_e32 v{b}, s46, v{b}
    v_cvt_pk_bf16_f32 v{80+4*f+p}, v{a}, v{b}''')
        o(f'    buffer_store_dwordx4 v[{80+4*f}:{83+4*f}], v5, s[40:43], s22 offen offset:{1024*f}')
    o(f'''
    s_endpgm
L_dq_v:
    s_mov_b32 s28, s6
    s_mov_b32 s29, s7
    s_mov_b32 s32, s12
    s_mov_b32 s33, s13
    s_mov_b32 s36, s14
    s_mov_b32 s37, s15
    s_add_u32 s22, s22, {V_OFF}
    v_and_b32_e32 v6, 15, v4                  ; b
    v_lshrrev_b32_e32 v7, 4, v4               ; a
    v_lshlrev_b32_e32 v6, 5, v6               ; b*32 bytes
    v_lshl_add_u32 v6, v7, 4, v6              ; + a*16
    v_lshl_add_u32 v6, v3, 11, v6             ; + h*4*512
    s_lshl_b32 s21, s23, 13
    s_add_u32 s20, s20, s21                   ; + t*8192
    s_add_u32 s25, s20, 4096
    v_lshlrev_b32_e32 v7, 3, v3               ; h*8 bytes
    s_lshl_b32 s24, s18, 12                   ; head*4096
    s_lshl_b32 s21, s19, 6
    s_add_u32 s24, s24, s21                   ; + unit*64
    s_lshl_b32 s21, s23, 5
    s_add_u32 s24, s24, s21                   ; + t*32
    buffer_load_dwordx2 v[48:49], v7, s[32:35], s24 offen
    buffer_load_dwordx2 v[50:51], v7, s[32:35], s24 offen offset:16
    buffer_load_dwordx2 v[52:53], v7, s[36:39], s24 offen
    buffer_load_dwordx2 v[54:55], v7, s[36:39], s24 offen offset:16''')
    for j in range(8):
        so = 's20' if j < 4 else 's25'
        o(f'    buffer_load_dwordx4 v[{16+4*j}:{19+4*j}], v6, s[28:31], {so} offen offset:{512*(j%4)}')
    o('    s_waitcnt vmcnt(8)')
    for p in range(4):
        o(f'''
    v_lshlrev_b32_e32 v{56+2*p}, 16, v{48+p}
    v_and_b32_e32 v{57+2*p}, s47, v{48+p}
    v_lshlrev_b32_e32 v{64+2*p}, 16, v{52+p}
    v_and_b32_e32 v{65+2*p}, s47, v{52+p}''')
    for p in range(4):
        o(f'    s_waitcnt vmcnt({6-2*p})')
        for db in range(4):
            a, b = 16 + 8*p + db, 20 + 8*p + db
            o(f'''
    v_cvt_f32_i32_e32 v{a}, v{a}
    v_cvt_f32_i32_e32 v{b}, v{b}
    v_cvt_pk_bf16_f32 v{a}, v{a}, v{b}
    v_and_b32_e32 v{b}, s47, v{a}
    v_lshlrev_b32_e32 v{a}, 16, v{a}
    v_sub_f32_e32 v{a}, v{a}, v{64+2*p}
    v_sub_f32_e32 v{b}, v{b}, v{65+2*p}
    v_cvt_pk_bf16_f32 v{a}, v{a}, v{b}
    v_and_b32_e32 v{b}, s47, v{a}
    v_lshlrev_b32_e32 v{a}, 16, v{a}
    v_mul_f32_e32 v{a}, v{a}, v{56+2*p}
    v_mul_f32_e32 v{b}, v{b}, v{57+2*p}
    v_cvt_pk_bf16_f32 v{80+4*db+p}, v{a}, v{b}''')
    for db in range(4):
        o(f'    buffer_store_dwordx4 v[{80+4*db}:{83+4*db}], v5, s[40:43], s22 offen offset:{1024*db}')
    o('L_dq_end:\n    s_endpgm')
    return o.l

def aO(qb, db): b = (qb*4+db)*16; return f'a[{b}:{b+15}]'
def aOr(qb, db, r): return f'a{(qb*4+db)*16 + r}'
def aQ(qb, ks): b = 128 + (qb*8+ks)*4; return f'a[{b}:{b+3}]'
def aK(f): b = 192 + 4*f; return f'a[{b}:{b+3}]'
def aV(f): b = 224 + 4*f; return f'a[{b}:{b+3}]'
S0 = 64
def vS(buf, qb): b = S0 + (buf*2+qb)*16; return f'v[{b}:{b+15}]'
def vSr(buf, qb, r): return f'v{S0 + (buf*2+qb)*16 + r}'
P0 = 128
def vP(buf, t, qb): b = P0 + ((buf*2+t)*2+qb)*4; return f'v[{b}:{b+3}]'
def vPr(buf, t, qb, i): return f'v{P0 + ((buf*2+t)*2+qb)*4 + i}'
C0 = 160
def vC(qb): b = C0 + qb*16; return f'v[{b}:{b+15}]'
vL = ['v10', 'v11']
vLo, vHi, vD2 = 'v4', 'v5', 'v6'
LDS_RING = 131072
LDS_SCR = LDS_RING
LDS_TOTAL = LDS_RING + 4096

def lds_read(dst, slot, off):
    a = slot*32768 + off
    if a >= 65536:
        return f'ds_read_b128 {dst}, {vHi} offset:{a-65536}'
    return f'ds_read_b128 {dst}, {vLo} offset:{a}'

def sm_ops(u):
    buf = u & 1
    ops = []
    for e in range(32):
        t, qb, r = e // 16, (e % 16) // 8, 8*(e//16) + e % 8
        s = vSr(buf, qb, r)
        ops.append((e, 0, f'v_exp_f32_e32 {s}, {s}'))
        ops.append((e + 1, 1, f'v_add_f32_e32 {vL[qb]}, {vL[qb]}, {s}'))
        if e & 1:
            ops.append((e + 1, 2, f'v_cvt_pk_bf16_f32 {vPr(buf, t, qb, (e % 8)//2)}, {vSr(buf, qb, r-1)}, {s}'))
    return ops

def qk_mfma(u, i, kreg=aK):
    ks, qb = i // 2, i % 2
    c = vC(qb) if ks == 0 else vS(u & 1, qb)
    return f'v_mfma_f32_32x32x16_bf16 {vS(u & 1, qb)}, {kreg(ks)}, {aQ(qb, ks)}, {c}'

def pv_mfma(u, i):
    t, db, qb = i // 8, (i % 8) // 2, i % 2
    return f'v_mfma_f32_32x32x16_bf16 {aO(qb, db)}, {vP(u & 1, t, qb)}, {aV(t*4+db)}, {aO(qb, db)}'

def dma(grp, i):
    v = vLo if grp == 0 else vD2
    return f'buffer_load_dwordx4 {v}, s[4:7], s17 offen offset:{1024*i} lds'

def gen_stages(stages, first_u_parity_ok=True):
    n = len(stages)
    G = 64 * n
    mf = [None] * G
    pre = [[] for _ in range(G + 1)]
    mem = [[] for _ in range(G + 1)]
    val = [[] for _ in range(G + 40)]
    st = OPT['sm_start']
    for k, sg in enumerate(stages):
        slot = sg['slot']
        for half in range(2):
            u = 2*k + half
            gA = 64*k + 32*half
            gB = gA + 16
            lastu = sg.get('last') and half == 1
            for i in range(16):
                mf[gA + i] = None if lastu else qk_mfma(u + 1, i)
                mf[gB + i] = pv_mfma(u, i)
            for f in range(8):
                mem[gA + f].append(lds_read(aV(f), slot, half*8192 + f*1024))
                if not sg.get('last'):
                    mem[gB + f].append(lds_read(aK(f), slot, 16384 + half*8192 + f*1024))
            pre[gB].append('s_waitcnt lgkmcnt(0)')
            if half == 1:
                pre[gA].append('s_waitcnt lgkmcnt(0)')
            if not lastu:
                for rg, pr, tx in sm_ops(u + 1):
                    val[gB + st + rg].append((pr, tx))
            if sg['dma']:
                dslot = (slot + 3) % 4
                for ph, g0 in enumerate((gA, gB)):
                    idx = half*2 + ph
                    grp = idx // 2
                    for w, gg in enumerate(OPT['dma_gaps']):
                        i = (idx % 2)*2 + w
                        if i == 0:
                            mem[g0 + gg - 1].append(f's_add_u32 m0, s19, {dslot*32768 + grp*4096}')
                        mem[g0 + gg].append(dma(grp, i))
                        if idx == 3 and w == 1:
                            mem[g0 + gg + 1].append('s_add_u32 s17, s17, 16384')
        pre[64*k].insert(0, f's_waitcnt vmcnt({sg["vm"]}) lgkmcnt(0)')
        pre[64*k].insert(1, 's_barrier')
    return mf, pre, mem, val, G

def wrap_sm(val, G, carry_in):
    for g, lst in carry_in.items():
        val[g] = lst + val[g]
    carry = {g - G: val[g] for g in range(G, len(val)) if val[g]}
    return carry

def emit_block(o, mf, pre, mem, val, G):
    for g in range(G):
        for x in pre[g]:
            o('    ' + x)
        if mf[g]:
            o('    ' + mf[g])
        v = [t for _, t in sorted(val[g], key=lambda z: z[0])]
        m = mem[g]
        seq = (m + v) if OPT['order'] == 'mem_first' else (v + m)
        for x in seq:
            o('    ' + x)

def align8(lines):
    out, off = [], 0
    for l in lines:
        s = l.strip()
        if not s or s.startswith(';') or s.endswith(':') or s.startswith('.'):
            out.append(l); continue
        sz = isize(s)
        if sz == 8 and off % 8 == 4:
            k = len(out) - 1
            p = out[k].strip()
            if '_e32' in p.split()[0] and isize(p) == 4:
                out[k] = out[k].replace('_e32', '_e64', 1)
            else:
                out.append('    s_nop 0')
            off += 4
        out.append(l); off += sz
    return out, off

def gen_main():
    o = Out()
    o(f'''
    s_cmp_ge_u32 s2, 256
    s_cbranch_scc1 L_end
    s_load_dwordx2 s[8:9], s[0:1], 0          ; q
    s_load_dwordx2 s[12:13], s[0:1], 56       ; out
    s_load_dwordx4 s[24:27], s[0:1], 64
    v_lshrrev_b32_e32 v1, 6, v0
    v_and_b32_e32 v2, 63, v0                  ; lane
    v_readfirstlane_b32 s16, v1               ; wave
    v_lshlrev_b32_e32 {vLo}, 4, v2
    v_add_u32_e32 {vHi}, 0x10000, {vLo}
    v_add_u32_e32 {vD2}, 0x1000, {vLo}
    s_and_b32 s20, s2, 7
    s_lshr_b32 s21, s2, 3
    s_lshl_b32 s22, s20, 5
    s_add_u32 s22, s22, s21
    s_lshl_b32 s22, s22, 16                   ; * 256 rows * 256 B
    s_lshl_b32 s23, s16, 14
    s_add_u32 s22, s22, s23
    s_add_u32 s23, s22, 8192
    v_and_b32_e32 v7, 31, v2
    v_lshrrev_b32_e32 v8, 5, v2               ; h
    v_lshlrev_b32_e32 v9, 8, v7
    v_lshl_add_u32 v9, v8, 4, v9
    s_lshl_b32 s19, s16, 13                   ; wave*8192
    s_lshl_b32 s28, s20, 19                   ; head*512KB
    s_cmp_lt_u32 s16, 2
    s_cselect_b32 s29, {V_OFF}, 0
    s_add_u32 s29, s29, s28
    s_add_u32 s29, s29, s19
    s_mov_b32 s30, 0                          ; pass
    s_waitcnt lgkmcnt(0)
    s_mov_b32 s4, s26
    s_mov_b32 s5, s27
    s_mov_b32 s6, {WS_BYTES}
    s_mov_b32 s7, 0x20000
    s_mov_b32 s10, {16 << 20}
    s_mov_b32 s11, 0x20000
    s_mov_b32 s14, {16 << 20}
    s_mov_b32 s15, 0x20000''')
    if OPT['stamp']:
        o('    s_memtime s[40:41]\n    s_memrealtime s[56:57]')
    for r in range(32):
        o(f'    v_mov_b32_e32 v{C0 + r}, 0')
    o('L_pass:')
    o(f'''
    s_lshl_b32 s17, s16, 12
    s_add_u32 m0, s17, {3*32768 + 16384}
    s_add_u32 s17, s17, s28''')
    for i in range(4):
        o('    ' + dma(0, i))
    for qb in range(2):
        for ks in range(8):
            o(f'    buffer_load_dwordx4 {aQ(qb, ks)}, v9, s[8:11], s{22+qb} offen offset:{32*ks}')
    o('    s_mov_b32 s17, s29')
    for s in range(3):
        for grp in range(2):
            o(f'    s_add_u32 m0, s19, {s*32768 + grp*4096}')
            o('    s_nop 0')
            for i in range(4):
                o('    ' + dma(grp, i))
        o('    s_add_u32 s17, s17, 16384')
    for r in range(128):
        o(f'    v_accvgpr_write_b32 a{r}, 0')
    o(f'    v_mov_b32_e32 {vL[0]}, 0\n    v_mov_b32_e32 {vL[1]}, 0')
    o('    s_mov_b32 s18, 7')
    o('    s_waitcnt vmcnt(24)\n    s_barrier')
    for f in range(8):
        o('    ' + lds_read(aV(f), 3, 16384 + f*1024))
    o('    s_waitcnt lgkmcnt(4)')
    if OPT['stamp']:
        pass
    for f in range(8):
        o('    ' + lds_read(aK(f), 3, 24576 + f*1024))
    for i in range(16):
        if i in (0, 2, 4, 6):
            pass
        if i == 8:
            o('    s_waitcnt lgkmcnt(8)')
        o('    ' + qk_mfma(0, i, aV))
    o('    s_nop 7\n    s_nop 3')
    st = OPT['sm_start']
    carry = {}
    head = []
    for rg, pr, tx in sm_ops(0):
        g = st + rg - 16
        if g < 0:
            head.append((rg, pr, tx))
        else:
            carry.setdefault(g, []).append((pr, tx))
    for rg, pr, tx in sorted(head, key=lambda z: (z[0], z[1])):
        o('    ' + tx)
    pro_lines = list(o.l)
    loop = Out()
    mf, pre, mem, val, G = gen_stages([dict(slot=s, dma=True, vm=16) for s in range(4)])
    c2 = wrap_sm(val, G, carry)
    assert c2 == carry, (c2, carry)
    mem[G-3].append('s_sub_u32 s18, s18, 1')
    mem[G-2].append('s_cmp_lg_u32 s18, 0')
    emit_block(loop, mf, pre, mem, val, G)
    loop('    s_cbranch_scc1 L_loop')
    loop.l, sz = align8(loop.l)
    tail = Out()
    mf, pre, mem, val, G = gen_stages([dict(slot=0, dma=True, vm=16), dict(slot=1, dma=False, vm=16),
                                       dict(slot=2, dma=False, vm=8), dict(slot=3, dma=False, vm=0, last=True)])
    c3 = wrap_sm(val, G, carry)
    assert not c3, c3
    emit_block(tail, mf, pre, mem, val, G)
    tail.l, _ = align8(tail.l)
    o('.p2align 6')
    o('L_loop:')
    o.l += loop.l
    o('.p2align 3')
    o.l += tail.l
    ep = Out()
    if OPT['stamp']:
        ep('    s_memtime s[44:45]')
    ep(f'''
    v_mov_b32_e32 v12, {vL[0]}
    v_mov_b32_e32 v13, {vL[1]}
    s_nop 1
    v_permlane32_swap_b32 {vL[0]}, v12
    v_permlane32_swap_b32 {vL[1]}, v13
    v_add_f32_e32 {vL[0]}, {vL[0]}, v12
    v_add_f32_e32 {vL[1]}, {vL[1]}, v13
    s_cmp_lg_u32 s30, 0
    s_cbranch_scc1 L_store
    s_mov_b32 s31, 0x{f32bits(2.0**-40):08x}
    s_mov_b32 s32, 0x{f32bits(2.0**40):08x}
    v_cmp_nle_f32_e64 s[34:35], s31, {vL[0]}       ; !(lo <= l)
    v_cmp_nge_f32_e64 s[36:37], s32, {vL[0]}       ; !(hi >= l)
    v_cmp_nle_f32_e64 s[38:39], s31, {vL[1]}
    v_cmp_nge_f32_e64 vcc, s32, {vL[1]}
    s_nop 1
    s_or_b64 s[34:35], s[34:35], s[36:37]
    s_or_b64 s[38:39], s[38:39], vcc
    s_or_b64 s[34:35], s[34:35], s[38:39]
    s_cselect_b32 s33, 1, 0
    v_mov_b32_e32 v12, s33
    s_lshl_b32 s33, s16, 2
    v_mov_b32_e32 v13, s33
    ds_write_b32 v13, v12 offset:{LDS_SCR + 2048 - 65536 if False else 0}''' if False else '')
    ep(f'''
    v_mov_b32_e32 v12, {vL[0]}
    v_mov_b32_e32 v13, {vL[1]}
    s_nop 1
    v_permlane32_swap_b32 {vL[0]}, v12
    v_permlane32_swap_b32 {vL[1]}, v13
    v_add_f32_e32 {vL[0]}, {vL[0]}, v12
    v_add_f32_e32 {vL[1]}, {vL[1]}, v13
    s_cmp_lg_u32 s30, 0
    s_cbranch_scc1 L_store
    s_mov_b32 s31, 0x{f32bits(2.0**-40):08x}
    s_mov_b32 s32, 0x{f32bits(2.0**40):08x}
    v_cmp_nle_f32_e64 s[34:35], s31, {vL[0]}
    v_cmp_nge_f32_e64 s[36:37], s32, {vL[0]}
    v_cmp_nle_f32_e64 s[38:39], s31, {vL[1]}
    v_cmp_nge_f32_e64 vcc, s32, {vL[1]}
    s_nop 1
    s_or_b64 s[34:35], s[34:35], s[36:37]
    s_or_b64 s[38:39], s[38:39], vcc
    s_or_b64 s[34:35], s[34:35], s[38:39]
    s_cselect_b32 s33, 1, 0
    v_mov_b32_e32 v12, s33
    s_lshl_b32 s33, s16, 2
    s_add_u32 s33, s33, {LDS_SCR + 2048}
    v_mov_b32_e32 v13, s33
    v_mov_b32_e32 v14, {LDS_SCR + 2048}
    ds_write_b32 v13, v12
    s_waitcnt lgkmcnt(0)
    s_barrier
    ds_read_b128 v[16:19], v14
    s_waitcnt lgkmcnt(0)
    v_or_b32_e32 v16, v16, v17
    v_or3_b32 v16, v16, v18, v19
    s_nop 0
    v_readfirstlane_b32 s33, v16
    s_nop 1
    s_cmp_lg_u32 s33, 0
    s_cbranch_scc1 L_fallback
L_store:
    v_rcp_f32_e32 {vL[0]}, {vL[0]}
    v_rcp_f32_e32 {vL[1]}, {vL[1]}
    s_lshl_b32 s33, s16, 8
    s_add_u32 s33, s33, {LDS_SCR}
    v_lshl_add_u32 v12, v7, 2, s33            ; write address: scr + wave*256 + (lane%32)*4
    v_lshl_add_u32 v13, v8, 4, s33
    ds_write_b32 v12, {vL[0]}
    ds_write_b32 v12, {vL[1]} offset:128
    v_bfe_u32 v14, v2, 4, 1                   ; a
    v_and_b32_e32 v15, 15, v2                 ; b
    v_lshl_add_u32 v14, v8, 2, v14            ; 4h + a
    v_lshlrev_b32_e32 v14, 8, v14
    v_lshl_add_u32 v14, v15, 4, v14
    s_waitcnt lgkmcnt(0)''')
    for qb in range(2):
        for i in range(4):
            ep(f'    ds_read_b128 v[{16+16*qb+4*i}:{19+16*qb+4*i}], v13 offset:{128*qb + 32*i}')
    ep('    s_add_u32 s34, s22, 4096\n    s_add_u32 s35, s23, 4096')
    ep('    s_waitcnt lgkmcnt(0)')
    tmp = 64
    for qb in range(2):
        for r in range(0, 16, 2):
            base = tmp + ((qb*8 + r//2) % 4) * 16
            for rr in range(2):
                for db in range(4):
                    ep(f'    v_accvgpr_read_b32 v{base + rr*4 + db}, {aOr(qb, db, r + rr)}')
            for rr in range(2):
                for db in range(4):
                    ep(f'    v_mul_f32_e32 v{base + rr*4 + db}, v{base + rr*4 + db}, v{16 + 16*qb + r + rr}')
            for rr in range(2):
                ep(f'    v_cvt_pk_bf16_f32 v{base + 8 + 2*rr}, v{base + rr*4}, v{base + rr*4 + 1}')
                ep(f'    v_cvt_pk_bf16_f32 v{base + 9 + 2*rr}, v{base + rr*4 + 2}, v{base + rr*4 + 3}')
            ep('    s_nop 1')
            ep(f'    v_permlane16_swap_b32 v{base + 8}, v{base + 10}')
            ep(f'    v_permlane16_swap_b32 v{base + 9}, v{base + 11}')
            off = (8*(r//4) + r % 4) * 256
            so = f's{22+qb}' if off < 4096 else f's{34+qb}'
            ep(f'    buffer_store_dwordx4 v[{base+8}:{base+11}], v14, s[12:15], {so} offen offset:{off % 4096}')
    if OPT['stamp']:
        ep(f'''
    s_memtime s[46:47]
    s_waitcnt vmcnt(0)
    s_memtime s[48:49]
    s_memrealtime s[58:59]
    s_waitcnt lgkmcnt(0)
    s_mov_b32 s50, s26
    s_mov_b32 s51, s27
    s_mov_b32 s52, 0x10000000
    s_mov_b32 s53, 0x20000
    s_lshl_b32 s54, s2, 2
    s_add_u32 s54, s54, s16
    s_lshl_b32 s54, s54, 6
    s_add_u32 s54, s54, {16 << 20}
    v_mov_b32_e32 v16, s40
    v_mov_b32_e32 v17, s41
    v_mov_b32_e32 v18, s42
    v_mov_b32_e32 v19, s43
    v_mov_b32_e32 v20, s44
    v_mov_b32_e32 v21, s45
    v_mov_b32_e32 v22, s46
    v_mov_b32_e32 v23, s47
    v_mov_b32_e32 v24, s48
    v_mov_b32_e32 v25, s49
    v_mov_b32_e32 v26, s56
    v_mov_b32_e32 v27, s57
    v_mov_b32_e32 v28, s58
    v_mov_b32_e32 v29, s59
    v_mov_b32_e32 v30, 0
    v_mov_b32_e32 v31, 0
    v_mov_b32_e32 v32, 0
    buffer_store_dwordx4 v[16:19], v32, s[50:53], s54 offen
    buffer_store_dwordx4 v[20:23], v32, s[50:53], s54 offen offset:16
    buffer_store_dwordx4 v[24:27], v32, s[50:53], s54 offen offset:32
    buffer_store_dwordx4 v[28:31], v32, s[50:53], s54 offen offset:48''')
    ep('L_end:\n    s_endpgm')
    fb = Out()
    fb(f'''
L_fallback:
    s_mov_b32 s30, 1
    v_mov_b32_e32 v12, 0xff800000
    v_mov_b32_e32 v13, 0xff800000
    s_mov_b32 s17, s28
    s_mov_b32 s18, 64
L_maxloop:''')
    for f in range(8):
        v = vLo if f < 4 else vD2
        fb(f'    buffer_load_dwordx4 {aK(f)}, {v}, s[4:7], s17 offen offset:{1024*(f%4)}')
    fb('    s_waitcnt vmcnt(0)')
    for i in range(16):
        ks, qb = i // 2, i % 2
        c = '0' if ks == 0 else vS(0, qb)
        fb(f'    v_mfma_f32_32x32x16_bf16 {vS(0, qb)}, {aK(ks)}, {aQ(qb, ks)}, {c}')
    fb('    s_nop 7\n    s_nop 7')
    for qb in range(2):
        for r in range(0, 16, 2):
            fb(f'    v_max3_f32 v{12+qb}, v{12+qb}, {vSr(0, qb, r)}, {vSr(0, qb, r+1)}')
    fb(f'''
    s_add_u32 s17, s17, 8192
    s_sub_u32 s18, s18, 1
    s_cmp_lg_u32 s18, 0
    s_cbranch_scc1 L_maxloop
    v_mov_b32_e32 v14, v12
    v_mov_b32_e32 v15, v13
    s_nop 1
    v_permlane32_swap_b32 v12, v14
    v_permlane32_swap_b32 v13, v15
    v_max_f32_e32 v12, v12, v14
    v_max_f32_e32 v13, v13, v15''')
    for qb in range(2):
        for r in range(16):
            fb(f'    v_sub_f32_e32 v{C0 + 16*qb + r}, 0, v{12+qb}')
    fb('    s_branch L_pass')
    errs = []
    stamp2 = ['    s_memtime s[42:43]', '    s_waitcnt lgkmcnt(0)'] if OPT['stamp'] else []
    lin = pro_lines + loop.l + loop.l + tail.l + ep.l
    errs += check_hazards(lin, 'main')
    errs += check_waits(lin, 'main')
    errs += check_hazards(ep.l[:60] + fb.l + pro_lines[pro_lines.index('L_pass:'):], 'fallback')
    errs += check_waits(fb.l, 'fallback')
    if OPT['stamp']:
        k = o.l.index('.p2align 6')
        o.l[k:k] = stamp2
    o.l += ep.l + fb.l
    return o.l, errs

HEADER = open('cdna_kernels/' + NAME + '.s.ref').read().split('; Override launch')[0]

def kd(name, vg, sg, acc, extra=''):
    return f'''.p2align 6
.amdhsa_kernel {name}
  .amdhsa_next_free_vgpr {vg}
  .amdhsa_next_free_sgpr {sg}
  .amdhsa_accum_offset {acc}
  .amdhsa_group_segment_fixed_size 0
  .amdhsa_kernarg_size 80
  .amdhsa_user_sgpr_count 2
  .amdhsa_user_sgpr_kernarg_segment_ptr 1
  .amdhsa_system_sgpr_workgroup_id_x 1
{extra}.end_amdhsa_kernel
'''

def main():
    dq = gen_dequant()
    errs = check_hazards(dq, 'dq') + check_waits(dq[:dq.index('L_dq_v:')], 'dqk') + check_waits(dq[dq.index('L_dq_v:'):], 'dqv')
    mn, e2 = gen_main()
    errs += e2
    for e in errs:
        print(e, file=sys.stderr)
    if errs:
        sys.exit(1)
    txt = HEADER
    txt += f'; @launch kernel=dequant_kernel grid=(512,1,1) block=(256,1,1) lds=0\n'
    txt += f'; @launch kernel={NAME}_kernel grid=(256,1,1) block=(256,1,1) lds={LDS_TOTAL}\n'
    txt += '.amdgcn_target "amdgcn-amd-amdhsa--gfx950"\n.text\n'
    for nm, body in (('dequant_kernel', dq), (NAME + '_kernel', mn)):
        txt += f'.globl {nm}\n.p2align 8\n.type {nm},@function\n{nm}:\n' + '\n'.join(body) + '\n'
    txt += '.section .rodata,"a"\n'
    txt += kd('dequant_kernel', 96, 64, 96, '  .amdhsa_float_denorm_mode_32 3\n')
    txt += kd(NAME + '_kernel', 512, 64, 256)
    open(sys.argv[1], 'w').write(txt)

main()
```

```python
import sys, struct, math
from asmlib import *

NAME = 'standalone__kv_cache_quant_int4_int2_kv_with_per_channel_or_per_token_scales__prompt'
OPT = dict(nqb=4, nqm=4, pol='', stamp=0, d=8, st=7, dma0=6, dmastep=12, spin=20000, dma_sc1=1)
for a in sys.argv[2:]:
    k, v = a.split('=')
    OPT[k] = eval(v)

def f32bits(x):
    return struct.unpack('<I', struct.pack('<f', x))[0]

CSCALE = f32bits(128 ** -0.5 * math.log2(math.e))
V_OFF = 4 << 20
FLAG_OFF = 9 << 20
MF = 'v_mfma_f32_16x16x32_bf16'
D = OPT['d']
RP = OPT.get('rp', 0)

class Out:
    def __init__(self):
        self.l = []
    def __call__(self, s):
        for x in s.strip('\n').split('\n'):
            if x.strip():
                self.l.append(x if x.strip().endswith(':') or x.startswith('.') else '    ' + x.strip())

def rng(p, b, n): return f'{p}[{b}:{b+n-1}]'
def aO(qb, db): return rng('a', (qb*8+db)*4, 4)
def aOr(qb, db, r): return f'a{(qb*8+db)*4 + r}'
def aQ(qb, ks): return rng('a', 128 + (qb*4+ks)*4, 4)
def aF(k): return rng('a', 192 + (k % 16)*4, 4)
S0, P0, C0, T0 = 16, 80, 144, 144
def vS(kb, qb): return rng('v', S0 + (kb*4+qb)*4, 4)
def vSr(kb, qb, r): return f'v{S0 + (kb*4+qb)*4 + r}'
def vP(buf, t, qb): return rng('v', P0 + buf*32 + (t*4+qb)*4, 4)
def vPr(buf, t, qb, i): return f'v{P0 + buf*32 + (t*4+qb)*4 + i}'
def vC(qb): return rng('v', C0 + qb*4, 4)
vL = ['v8', 'v9', 'v10', 'v11']
vRd, vD1, vD2 = 'v4', 'v5', 'v6'
LDS_RING = 131072
LDS_SCR = LDS_RING
LDS_QX = LDS_RING + 4096
LDS_TOTAL = LDS_QX + 16384
POL = (' ' + OPT['pol']) if OPT['pol'] else ''
STP = (' ' + OPT['stp']) if OPT.get('stp') else ''
SC1 = ' sc1' if OPT['dma_sc1'] else ''

def frag_off(k):
    if k < 16:
        return k * 1024
    db, t = (k - 16) // 2, (k - 16) % 2
    return 16384 + t * 8192 + db * 1024

def sm_ops(buf):
    ops = []
    for e in range(64):
        kb, qb, r = e // 16, (e // 4) % 4, e % 4
        s = vSr(kb, qb, r)
        ops.append((2*e, 0, f'v_exp_f32_e32 {s}, {s}'))
        ops.append((2*e + 1, 1, f'v_add_f32_e32 {vL[qb]}, {vL[qb]}, {s}'))
        if e & 1:
            ops.append((2*e + 1, 2, f'v_cvt_pk_bf16_f32 {vPr(buf, kb//2, qb, (kb%2)*2 + r//2)}, {vSr(kb, qb, r-1)}, {s}'))
    return ops

def qk_mfma(i, cinit):
    kb, qb, ks = i // 16, (i // 4) % 4, i % 4
    c = (vC(qb) if cinit else '0') if ks == 0 else vS(kb, qb)
    return f'{MF} {vS(kb, qb)}, {aF(kb*4+ks)}, {aQ(qb, ks)}, {c}'

def pv_mfma(i, buf):
    db, qb, t = i // 8, (i // 2) % 4, i % 2
    return f'{MF} {aO(qb, db)}, {vP(buf, t, qb)}, {aF(16 + db*2 + t)}, {aO(qb, db)}'

def dma(grp, i, srd='s[4:7]', so='s17'):
    v = vD1 if grp == 0 else vD2
    return f'buffer_load_dwordx4 {v}, {srd}, {so} offen offset:{1024*i}{SC1} lds'

def build_block(stages, cinit, carry_val, carry_none=False):
    n = len(stages)
    G = 128 * n
    mf = [None] * G
    pre = [[] for _ in range(G)]
    mem = [[] for _ in range(G)]
    val = [[] for _ in range(G + 64)]
    for g, lst in carry_val.items():
        val[g] += lst
    st = OPT['st']
    reads, waits = [], []
    for k, sg in enumerate(stages):
        g0 = 128 * k
        par = sg['par']
        last = sg.get('last', False)
        for i in range(64):
            mf[g0 + i] = None if last else qk_mfma(i, cinit)
            mf[g0 + 64 + i] = pv_mfma(i, par)
        if not last:
            for rg, pr, tx in sm_ops(par ^ 1):
                val[g0 + st + rg].append((pr, tx))
        if k == 0:
            for f in range(D):
                reads.append((4*f + RP - 4*D, (0, f)))
        for f in range(D, 32 + D):
            g = g0 + 4*f + RP - 4*D
            if f < 32:
                if last and f < 16:
                    continue
                mem[g].append(f'ds_read_b128 {aF(f)}, {vRd} offset:{par*32768 + frag_off(f)}')
                reads.append((g, (k, f)))
            elif not last:
                if sg.get('next_last') and f - 32 < 16:
                    continue
                mem[g].append(f'ds_read_b128 {aF(f)}, {vRd} offset:{(par ^ 1)*32768 + frag_off(f - 32)}')
                reads.append((g, (k + 1, f - 32)))
        for m in range(8):
            if last and m < 4:
                continue
            waits.append((g0 + 16*m, [(k, 4*m + j) for j in range(4)]))
        if k == n - 1 and not last:
            waits.append((g0 + 128, [(k + 1, j) for j in range(4)]))
        gb = g0 + 128 + RP - 4*D - 1
        if sg['vm'] is not None:
            mem[gb].append(f's_waitcnt vmcnt({sg["vm"]})')
            mem[gb].append('s_barrier')
            if par == 1:
                val[gb].append((5, f'v_xor_b32_e32 {vRd}, 0x10000, {vRd}'))
        if sg['dma']:
            for j in range(8):
                g = g0 + OPT['dma0'] + OPT['dmastep'] * j
                assert g < gb
                if j % 4 == 0:
                    mem[g - 1].append(f's_add_u32 m0, s19, {par*32768 + (j//4)*4096}')
                mem[g].append(dma(j // 4, j % 4))
            g = g0 + OPT['dma0'] + OPT['dmastep'] * 7
            mem[g + 1].append('s_add_u32 s17, s17, 16384')
            mem[g + 2].append('s_and_b32 s17, s17, 0x7ffff')
            if par == 1:
                mem[g + 3].append('s_xor_b32 s19, s19, 0x10000')
    ids = [r[1] for r in reads]
    for gw, need in waits:
        p = max(ids.index(x) for x in need)
        assert reads[p][0] < gw
        if gw == 0:
            continue
        assert reads[p][0] < gw - 1
        w = len([1 for r in reads[p+1:] if r[0] < gw - 1])
        mem[gw - 1].insert(0, f's_waitcnt lgkmcnt({w})')
    carry = {g - G: val[g] for g in range(G, len(val)) if val[g]}
    return mf, pre, mem, val, G, carry

def emit_block(o, mf, pre, mem, val, G):
    for g in range(G):
        for x in pre[g]:
            o(x)
        if mf[g]:
            o(mf[g])
        elif val[g]:
            o('s_nop 0')
        v = [t for _, t in sorted(val[g], key=lambda z: z[0])]
        m = mem[g]
        if OPT.get('no_exp'): v = [t for t in v if not t.startswith('v_exp')]
        if OPT.get('no_add'): v = [t for t in v if not t.startswith('v_add')]
        if OPT.get('no_cvt'): v = [t for t in v if not t.startswith('v_cvt')]
        if OPT.get('no_lds'): m = [t for t in m if not t.startswith('ds_read')]
        if OPT.get('no_dma'): m = [t for t in m if not t.startswith('buffer_load')]
        m = [t for t in m if t.startswith('s_')] + [t for t in m if not t.startswith('s_')]
        seq = m + v
        for x in seq:
            o(x)

def align8(lines):
    out, off, run = [], 0, []
    for l in lines:
        s = l.strip()
        if not s or s.startswith(';') or s.endswith(':') or s.startswith('.'):
            out.append(l); continue
        sz = isize(s)
        if sz == 8:
            if off % 8 == 4:
                done = False
                for pos, k in enumerate(run):
                    if pos % 2 == 0 and '_e32' in out[k].split()[0]:
                        out[k] = out[k].replace('_e32', '_e64', 1); done = True
                        break
                if not done:
                    out.append('    s_nop 0')
                off += 4
            run = []
        else:
            run.append(len(out))
        out.append(l); off += sz
    if off % 8 == 4:
        out.append('    s_nop 0'); off += 4
    return out, off

def stampdq(o, k):
    if OPT.get('stampdq'):
        o(f's_memtime s[{64+2*k}:{65+2*k}]')

def stamp(o, k):
    if OPT.get('stampdq') and k in (3, 4, 5, 7):
        return
    if OPT['stamp']:
        o(f's_memtime s[{64+2*k}:{65+2*k}]')

def gen_dequant(o):
    T = T0
    NQB = OPT['nqb']
    def data_loads():
        for gs in range(2):
            for j in range(8):
                so = 's53' if j < 4 else 's54'
                o(f'buffer_load_dwordx4 {rng("v", T + gs*32 + j*4, 4)}, v12, s[32:35], {so} offen offset:{512*(4*gs + j%4)}{POL}')
        stampdq(o, 4)
        init_work(o)
        stampdq(o, 5)
    def mid(gs, j):
        if gs == 0 and j == 0: stampdq(o, 7)
        if gs == 1 and j == 0:
            o('buffer_load_dwordx2 v[16:17], v1, s[44:47], s23 offen sc1')
            return 1 + qdma(o, range(NQB))
        return 0
    o(f'''
L_dq:
    s_lshl_b32 s53, s51, 15
    s_add_u32 s53, s53, s48
    s_add_u32 s54, s53, 8192
    s_lshl_b32 s55, s51, 14
    v_lshrrev_b32_e32 v13, 5, v2              ; h
    v_and_b32_e32 v20, 31, v2                 ; m
    v_lshlrev_b32_e32 v12, 12, v13
    v_lshl_add_u32 v12, v20, 4, v12           ; h*8*512 + m*16
    s_cmp_ge_u32 s16, 2
    s_cbranch_scc1 L_dq_v
    s_lshr_b32 s56, s51, 1
    s_lshl_b32 s56, s56, 8
    s_add_u32 s56, s56, s49
    v_lshlrev_b32_e32 v21, 3, v20             ; m*8
    buffer_load_dwordx2 v[208:209], v21, s[36:39], s56 offen
    buffer_load_dwordx2 v[210:211], v21, s[40:43], s56 offen''')
    data_loads()
    o('''
    v_lshrrev_b32_e32 v12, 1, v20
    v_lshlrev_b32_e32 v12, 8, v12
    v_and_b32_e32 v20, 1, v20
    v_lshl_add_u32 v12, v20, 3, v12
    v_lshl_add_u32 v12, v13, 7, v12
    v_add_u32_e32 v12, s92, v12
    s_waitcnt vmcnt(16)
    v_lshlrev_b32_e32 v212, 16, v208
    v_and_b32_e32 v213, s60, v208
    v_lshlrev_b32_e32 v214, 16, v209
    v_and_b32_e32 v215, s60, v209
    v_lshlrev_b32_e32 v216, 16, v210
    v_and_b32_e32 v217, s60, v210
    v_lshlrev_b32_e32 v218, 16, v211
    v_and_b32_e32 v219, s60, v211
    v_pk_mul_f32 v[212:213], v[212:213], s[58:59]
    v_pk_mul_f32 v[214:215], v[214:215], s[58:59]
    v_pk_mul_f32 v[216:217], v[216:217], v[212:213] neg_lo:[1,0] neg_hi:[1,0]
    v_pk_mul_f32 v[218:219], v[218:219], v[214:215] neg_lo:[1,0] neg_hi:[1,0]''')
    young = 0
    for gs in range(2):
        for j in range(8):
            o(f's_waitcnt vmcnt({15 - gs*8 - j + young})')
            young += mid(gs, j)
            b = T + gs*32 + j*4
            for c in range(4): o(f'v_cvt_f32_i32_e32 v{b+c}, v{b+c}')
            o(f'v_pk_fma_f32 {rng("v", b, 2)}, {rng("v", b, 2)}, v[212:213], v[216:217]')
            o(f'v_pk_fma_f32 {rng("v", b+2, 2)}, {rng("v", b+2, 2)}, v[214:215], v[218:219]')
            o(f'v_cvt_pk_bf16_f32 v{b}, v{b}, v{b+1}')
            o(f'v_cvt_pk_bf16_f32 v{b+1}, v{b+2}, v{b+3}')
            o(f'ds_write_b64 v12, {rng("v", b, 2)} offset:{(j // 4)*4096 + (4*gs + j % 4)*16}')
    o('s_branch L_dq_out')
    o(f'''
L_dq_v:
    s_lshl_b32 s56, s51, 7
    s_add_u32 s56, s56, s49
    v_lshlrev_b32_e32 v21, 4, v13             ; h*16
    buffer_load_dwordx4 v[208:211], v21, s[36:39], s56 offen
    buffer_load_dwordx4 v[212:215], v21, s[36:39], s56 offen offset:32
    buffer_load_dwordx4 v[216:219], v21, s[40:43], s56 offen
    buffer_load_dwordx4 v[220:223], v21, s[40:43], s56 offen offset:32''')
    data_loads()
    o('''
    v_and_b32_e32 v12, 1, v20
    v_lshlrev_b32_e32 v12, 12, v12
    v_lshl_add_u32 v12, v13, 9, v12
    v_lshrrev_b32_e32 v20, 1, v20
    v_lshl_add_u32 v12, v20, 4, v12
    v_add_u32_e32 v12, s92, v12
    s_waitcnt vmcnt(16)''')
    SCU, ZRU = 224, 240
    for p in range(8):
        o(f'v_lshlrev_b32_e32 v{SCU+2*p}, 16, v{208+p}')
        o(f'v_and_b32_e32 v{SCU+2*p+1}, s60, v{208+p}')
        o(f'v_lshlrev_b32_e32 v{ZRU+2*p}, 16, v{216+p}')
        o(f'v_and_b32_e32 v{ZRU+2*p+1}, s60, v{216+p}')
        o(f'v_pk_mul_f32 {rng("v", ZRU+2*p, 2)}, {rng("v", ZRU+2*p, 2)}, {rng("v", SCU+2*p, 2)} neg_lo:[1,0] neg_hi:[1,0]')
    young = 0
    for gs in range(2):
        ob = 208 if gs == 0 else T
        for j in range(8):
            o(f's_waitcnt vmcnt({15 - gs*8 - j + young})')
            young += mid(gs, j)
            b = T + gs*32 + j*4
            ix = (j // 4)*8 + 4*gs + j % 4
            zr, sc, sel = ZRU + (ix & ~1), SCU + (ix & ~1), ix & 1
            bc = f'op_sel:[0,{sel},{sel}] op_sel_hi:[1,{sel},{sel}]'
            for c in range(4): o(f'v_cvt_f32_i32_e32 v{b+c}, v{b+c}')
            for p in range(2):
                o(f'v_pk_fma_f32 {rng("v", b+2*p, 2)}, {rng("v", b+2*p, 2)}, {rng("v", sc, 2)}, {rng("v", zr, 2)} {bc}')
            if j & 1:
                for c in range(4):
                    o(f'v_cvt_pk_bf16_f32 v{ob + 4*c + j//2}, v{b - 4 + c}, v{b + c}')
        for c in range(4):
            o(f'ds_write_b128 v12, {rng("v", ob + 4*c, 4)} offset:{1024*c + 256*gs}')
    o('L_dq_out:')
    o('s_waitcnt lgkmcnt(0)')
    for f in range(8):
        o(f'ds_read_b128 {rng("v", 20 + 4*f, 4)}, v14 offset:{1024*f}')
    for f in range(8):
        o(f's_waitcnt lgkmcnt({7 - f})')
        vv = vD1 if f < 4 else vD2
        o(f'buffer_store_dwordx4 {rng("v", 20 + 4*f, 4)}, {vv}, s[4:7], s55 offen offset:{1024*(f%4)}{STP}')
    o('L_dq_done:')

def qdma(o, idx, tag=None):
    idx = list(idx)
    if not idx: return 0
    for i in idx:
        if i % 4 == 0 or i == idx[0]:
            o(f's_add_u32 m0, s100, {(i // 4)*4096}')
            o('s_nop 0')
        so = 's22' if i < 4 else f's{60 + i // 4}'
        o(f'buffer_load_dwordx4 v{52 + i % 4}, s[8:11], {so} offen offset:{1024*(i % 4)}{POL} lds')
    return len(idx)

def qreads(o, qbs):
    for qb in qbs:
        for ks in range(4):
            o(f'ds_read_b128 {aQ(qb, ks)}, v{56 + ks} offset:{4096*qb}')

def init_work(o):
    global NINIT
    NINIT += 1
    o(f's_cmp_lg_u32 s52, 0\ns_cbranch_scc1 L_noinit{NINIT}')
    for r in range(128):
        o(f'v_accvgpr_write_b32 a{r}, 0')
    for q in range(4):
        o(f'v_mov_b32_e32 {vL[q]}, 0')
    o(f'L_noinit{NINIT}:')
NINIT = 0

def gen_core(o, cinit, tag, errs, pre_lines):
    st = OPT['st']
    c = Out()
    c(f'v_add_u32_e32 v12, {3*32768}, {vD1}')
    for f in range(16):
        if f == 12: c('s_waitcnt lgkmcnt(8)')
        c(f'ds_read_b128 {aF(f)}, v12 offset:{frag_off(f)}')
    if tag == 'a':
        c(f's_waitcnt vmcnt({OPT["nqm"]})')
        stamp(c, 3)
        c('buffer_load_dwordx2 v[18:19], v13, s[96:99], 0 offen sc1')
        nq3 = qdma(c, range(8 + OPT['nqm'], 16))
        c(f'''
        s_mov_b32 s57, {OPT['spin']}
        s_cmp_lg_u32 s93, 0
        s_cbranch_scc1 L_help
        s_waitcnt vmcnt({nq3})
L_poll:
        v_cmp_ne_u64_e32 vcc, v[60:61], v[18:19]
        s_cbranch_vccz L_ready
        v_sub_u32_e32 v20, v18, v16
        v_cmp_eq_u64_e64 s[54:55], v[62:63], v[18:19]
        v_cmp_gt_u32_e64 s[88:89], 32, v20
        v_cmp_eq_u32_e64 s[90:91], v19, v17
        s_nop 1
        s_and_b64 s[88:89], s[88:89], s[90:91]
        s_and_b64 s[88:89], s[88:89], vcc
        s_cselect_b32 s56, 1, 0
        s_cmp_gt_u32 s56, s94
        s_cbranch_scc0 L_noupg
        s_mov_b32 s94, 1
        buffer_wbl2 sc1
        s_waitcnt vmcnt(0)
        s_mov_b64 exec, 1
        buffer_store_dwordx2 v[62:63], v1, s[96:99], s53 offen sc1
        s_mov_b64 exec, -1
L_noupg:
        s_andn2_b64 s[88:89], vcc, s[54:55]
        s_cbranch_scc0 L_ready
        s_sub_u32 s57, s57, 1
        s_cbranch_scc1 L_help
        s_sleep 1
        buffer_load_dwordx2 v[18:19], v13, s[96:99], 0 offen sc1
        s_waitcnt vmcnt(0)
        s_branch L_poll
L_ready:''')
        stamp(c, 4)
        c(f's_waitcnt lgkmcnt({0 if OPT["stamp"] else 4})')
        qreads(c, [0, 1])
    c(f'''
    s_add_u32 s17, s21, 1
    s_and_b32 s17, s17, 31
    s_lshl_b32 s17, s17, 14
    s_lshl_b32 s19, s16, 13
    s_cmp_ge_u32 s16, 2
    s_cbranch_scc1 L_nok1_{tag}''')
    for grp in range(2):
        c(f's_add_u32 m0, s19, {grp*4096}')
        c('s_nop 0')
        for i in range(4):
            c(dma(grp, i))
    c(f'''
    s_add_u32 s17, s17, 16384
    s_and_b32 s17, s17, 0x7ffff
L_nok1_{tag}:''')
    for grp in range(2):
        c(f's_add_u32 m0, s19, {32768 + grp*4096}')
        c('s_nop 0')
        for i in range(4):
            c(dma(grp, i))
    c(f'''
    s_add_u32 s17, s17, 16384
    s_and_b32 s17, s17, 0x7ffff
    s_xor_b32 s19, s19, 0x10000
    v_mov_b32_e32 {vRd}, {vD1}
    s_mov_b32 s18, 15''')
    order = [(qb, kb) for qb in range(4) for kb in range(4)]
    carry = {}
    for rg, pr, tx in sm_ops(0):
        if st + rg >= 128: carry.setdefault(st + rg - 128, []).append((pr, tx))
    late = set(tx for l in carry.values() for _, tx in l)
    val, rest = {}, []
    for e in range(64):
        qb, kb = order[e // 4]; r = e % 4
        sr = vSr(kb, qb, r)
        ops = [(2*e, 0, f'v_exp_f32_e32 {sr}, {sr}'), (2*e + 1, 1, f'v_add_f32_e32 {vL[qb]}, {vL[qb]}, {sr}')]
        if e & 1:
            ops.append((2*e + 1, 2, f'v_cvt_pk_bf16_f32 {vPr(0, kb//2, qb, (kb%2)*2 + r//2)}, {vSr(kb, qb, r-1)}, {sr}'))
        for rg, pr, tx in ops:
            if tx in late: continue
            if st + rg < 64: val.setdefault(st + rg, []).append((pr, tx))
            else: rest.append((st + rg, pr, tx))
    c('s_waitcnt lgkmcnt(0)')
    for i in range(64):
        qb, kb = order[i // 4]
        if i == 32 and tag == 'a':
            c(f'''
            s_cmp_ge_u32 s16, 2
            s_cbranch_scc1 L_q2v
            s_waitcnt vmcnt(16)
            s_branch L_q2done
L_q2v:
            s_waitcnt vmcnt(8)
L_q2done:''')
            qreads(c, [2, 3])
            c('s_waitcnt lgkmcnt(4)')
        if i == 48 and tag == 'a':
            c('s_waitcnt lgkmcnt(0)')
        c(qk_mfma(kb*16 + qb*4 + i % 4, cinit))
        v = [t for _, t in sorted(val.get(i, []), key=lambda z: z[0])]
        if i < st + 2 and not v:
            v = ['s_nop 1']
        for x in v: c(x)
    if tag == 'a': stamp(c, 7)
    rest = [t for _, _, t in sorted(rest, key=lambda z: (z[0], z[1]))]
    ex = [t for t in rest if t.startswith('v_exp')]
    ot = [t for t in rest if not t.startswith('v_exp')]
    done = set()
    c('s_nop 0')
    pend = list(ot)
    for k, x in enumerate(ex):
        c(x)
        blocked = set(I(y).wr[0] for y in ex[k:])
        while pend and not (set(I(pend[0]).rd) & blocked):
            c(pend.pop(0))
    c('s_nop 0')
    for y in pend: c(y)
    c('s_waitcnt vmcnt(8)\ns_barrier')
    if tag == 'a': stamp(c, 5)
    for f in range(D):
        c(f'ds_read_b128 {aF(f)}, {vRd} offset:{frag_off(f)}')
    c(f's_waitcnt lgkmcnt({0 if OPT["stamp"] else D - 4})')
    loop = Out()
    mf, pre, mem, val, G, c2 = build_block([dict(par=0, dma=True, vm=8), dict(par=1, dma=True, vm=8)], cinit, carry)
    assert c2 == carry
    if OPT['stamp'] >= 2 and tag == 'a':
        mem[1].append('s_memtime s[84:85]')
        mem[2].append('s_memrealtime s[86:87]')
        mem[15].insert(0, 's_waitcnt lgkmcnt(0)')
        val[18].append((9, f'v_cmp_eq_u32_e32 vcc, s18, v2'))
        for k in range(4):
            val[20 + 2*k].append((9, f'v_mov_b32_e32 v244, s{84+k}'))
            val[21 + 2*k].append((9, f'v_cndmask_b32_e32 v{240+k}, v{240+k}, v244, vcc'))
    mem[G-3].append('s_sub_u32 s18, s18, 1')
    mem[G-2].append('s_cmp_lg_u32 s18, 0')
    emit_block(loop, mf, pre, mem, val, G)
    loop(f's_cbranch_scc1 L_loop_{tag}')
    loop.l, sz = align8(loop.l)
    tail = Out()
    mf, pre, mem, val, G, c3 = build_block([dict(par=0, dma=False, vm=0, next_last=True), dict(par=1, dma=False, vm=None, last=True)], cinit, carry)
    assert not c3
    if OPT['stamp'] >= 2 and tag == 'a':
        mem[1].append('s_memtime s[84:85]')
        mem[2].append('s_memrealtime s[86:87]')
        mem[15].insert(0, 's_waitcnt lgkmcnt(0)')
        for k in range(4):
            val[20 + k].append((9, f'v_writelane_b32 v{240+k}, s{84+k}, 0'))
    emit_block(tail, mf, pre, mem, val, G)
    tail.l, _ = align8(tail.l)
    lin = pre_lines + c.l + loop.l + loop.l + tail.l
    errs += check_hazards(lin, 'core' + tag) + check_waits(lin, 'core' + tag)
    o.l += c.l
    o('.p2align 6')
    o(f'L_loop_{tag}:')
    o.l += loop.l + tail.l
    return lin

def gen_main():
    errs = []
    o = Out()
    o(f'''
    s_cmp_ge_u32 s2, 256
    s_cbranch_scc1 L_end''')
    stamp(o, 0)
    if OPT['stamp']: o('s_memrealtime s[80:81]')
    o(f'''
    s_load_dwordx4 s[8:11], s[0:1], 0         ; q, qk
    s_load_dwordx4 s[32:35], s[0:1], 16
    s_load_dwordx4 s[36:39], s[0:1], 32
    s_load_dwordx4 s[12:15], s[0:1], 48
    s_load_dwordx4 s[24:27], s[0:1], 64
    s_memrealtime s[94:95]
    v_lshrrev_b32_e32 v1, 6, v0
    v_and_b32_e32 v2, 63, v0                  ; lane
    v_readfirstlane_b32 s16, v1               ; wave
    v_lshrrev_b32_e32 v3, 4, v2               ; g
    v_and_b32_e32 v7, 15, v2                  ; n
    v_lshlrev_b32_e32 {vD1}, 4, v2
    v_add_u32_e32 {vD2}, 0x1000, {vD1}
    s_and_b32 s20, s2, 7
    s_lshr_b32 s21, s2, 3
    s_lshl_b32 s22, s20, 5
    s_add_u32 s22, s22, s21
    s_lshl_b32 s22, s22, 16
    s_lshl_b32 s23, s16, 14
    s_add_u32 s22, s22, s23
    s_add_u32 s61, s22, 4096
    s_add_u32 s62, s22, 8192
    s_add_u32 s63, s22, 12288
    v_xor_b32_e32 v52, v7, v3
    v_lshlrev_b32_e32 v52, 4, v52
    v_lshl_add_u32 v52, v3, 8, v52            ; Q staging source: (lane/16)*256 + ((lane%16)^(lane/16))*16
    v_xor_b32_e32 v53, 64, v52
    v_xor_b32_e32 v54, 0x80, v52
    v_xor_b32_e32 v55, 0xc0, v52
    s_lshl_b32 s100, s16, 14
    s_add_u32 s100, s100, {2*32768}
    s_cmp_eq_u32 s16, 2
    s_cselect_b32 s100, {3*32768 + 16384}, s100
    s_cmp_eq_u32 s16, 3
    s_cselect_b32 s100, {LDS_QX}, s100
    v_xor_b32_e32 v56, v7, v3
    v_lshlrev_b32_e32 v56, 4, v56
    v_lshl_add_u32 v56, v7, 8, v56
    v_add_u32_e32 v56, s100, v56
    v_xor_b32_e32 v57, 64, v56
    v_xor_b32_e32 v58, 0x80, v56
    v_xor_b32_e32 v59, 0xc0, v56
    s_and_b32 s23, s16, 1
    s_lshl_b32 s48, s20, 20
    s_lshl_b32 s53, s23, 14
    s_add_u32 s48, s48, s53
    s_lshl_b32 s49, s20, 12                   ; head*4096
    s_lshl_b32 s54, s20, 19                   ; head*512KB
    s_lshl_b32 s55, s23, 13
    s_add_u32 s55, s55, s54
    s_mov_b32 s60, 0xffff0000
    s_mov_b32 s93, 0
    s_getreg_b32 s3, hwreg(HW_REG_XCC_ID, 0, 4)
    v_mov_b32_e32 v1, 0
    s_mov_b32 s58, 0x{CSCALE:08x}
    s_mov_b32 s59, 0x{CSCALE:08x}
    s_mov_b32 s50, 0                          ; pass
    s_mov_b32 s51, s21
    s_mov_b32 s52, 0
    s_lshl_b32 s53, s16, 13
    s_cmp_ge_u32 s16, 2
    s_waitcnt lgkmcnt(0)
    s_cbranch_scc1 L_setv
    s_mov_b32 s40, s36
    s_mov_b32 s41, s37
    s_mov_b32 s36, s34
    s_mov_b32 s37, s35
    s_mov_b32 s32, s10
    s_mov_b32 s33, s11
    s_add_u32 s53, s53, {3*32768}
    s_branch L_setdone
L_setv:
    s_mov_b32 s40, s12                        ; v_zeros
    s_mov_b32 s41, s13
    s_mov_b32 s36, s38                        ; v_scales
    s_mov_b32 s37, s39
    s_add_u32 s55, s55, {V_OFF}
    s_lshl_b32 s23, s23, 6
    s_add_u32 s49, s49, s23
L_setdone:
    s_mov_b32 s34, {8 << 20}
    s_mov_b32 s35, 0x20000
    s_mov_b32 s38, 32768
    s_mov_b32 s39, 0x20000
    s_mov_b32 s42, 32768
    s_mov_b32 s43, 0x20000
    s_mov_b32 s10, {16 << 20}
    s_mov_b32 s11, 0x20000
    s_mov_b32 s12, s14
    s_mov_b32 s13, s15
    s_mov_b32 s14, {16 << 20}
    s_mov_b32 s15, 0x20000
    s_add_u32 s4, s26, s55
    s_addc_u32 s5, s27, 0
    s_mov_b32 s6, {512 << 10}
    s_mov_b32 s7, 0x20000
    s_add_u32 s28, s26, s54
    s_addc_u32 s29, s27, 0
    s_mov_b32 s30, {V_OFF + (512 << 10)}
    s_mov_b32 s31, 0x20000
    s_mov_b32 s44, s24
    s_mov_b32 s45, s25
    s_mov_b32 s46, 256
    s_mov_b32 s47, 0x20000
    s_lshl_b32 s23, s20, 2
    s_add_u32 s23, s23, s16
    s_lshl_b32 s23, s23, 11
    s_add_u32 s23, s23, {FLAG_OFF}
    s_add_u32 s96, s26, s23
    s_addc_u32 s97, s27, 0
    s_mov_b32 s98, 2048
    s_mov_b32 s99, 0x20000
    s_lshl_b32 s23, s20, 5
    s_or_b32 s54, s21, s16
    s_cbranch_scc1 L_notag
    s_lshl_b64 s[94:95], s[94:95], 8
    s_or_b32 s94, s94, 0x80
    v_mov_b32_e32 v16, s94
    v_mov_b32_e32 v17, s95
    s_mov_b64 exec, 1
    buffer_store_dwordx2 v[16:17], v1, s[44:47], s23 offen sc1
    s_mov_b64 exec, -1
L_notag:
    s_mov_b32 s92, s53
    v_add_u32_e32 v14, s92, {vD1}''')
    stampdq(o, 3)
    dq = Out()
    gen_dequant(dq)
    o.l += dq.l
    pre = Out()
    pre(f'''
    s_cmp_lg_u32 s52, 0
    s_cbranch_scc1 L_help_next''')
    nq1 = qdma(pre, range(OPT['nqb'], 8))
    stamp(pre, 1)
    pre(f'''
    v_and_b32_e32 v13, 31, v2
    v_lshlrev_b32_e32 v13, 6, v13
    s_lshl_b32 s53, s21, 6
    s_mov_b32 s57, {OPT['spin']}
    s_waitcnt vmcnt({nq1})
L_tag:
    v_cmp_ne_u64_e32 vcc, 0, v[16:17]
    s_cbranch_vccnz L_publish
    s_sub_u32 s57, s57, 1
    s_cselect_b32 s93, 1, 0
    s_cbranch_scc1 L_nopub
    s_sleep 1
    buffer_load_dwordx2 v[16:17], v1, s[44:47], s23 offen sc1
    s_waitcnt vmcnt(0)
    s_branch L_tag
L_publish:
    v_add_u32_e32 v60, s3, v16
    v_mov_b32_e32 v61, v17
    v_add_u32_e32 v62, 16, v16
    v_mov_b32_e32 v63, v17
    s_mov_b32 s94, 0
    s_mov_b64 exec, 1
    buffer_store_dwordx2 v[60:61], v1, s[96:99], s53 offen sc1
    s_mov_b64 exec, -1
L_nopub:''')
    qdma(pre, range(8, 8 + OPT['nqm']))
    pre('s_waitcnt lgkmcnt(0)\ns_barrier')
    stamp(pre, 2)
    if OPT['stamp']: pre('s_waitcnt lgkmcnt(0)')
    o.l += pre.l
    ik, iv = dq.l.index('L_dq_v:'), dq.l.index('L_dq_out:')
    head = o.l[:o.l.index('L_dq:')]
    for path, nm in ((dq.l[:ik] + dq.l[iv:], 'dqk'), (dq.l[:11] + dq.l[ik:], 'dqv')):
        errs += check_hazards(head + path + pre.l, nm) + check_waits(head + path + pre.l, nm)
    lin = gen_core(o, False, 'a', errs, pre.l)
    ep = Out()
    ep('L_epi:')
    if OPT['stamp'] >= 2:
        ep(f'''
    s_memtime s[84:85]
    s_memrealtime s[86:87]
    s_waitcnt lgkmcnt(0)''')
        for k in range(4):
            ep(f'v_writelane_b32 v{240+k}, s{84+k}, 16')
        ep(f'''
    s_mov_b32 s88, s26
    s_mov_b32 s89, s27
    s_mov_b32 s90, 0x10000000
    s_mov_b32 s91, 0x20000
    s_lshl_b32 s101, s2, 2
    s_add_u32 s101, s101, s16
    s_lshl_b32 s101, s101, 10
    s_add_u32 s101, s101, {17 << 20}
    buffer_store_dwordx4 v[240:243], {vD1}, s[88:91], s101 offen
    s_nop 1''')
    stamp(ep, 6)
    for q in range(4): ep(f'v_mov_b32_e32 v{16+q}, {vL[q]}')
    ep('s_nop 0')
    for q in range(4): ep(f'v_permlane16_swap_b32 {vL[q]}, v{16+q}')
    for q in range(4): ep(f'v_add_f32_e32 {vL[q]}, {vL[q]}, v{16+q}')
    for q in range(4): ep(f'v_mov_b32_e32 v{16+q}, {vL[q]}')
    ep('s_nop 0')
    for q in range(4): ep(f'v_permlane32_swap_b32 {vL[q]}, v{16+q}')
    for q in range(4): ep(f'v_add_f32_e32 {vL[q]}, {vL[q]}, v{16+q}')
    ep(f'''
    s_cmp_lg_u32 s50, 0
    s_cbranch_scc1 L_store
    v_min_f32_e32 v16, {vL[0]}, {vL[1]}
    v_max_f32_e32 v17, {vL[0]}, {vL[1]}
    v_add_f32_e32 v18, {vL[0]}, {vL[1]}
    v_min3_f32 v16, v16, {vL[2]}, {vL[3]}
    v_max3_f32 v17, v17, {vL[2]}, {vL[3]}
    v_add_f32_e32 v19, {vL[2]}, {vL[3]}
    s_mov_b32 s53, 0x{f32bits(2.0**-40):08x}
    s_mov_b32 s54, 0x{f32bits(2.0**40):08x}
    v_cmp_nle_f32_e64 s[56:57], s53, v16
    v_cmp_nge_f32_e64 s[58:59], s54, v17
    v_cmp_u_f32_e32 vcc, v18, v19
    s_nop 1
    s_or_b64 s[56:57], s[56:57], s[58:59]
    s_or_b64 s[56:57], s[56:57], vcc
    s_cselect_b32 s53, 1, 0
    v_mov_b32_e32 v16, s53
    s_lshl_b32 s53, s16, 2
    s_add_u32 s53, s53, {LDS_SCR + 2048}
    v_mov_b32_e32 v17, s53
    v_mov_b32_e32 v18, {LDS_SCR + 2048}
    ds_write_b32 v17, v16
    s_waitcnt lgkmcnt(0)
    s_barrier
    ds_read_b128 v[20:23], v18
    s_waitcnt lgkmcnt(0)
    v_or_b32_e32 v20, v20, v21
    v_or3_b32 v20, v20, v22, v23
    s_nop 0
    v_readfirstlane_b32 s53, v20
    s_nop 1
    s_cmp_lg_u32 s53, {99 if OPT.get('nofb') else 0}
    s_cbranch_scc{0 if OPT.get('nofb') else 1} L_fallback
L_store:''')
    for q in range(4): ep(f'v_rcp_f32_e32 {vL[q]}, {vL[q]}')
    ep(f'''
    s_lshl_b32 s53, s16, 8
    s_add_u32 s53, s53, {LDS_SCR}
    v_lshl_add_u32 v12, v7, 2, s53
    v_lshl_add_u32 v13, v3, 4, s53''')
    for q in range(4): ep(f'ds_write_b32 v12, {vL[q]} offset:{64*q}')
    ep(f'''
    v_lshlrev_b32_e32 v14, 10, v3
    v_lshl_add_u32 v14, v7, 4, v14
    s_waitcnt lgkmcnt(0)''')
    for q in range(4): ep(f'ds_read_b128 {rng("v", 16+4*q, 4)}, v13 offset:{64*q}')
    ep('s_waitcnt lgkmcnt(0)')
    for qb in range(4):
        for r in range(4):
            b = 32 + ((qb*4 + r) % 4) * 16
            for db in range(8):
                ep(f'v_accvgpr_read_b32 v{b+db}, {aOr(qb, db, r)}')
            f = 16 + 4*qb + r
            fp, sel = f & ~1, f & 1
            for p in range(4):
                ep(f'v_pk_mul_f32 {rng("v", b+2*p, 2)}, {rng("v", b+2*p, 2)}, {rng("v", fp, 2)} op_sel:[0,{sel}] op_sel_hi:[1,{sel}]')
            for p in range(4):
                ep(f'v_cvt_pk_bf16_f32 v{b+8+p}, v{b+2*p}, v{b+2*p+1}')
            so = 's22' if qb == 0 else f's{60+qb}'
            ep(f'buffer_store_dwordx4 {rng("v", b+8, 4)}, v14, s[12:15], {so} offen offset:{256*r}')
    if OPT['stamp']:
        ep(f'''
    s_memtime s[86:87]
    s_waitcnt vmcnt(0)
    s_memtime s[84:85]
    s_memrealtime s[82:83]
    s_waitcnt lgkmcnt(0)
    s_mov_b32 s88, s26
    s_mov_b32 s89, s27
    s_mov_b32 s90, 0x10000000
    s_mov_b32 s91, 0x20000
    s_lshl_b32 s92, s2, 2
    s_add_u32 s92, s92, s16
    s_lshl_b32 s92, s92, 7
    s_add_u32 s92, s92, {16 << 20}''')
        for k in range(24):
            ep(f'v_mov_b32_e32 v{16+k}, s{64+k}')
        ep('v_mov_b32_e32 v40, 0')
        for k in range(6):
            ep(f'buffer_store_dwordx4 {rng("v", 16+4*k, 4)}, v40, s[88:91], s92 offen offset:{16*k}')
    ep('L_end:\ns_endpgm')
    errs += check_hazards(lin[-40:] + ep.l, 'epi') + check_waits(ep.l, 'epi')
    o.l += ep.l
    hp = Out()
    hp(f'''
L_help:
    s_cmp_lg_u32 s93, 0
    s_cbranch_scc1 L_help_nopub
    buffer_wbl2 sc1
    s_waitcnt vmcnt(0)
    s_mov_b64 exec, 1
    buffer_store_dwordx2 v[62:63], v1, s[96:99], s53 offen sc1
    s_mov_b64 exec, -1
L_help_nopub:
    s_lshl_b32 s92, s16, 13
    s_add_u32 s92, s92, 32768
    v_add_u32_e32 v14, s92, {vD1}
    s_mov_b32 s52, 31
    s_branch L_help_go
L_help_next:
    s_sub_u32 s52, s52, 1
    s_cmp_eq_u32 s52, 0
    s_cbranch_scc1 L_help_done
L_help_go:
    s_waitcnt vmcnt(0)
    s_add_u32 s51, s21, s52
    s_and_b32 s51, s51, 31
    s_branch L_dq
L_help_done:
    s_waitcnt vmcnt(0) lgkmcnt(0)
    s_branch L_ready''')
    o.l += hp.l
    fb = Out()
    fb(f'''
L_fallback:
    s_mov_b32 s50, 1''')
    for q in range(4): fb(f'v_mov_b32_e32 {vL[q]}, 0xff800000')
    fb('s_mov_b32 s17, 0\ns_mov_b32 s18, 32\nL_maxloop:')
    for f in range(16):
        if f == 8: fb('s_add_u32 s17, s17, 8192')
        v = vD1 if f % 8 < 4 else vD2
        fb(f'buffer_load_dwordx4 {aF(f)}, {v}, s[28:31], s17 offen offset:{1024*(f%4)} sc1')
    fb('s_waitcnt vmcnt(0)')
    for i in range(64): fb(qk_mfma(i, False))
    fb('s_nop 7')
    for kb in range(4):
        for qb in range(4):
            for r in (0, 2):
                fb(f'v_max3_f32 {vL[qb]}, {vL[qb]}, {vSr(kb, qb, r)}, {vSr(kb, qb, r+1)}')
    fb('''
    s_add_u32 s17, s17, 8192
    s_sub_u32 s18, s18, 1
    s_cmp_lg_u32 s18, 0
    s_cbranch_scc1 L_maxloop''')
    for q in range(4): fb(f'v_mov_b32_e32 v{16+q}, {vL[q]}')
    fb('s_nop 0')
    for q in range(4): fb(f'v_permlane16_swap_b32 {vL[q]}, v{16+q}')
    for q in range(4): fb(f'v_max_f32_e32 {vL[q]}, {vL[q]}, v{16+q}')
    for q in range(4): fb(f'v_mov_b32_e32 v{16+q}, {vL[q]}')
    fb('s_nop 0')
    for q in range(4): fb(f'v_permlane32_swap_b32 {vL[q]}, v{16+q}')
    for q in range(4): fb(f'v_max_f32_e32 {vL[q]}, {vL[q]}, v{16+q}')
    for q in range(4):
        for r in range(4): fb(f'v_sub_f32_e32 v{C0 + 4*q + r}, 0, {vL[q]}')
    fb(f'''
    s_lshl_b32 s17, s21, 14
    s_lshl_b32 s53, s16, 13
    s_cmp_lt_u32 s16, 2
    s_cselect_b32 s54, {3*32768}, 0
    s_add_u32 s53, s53, s54''')
    for grp in range(2):
        fb(f's_add_u32 m0, s53, {grp*4096}')
        fb('s_nop 0')
        for i in range(4): fb(dma(grp, i))
    for r in range(128): fb(f'v_accvgpr_write_b32 a{r}, 0')
    for q in range(4): fb(f'v_mov_b32_e32 {vL[q]}, 0')
    fb('s_waitcnt vmcnt(0)\ns_barrier')
    errs += check_hazards(ep.l[:70] + fb.l, 'fb') + check_waits(fb.l, 'fb')
    o.l += fb.l
    lin2 = gen_core(o, True, 'b', errs, fb.l[-150:])
    o('s_branch L_epi')
    errs += check_hazards(lin2[-40:] + ep.l, 'epi2')
    return o.l, errs

HEADER = open('cdna_kernels/' + NAME + '.s.ref').read().split('; @launch')[0]

def main():
    mn, errs = gen_main()
    for e in errs:
        print(e, file=sys.stderr)
    if errs and not OPT.get('nofb'):
        sys.exit(1)
    nm = NAME + '_kernel'
    txt = HEADER + f'; @launch grid=(256,1,1) block=(256,1,1) lds={LDS_TOTAL}\n'
    txt += '.amdgcn_target "amdgcn-amd-amdhsa--gfx950"\n.text\n'
    txt += f'.globl {nm}\n.p2align 8\n.type {nm},@function\n{nm}:\n' + '\n'.join(mn) + '\n'
    txt += f'''.section .rodata,"a"
.p2align 6
.amdhsa_kernel {nm}
  .amdhsa_next_free_vgpr 512
  .amdhsa_next_free_sgpr 102
  .amdhsa_accum_offset 256
  .amdhsa_group_segment_fixed_size 0
  .amdhsa_kernarg_size 80
  .amdhsa_user_sgpr_count 2
  .amdhsa_user_sgpr_kernarg_segment_ptr 1
  .amdhsa_system_sgpr_workgroup_id_x 1
  .amdhsa_float_denorm_mode_32 3
.end_amdhsa_kernel
'''
    open(sys.argv[1], 'w').write(txt)

main()
```

```python
import re

def regs_of(tok):
    tok = tok.strip()
    neg = tok.lstrip('-')
    if neg.startswith('abs(') and neg.endswith(')'):
        neg = neg[4:-1]
    if neg.startswith('|') and neg.endswith('|'):
        neg = neg[1:-1]
    m = re.fullmatch(r'([vas])(\d+)', neg)
    if m:
        return [(m.group(1), int(m.group(2)))]
    m = re.fullmatch(r'([vas])\[(\d+):(\d+)\]', neg)
    if m:
        return [(m.group(1), i) for i in range(int(m.group(2)), int(m.group(3)) + 1)]
    if neg in ('vcc', 'vcc_lo', 'vcc_hi'):
        return [('vcc', 0)]
    if neg == 'm0':
        return [('m0', 0)]
    if neg in ('exec', 'exec_lo', 'exec_hi'):
        return [('exec', 0)]
    return []

TRANS = ('v_exp_f32', 'v_log_f32', 'v_rcp_f32', 'v_rsq_f32', 'v_sqrt_f32', 'v_sin_f32', 'v_cos_f32')

class I:
    def __init__(self, text):
        self.text = text
        t = text.split(';')[0].strip()
        self.mn = t.split()[0]
        rest = t[len(self.mn):].strip()
        ops, depth, cur = [], 0, ''
        for ch in rest:
            if ch in '[(':
                depth += 1
            if ch in '])':
                depth -= 1
            if ch == ',' and depth == 0:
                ops.append(cur.strip()); cur = ''
            else:
                cur += ch
        if cur.strip():
            ops.append(cur.strip())
        self.mods = []
        if ops:
            parts = ops[-1].split()
            ops[-1] = parts[0]
            self.mods = parts[1:]
        self.ops = ops
        mn = re.sub(r'_(e32|e64|sdwa|dpp)$', '', self.mn)
        self.base = mn
        self.rd, self.wr = [], []
        self.kind = 'other'
        R = lambda k: regs_of(ops[k]) if k < len(ops) else []
        if mn.startswith('v_mfma'):
            self.kind = 'mfma'
            self.wr = R(0); self.A = R(1); self.B = R(2); self.C = R(3)
            self.rd = self.A + self.B + self.C
            self.passes = 8 if '32x32' in mn else 4
        elif mn.startswith('v_cmp'):
            self.kind = 'valu'
            self.wr = R(0); self.rd = R(1) + R(2)
        elif mn in ('v_readfirstlane_b32', 'v_readlane_b32'):
            self.kind = 'valu'
            self.wr = R(0); self.rd = sum((R(k) for k in range(1, len(ops))), [])
        elif mn.startswith('v_permlane') and 'swap' in mn:
            self.kind = 'valu'
            self.wr = R(0) + R(1); self.rd = R(0) + R(1)
        elif mn.startswith('v_'):
            self.kind = 'valu'
            self.wr = R(0)
            start = 1
            if mn in ('v_add_co_u32', 'v_addc_co_u32', 'v_sub_co_u32'):
                self.wr += R(1); start = 2
            self.rd = sum((R(k) for k in range(start, len(ops))), [])
            if mn in ('v_fmac_f32', 'v_dot2c_f32_bf16'):
                self.rd += R(0)
            if mn == 'v_nop':
                self.wr = []
        elif mn.startswith('ds_read') or mn.startswith('ds_bpermute') or mn.startswith('ds_swizzle'):
            self.kind = 'ds'
            self.wr = R(0); self.rd = sum((R(k) for k in range(1, len(ops))), [])
        elif mn.startswith('ds_write') or mn.startswith('ds_'):
            self.kind = 'ds'
            self.rd = sum((R(k) for k in range(0, len(ops))), [])
        elif mn.startswith('buffer_load') or mn.startswith('global_load'):
            self.kind = 'vmem'
            self.lds = ('lds' in self.mods) or ('_lds_' in mn)
            if self.lds:
                self.rd = sum((R(k) for k in range(0, len(ops))), []) + [('m0', 0)]
            else:
                self.wr = R(0); self.rd = sum((R(k) for k in range(1, len(ops))), [])
        elif mn.startswith('buffer_store') or mn.startswith('global_store') or mn.startswith('buffer_atomic') or mn.startswith('global_atomic'):
            self.kind = 'vmem'
            self.store = True
            self.rd = sum((R(k) for k in range(0, len(ops))), [])
            if mn.startswith('buffer_'):
                self.data = R(0)
            else:
                self.data = R(1)
            if 'atomic' in mn and 'sc0' in self.mods:
                self.wr = R(0)
        elif mn in ('buffer_inv', 'buffer_wbl2'):
            self.kind = 'vmem'
        elif mn.startswith('s_load') or mn in ('s_memtime', 's_memrealtime'):
            self.kind = 'smem'
            self.wr = R(0); self.rd = R(1)
        elif mn.startswith('s_cmp') or mn.startswith('s_bitcmp'):
            self.kind = 'salu'
            self.rd = R(0) + R(1)
        elif mn in ('s_waitcnt', 's_barrier', 's_nop', 's_endpgm', 's_setprio', 's_sleep', 's_branch') or mn.startswith('s_cbranch'):
            self.kind = 'ctl'
        elif mn.startswith('s_'):
            self.kind = 'salu'
            self.wr = R(0); self.rd = sum((R(k) for k in range(1, len(ops))), [])
            if 'saveexec' in mn:
                self.wr += [('exec', 0)]
        self.trans = mn in TRANS
        self.states = 1
        if mn == 's_nop':
            self.states = int(ops[0], 0) + 1

def ov(a, b):
    return bool(set(a) & set(b))

def check_hazards(lines, name=''):
    ins = [I(l) for l in lines if l.strip() and not l.strip().startswith(';') and not l.strip().endswith(':') and not l.strip().startswith('.')]
    errs = []
    n = len(ins)
    for j, c in enumerate(ins):
        dist = 0
        for i in range(j - 1, max(-1, j - 40), -1):
            p = ins[i]
            need = 0
            why = ''
            if p.kind == 'mfma':
                big = {8: 12, 4: 8}[p.passes]
                if c.kind == 'mfma':
                    if ov(p.wr, c.A + c.B):
                        need, why = big, 'mfma D -> mfma A/B'
                    if ov(p.wr, c.C):
                        if not (p.wr == c.C and p.passes == c.passes):
                            need, why = max(need, {8: 10, 4: 6}[p.passes]), 'mfma D -> mfma C partial'
                elif c.kind == 'valu':
                    if ov(p.wr, c.rd + c.wr):
                        need, why = big, 'mfma D -> valu'
                    if ov(p.C, c.wr):
                        w = {8: 7, 4: 3}[p.passes]
                        if w > need:
                            need, why = w, 'mfma C read -> valu write'
                elif c.kind in ('ds', 'vmem'):
                    if ov(p.wr, c.rd + c.wr):
                        need, why = big, 'mfma D -> mem'
            elif p.kind == 'valu':
                vw = [r for r in p.wr if r[0] in 'va']
                sw = [r for r in p.wr if r[0] in ('s', 'vcc')]
                if c.kind == 'mfma' and ov(vw, c.rd):
                    need, why = 2, 'valu -> mfma'
                if c.kind == 'valu':
                    if p.trans and not c.trans and ov(vw, c.rd):
                        need, why = max(need, 1), 'trans -> valu'
                    if c.base.startswith('v_permlane') and ov(vw, c.rd):
                        need, why = max(need, 2), 'valu -> permlane'
                    if c.mn.endswith('_dpp') and ov(vw, c.rd):
                        need, why = max(need, 2), 'valu -> dpp'
                    if c.base in ('v_readfirstlane_b32', 'v_readlane_b32') and ov(vw, c.rd):
                        need, why = max(need, 1), 'valu -> readlane'
                    if ov(sw, c.rd):
                        need, why = max(need, 2), 'valu sgpr -> valu'
                    if (p.mn.endswith('_sdwa')) and ov(vw, c.rd + c.wr):
                        need, why = max(need, 1), 'sdwa -> valu'
                if c.kind == 'vmem' and ov(sw, c.rd):
                    need, why = 5, 'valu sgpr -> vmem'
                if c.kind in ('salu',) and ov(sw, c.rd):
                    need, why = max(need, 1), 'valu sgpr -> salu (pad)'
            elif p.kind == 'salu':
                if ('m0', 0) in p.wr and c.kind == 'vmem' and getattr(c, 'lds', False):
                    need, why = 1, 'm0 -> lds dma'
            elif p.kind == 'vmem' and getattr(p, 'store', False):
                if len(p.data) >= 3 and ov(p.data, c.wr):
                    need, why = (2 if c.kind == 'valu' else 1), 'store data WAR'
            if need > dist:
                errs.append(f'{name}: hazard "{why}" need {need} have {dist}:\n   [{i}] {p.text.strip()}\n   [{j}] {c.text.strip()}')
            dist += p.states
            if dist >= 20:
                break
    return errs

def check_waits(lines, name='', lg_init=None, vm_init=None):
    ins = [I(l) for l in lines if l.strip() and not l.strip().startswith(';') and not l.strip().endswith(':') and not l.strip().startswith('.')]
    lg, vm = list(lg_init or []), list(vm_init or [])
    errs = []
    for j, c in enumerate(ins):
        if c.mn == 's_waitcnt':
            t = c.text.split(';')[0]
            m = re.search(r'vmcnt\((\d+)\)', t)
            if m:
                k = int(m.group(1))
                while len(vm) > k:
                    vm.pop(0)
            m = re.search(r'lgkmcnt\((\d+)\)', t)
            if m:
                k = int(m.group(1))
                if k > 0 and any(x[0] == 'smem' for x in lg):
                    errs.append(f'{name}: counted lgkmcnt with smem outstanding at [{j}]')
                while len(lg) > k:
                    lg.pop(0)
            continue
        touched = c.rd + c.wr
        for q in (lg, vm):
            for kind, w, txt in q:
                if ov(w, touched):
                    errs.append(f'{name}: unwaited load result touched:\n   load {txt.strip()}\n   [{j}] {c.text.strip()}')
        if c.kind == 'ds':
            lg.append(('ds', c.wr, c.text))
            if len(lg) > 15:
                lg.pop(0)
        elif c.kind == 'smem':
            lg.append(('smem', c.wr, c.text))
        elif c.kind == 'vmem':
            vm.append(('vm', c.wr, c.text))
            if len(vm) > 63:
                errs.append(f'{name}: vmcnt overflow at [{j}]')
    return errs

def isize(text):
    i = I(text)
    mn = i.mn
    lit = False
    for o in i.ops:
        if re.fullmatch(r'-?(0x[0-9a-fA-F]+|\d+)', o):
            v = int(o, 0)
            if not (-16 <= v <= 64):
                lit = True
    if i.kind in ('mfma', 'ds', 'vmem', 'smem'):
        return 8
    if i.kind == 'ctl':
        return 4
    if i.kind == 'salu':
        if mn.startswith('s_movk') or mn.startswith('s_addk') or mn.startswith('s_getreg') or mn.startswith('s_cmpk'):
            return 4
        return 8 if lit else 4
    if i.kind == 'valu':
        if mn.endswith('_e32'):
            return 8 if lit else 4
        return 8
    raise ValueError(text)

def fix_hazards(prefix, lines, name=''):
    lines = list(lines)
    isins = lambda l: l.strip() and not l.strip().startswith(';') and not l.strip().endswith(':') and not l.strip().startswith('.')
    npre = len([l for l in prefix if isins(l)])
    for _ in range(2000):
        errs = check_hazards(prefix + lines, name)
        errs = [e for e in errs if int(re.findall(r'\[(\d+)\]', e)[1]) >= npre]
        if not errs:
            return lines
        e = errs[0]
        need, have = map(int, re.search(r'need (\d+) have (\d+)', e).groups())
        j = int(re.findall(r'\[(\d+)\]', e)[1]) - npre
        pos = [k for k, l in enumerate(lines) if isins(l)][j]
        lines.insert(pos, f'    s_nop {need - have - 1}')
    raise RuntimeError('fix_hazards did not converge')
```

```python
import sys, struct, math
from asmlib import *

NAME = 'standalone__kv_cache_quant_int4_int2_kv_with_per_channel_or_per_token_scales__prompt'
OPT = dict(nb1=11, barfirst=0, nql=0, nqb=0, nqa=0, touch=1, upg=8, pol='nt', stamp=0, d=8, st=7, dma0=6, dmastep=10, spin=20000, opol='sc0_sc1', rp=0, pairbar=0)
for a in sys.argv[2:]:
    k, v = a.split('=', 1)
    OPT[k] = eval(v)

def f32bits(x):
    return struct.unpack('<I', struct.pack('<f', x))[0]

CSCALE = f32bits(128 ** -0.5 * math.log2(math.e))
V_OFF = 4 << 20
FLAG_OFF = 9 << 20
MF = 'v_mfma_f32_16x16x32_bf16'
D, RP = OPT['d'], OPT['rp']
def flags(x): return (' ' + x.replace('_', ' ')) if x else ''
POL, OPOL, SC1 = flags(OPT['pol']), flags(OPT['opol']), ' sc1'

class Out:
    def __init__(self):
        self.l = []
    def __call__(self, s):
        for x in s.strip('\n').split('\n'):
            if x.strip():
                self.l.append(x.strip() if x.strip().endswith(':') or x.startswith('.') else '    ' + x.strip())

def rng(p, b, n): return f'{p}[{b}:{b+n-1}]'
def aO(qb, db): return rng('a', (qb*8+db)*4, 4)
def aOr(qb, db, r): return f'a{(qb*8+db)*4 + r}'
def aQ(qb, ks): return rng('a', 128 + (qb*4+ks)*4, 4)
def aF(k): return rng('a', 192 + (k % 16)*4, 4)
S0, P0, C0, T0 = 16, 80, 144, 144
def vS(kb, qb): return rng('v', S0 + (kb*4+qb)*4, 4)
def vSr(kb, qb, r): return f'v{S0 + (kb*4+qb)*4 + r}'
def vP(buf, t, qb): return rng('v', P0 + buf*32 + (t*4+qb)*4, 4)
def vPr(buf, t, qb, i): return f'v{P0 + buf*32 + (t*4+qb)*4 + i}'
def vC(qb): return rng('v', C0 + qb*4, 4)
vL = ['v8', 'v9', 'v10', 'v11']
vRd, vD1, vD2 = 'v4', 'v5', 'v6'
LDS_RING = 131072
LDS_SCR = LDS_RING
LDS_QX = LDS_RING + 4096
LDS_TOTAL = LDS_QX + 16384

def frag_off(k):
    if k < 16:
        return k * 1024
    db, t = (k - 16) // 2, (k - 16) % 2
    return 16384 + t * 8192 + db * 1024

def sm_elem(buf, kb, qb, r):
    s = vSr(kb, qb, r)
    ops = [(0, 0, f'v_exp_f32_e32 {s}, {s}'), (1, 1, f'v_add_f32_e32 {vL[qb]}, {vL[qb]}, {s}')]
    if r & 1:
        ops.append((1, 2, f'v_cvt_pk_bf16_f32 {vPr(buf, kb//2, qb, (kb%2)*2 + r//2)}, {vSr(kb, qb, r-1)}, {s}'))
    return ops

def sm_ops(buf, order=None):
    order = order or [(e // 4, e % 4) for e in range(16)]
    return [(2*e + dg, pr, tx) for e in range(64) for dg, pr, tx in sm_elem(buf, order[e // 4][0], order[e // 4][1], e % 4)]

def qk_mfma(kb, qb, ks, cinit=False):
    c = (vC(qb) if cinit else '0') if ks == 0 else vS(kb, qb)
    return f'{MF} {vS(kb, qb)}, {aF(kb*4+ks)}, {aQ(qb, ks)}, {c}'

def pv_mfma(db, qb, t, buf):
    return f'{MF} {aO(qb, db)}, {vP(buf, t, qb)}, {aF(16 + db*2 + t)}, {aO(qb, db)}'

def dma(grp, i, srd='s[4:7]', so='s17'):
    v = vD1 if grp == 0 else vD2
    return f'buffer_load_dwordx4 {v}, {srd}, {so} offen offset:{1024*i}{SC1} lds'

class Block:
    def __init__(self, G, carry):
        self.G = G
        self.mf = [None] * G
        self.mem = [[] for _ in range(G)]
        self.val = [[] for _ in range(G + 140)]
        for g, lst in carry.items():
            self.val[g] += lst
        self.reads = [(4*f + RP - 4*D, (0, f)) for f in range(D)]
        self.waits = []
    def read(self, g, ident, f, off):
        self.mem[g].append(f'ds_read_b128 {aF(f)}, {vRd} offset:{off}')
        self.reads.append((g, ident))
    def finish(self):
        self.reads.sort(key=lambda r: r[0])
        ids = [r[1] for r in self.reads]
        for gw, need in self.waits:
            if gw == 0: continue
            p = max(ids.index(x) for x in need)
            assert self.reads[p][0] < gw - 1, (gw, need)
            w = len([1 for r in self.reads[p+1:] if r[0] < gw - 1])
            self.mem[gw - 1].insert(0, f's_waitcnt lgkmcnt({w})')
        return {g - self.G: self.val[g] for g in range(self.G, len(self.val)) if self.val[g]}
    def stage(self, k, par, nxt=True):
        g0 = 128 * k
        for i in range(64):
            self.mf[g0 + i] = qk_mfma(i // 16, (i // 4) % 4, i % 4)
            self.mf[g0 + 64 + i] = pv_mfma(i // 8, (i // 2) % 4, i % 2, par)
        for rg, pr, tx in sm_ops(par ^ 1):
            self.val[g0 + OPT['st'] + rg].append((pr, tx))
        for f in range(D, 32 + (D if nxt else 0)):
            g = g0 + 4*f + RP - 4*D
            if f < 32: self.read(g, (k, f), f, par*32768 + frag_off(f))
            else: self.read(g, (k + 1, f - 32), f, (par ^ 1)*32768 + frag_off(f - 32))
        for m in range(8):
            self.waits.append((g0 + 16*m, [(k, 4*m + j) for j in range(4)]))
    def gap_lines(self, g):
        v = [t for _, t in sorted(self.val[g], key=lambda z: z[0])]
        m = self.mem[g]
        if OPT.get('no_exp'): v = [t for t in v if not t.startswith('v_exp')]
        if OPT.get('no_add'): v = [t for t in v if not t.startswith('v_add')]
        if OPT.get('no_cvt'): v = [t for t in v if not t.startswith('v_cvt')]
        if OPT.get('no_lds'): m = [t for t in m if not t.startswith('ds_read')]
        if OPT.get('no_dma'): m = [t for t in m if not t.startswith('buffer_load')]
        sc = [t for t in m if t.startswith('s_')]
        return sc, [t for t in m if not t.startswith('s_')] + v
    def emit(self, o, upto=None):
        for g in range(upto if upto is not None else self.G):
            o(self.mf[g])
            sc, ve = self.gap_lines(g)
            for x in sc + ve: o(x)

def stampdq(o, k):
    if OPT.get('stampdq'):
        o(f's_memtime s[{64+2*k}:{65+2*k}]')

def stampp(o, k):
    if OPT.get('stampp'):
        o(f's_memtime s[{64+2*k}:{65+2*k}]')

def stamp(o, k):
    if OPT.get('stampp') and k in (4, 5, 7):
        return
    if OPT.get('stampdq') and k in (3, 4, 5, 7):
        return
    if OPT['stamp']:
        o(f's_memtime s[{64+2*k}:{65+2*k}]')

NINIT = 0
def init_work(o):
    global NINIT
    NINIT += 1
    o(f's_cmp_lg_u32 s52, 0\ns_cbranch_scc1 L_noinit{NINIT}')
    for r in range(128):
        o(f'v_accvgpr_write_b32 a{r}, 0')
    for q in range(4):
        o(f'v_mov_b32_e32 {vL[q]}, 0')
    o(f'L_noinit{NINIT}:')

def qdma(o, idx):
    idx = list(idx)
    for i in idx:
        if i % 4 == 0 or i == idx[0]:
            o(f's_add_u32 m0, s100, {(i // 4)*4096}')
            o('s_nop 0')
        so = 's22' if i < 4 else f's{60 + i // 4}'
        o(f'buffer_load_dwordx4 v{126 + i % 4}, s[8:11], {so} offen offset:{1024*(i % 4)}{POL} lds')
    return len(idx)

def qreads(o, qbs):
    for qb in qbs:
        for ks in range(4):
            o(f'ds_read_b128 {aQ(qb, ks)}, v{130 + ks} offset:{4096*qb}')

POLL = 'buffer_load_dwordx2 v[114:115], v118, s[96:99], 0 offen sc1'

def gen_dequant(o):
    T = T0
    NT = 4 if OPT.get('touch') else 0
    NB1 = OPT['nb1']
    def dload(x):
        gs, j = x // 8, x % 8
        so = 's53' if j < 4 else 's54'
        o(f'buffer_load_dwordx4 {rng("v", T + gs*32 + j*4, 4)}, v12, s[32:35], {so} offen offset:{512*(4*gs + j%4)}{POL}')
    def dwait(x, young):
        issued = min(16, NB1 + x)
        extra = young if x < NB1 else young - NT
        o(f's_waitcnt vmcnt({issued - x - 1 + extra})')
        if NB1 + x < 16: dload(NB1 + x)
    def data_loads():
        for x in range(NB1): dload(x)
        if OPT.get('touch'):
            o(f'''
            buffer_load_dword v122, v1, s[4:7], s55 offen sc1
            buffer_load_dword v123, v1, s[96:99], 0 offen sc1
            buffer_load_dword v124, v1, s[12:15], s22 offen sc1
            buffer_load_dword v125, v1, s[8:11], s22 offen''')
        stampdq(o, 4)
        init_work(o)
        stampdq(o, 5)
    def mid(gs, j):
        if gs == 0 and j == 0: stampdq(o, 7)
        if gs == 1 and j == 0:
            o('buffer_load_dwordx2 v[112:113], v1, s[44:47], s23 offen sc1')
            return 1
        return 0
    o(f'''
L_dq:
    s_lshl_b32 s53, s51, 15
    s_add_u32 s53, s53, s48
    s_add_u32 s54, s53, 8192
    s_lshl_b32 s55, s51, 14
    v_lshrrev_b32_e32 v13, 5, v2              ; h
    v_and_b32_e32 v120, 31, v2                 ; m
    v_lshlrev_b32_e32 v12, 12, v13
    v_lshl_add_u32 v12, v120, 4, v12           ; h*8*512 + m*16
    s_cmp_ge_u32 s16, 2
    s_cbranch_scc1 L_dq_v
    s_lshr_b32 s56, s51, 1
    s_lshl_b32 s56, s56, 8
    s_add_u32 s56, s56, s49
    v_lshlrev_b32_e32 v121, 3, v120             ; m*8
    buffer_load_dwordx2 v[208:209], v121, s[36:39], s56 offen
    buffer_load_dwordx2 v[210:211], v121, s[40:43], s56 offen''')
    data_loads()
    o(f'''
    v_lshrrev_b32_e32 v119, 1, v120
    v_lshlrev_b32_e32 v119, 8, v119
    v_and_b32_e32 v120, 1, v120
    v_lshl_add_u32 v119, v120, 3, v119
    v_lshl_add_u32 v119, v13, 7, v119
    v_add_u32_e32 v119, s92, v119               ; LDS: (m/2)*256 + (m%2)*8 + h*128
    s_waitcnt vmcnt({NB1 + NT})
    v_lshlrev_b32_e32 v212, 16, v208
    v_and_b32_e32 v213, s60, v208
    v_lshlrev_b32_e32 v214, 16, v209
    v_and_b32_e32 v215, s60, v209
    v_lshlrev_b32_e32 v216, 16, v210
    v_and_b32_e32 v217, s60, v210
    v_lshlrev_b32_e32 v218, 16, v211
    v_and_b32_e32 v219, s60, v211
    v_pk_mul_f32 v[212:213], v[212:213], s[58:59]
    v_pk_mul_f32 v[214:215], v[214:215], s[58:59]
    v_pk_mul_f32 v[216:217], v[216:217], v[212:213] neg_lo:[1,0] neg_hi:[1,0]
    v_pk_mul_f32 v[218:219], v[218:219], v[214:215] neg_lo:[1,0] neg_hi:[1,0]''')
    young = NT
    for gs in range(2):
        for j in range(8):
            dwait(gs*8 + j, young)
            young += mid(gs, j)
            b = T + gs*32 + j*4
            for c in range(4): o(f'v_cvt_f32_i32_e32 v{b+c}, v{b+c}')
            o(f'v_pk_fma_f32 {rng("v", b, 2)}, {rng("v", b, 2)}, v[212:213], v[216:217]')
            o(f'v_pk_fma_f32 {rng("v", b+2, 2)}, {rng("v", b+2, 2)}, v[214:215], v[218:219]')
            o(f'v_cvt_pk_bf16_f32 v{b}, v{b}, v{b+1}')
            o(f'v_cvt_pk_bf16_f32 v{b+1}, v{b+2}, v{b+3}')
            o(f'ds_write_b64 v119, {rng("v", b, 2)} offset:{(j // 4)*4096 + (4*gs + j % 4)*16}')
    o('s_branch L_dq_out')
    o(f'''
L_dq_v:
    s_lshl_b32 s56, s51, 7
    s_add_u32 s56, s56, s49
    v_lshlrev_b32_e32 v121, 4, v13             ; h*16
    buffer_load_dwordx4 v[208:211], v121, s[36:39], s56 offen
    buffer_load_dwordx4 v[212:215], v121, s[36:39], s56 offen offset:32
    buffer_load_dwordx4 v[216:219], v121, s[40:43], s56 offen
    buffer_load_dwordx4 v[220:223], v121, s[40:43], s56 offen offset:32''')
    data_loads()
    o(f'''
    v_and_b32_e32 v119, 1, v120
    v_lshlrev_b32_e32 v119, 12, v119
    v_lshl_add_u32 v119, v13, 9, v119
    v_lshrrev_b32_e32 v120, 1, v120
    v_lshl_add_u32 v119, v120, 4, v119
    v_add_u32_e32 v119, s92, v119               ; LDS: (m%2)*4096 + h*512 + (m/2)*16
    s_waitcnt vmcnt({NB1 + NT})''')
    SCU, ZRU = 224, 240
    for p in range(8):
        o(f'v_lshlrev_b32_e32 v{SCU+2*p}, 16, v{208+p}')
        o(f'v_and_b32_e32 v{SCU+2*p+1}, s60, v{208+p}')
        o(f'v_lshlrev_b32_e32 v{ZRU+2*p}, 16, v{216+p}')
        o(f'v_and_b32_e32 v{ZRU+2*p+1}, s60, v{216+p}')
        o(f'v_pk_mul_f32 {rng("v", ZRU+2*p, 2)}, {rng("v", ZRU+2*p, 2)}, {rng("v", SCU+2*p, 2)} neg_lo:[1,0] neg_hi:[1,0]')
    young = NT
    for gs in range(2):
        ob = 208 if gs == 0 else T
        for j in range(8):
            dwait(gs*8 + j, young)
            young += mid(gs, j)
            b = T + gs*32 + j*4
            ix = (j // 4)*8 + 4*gs + j % 4
            zr, sc, sel = ZRU + (ix & ~1), SCU + (ix & ~1), ix & 1
            bc = f'op_sel:[0,{sel},{sel}] op_sel_hi:[1,{sel},{sel}]'
            for c in range(4): o(f'v_cvt_f32_i32_e32 v{b+c}, v{b+c}')
            for p in range(2):
                o(f'v_pk_fma_f32 {rng("v", b+2*p, 2)}, {rng("v", b+2*p, 2)}, {rng("v", sc, 2)}, {rng("v", zr, 2)} {bc}')
            if j & 1:
                for c in range(4):
                    o(f'v_cvt_pk_bf16_f32 v{ob + 4*c + j//2}, v{b - 4 + c}, v{b + c}')
        for c in range(4):
            o(f'ds_write_b128 v119, {rng("v", ob + 4*c, 4)} offset:{1024*c + 256*gs}')
    o('L_dq_out:')
    o('s_waitcnt lgkmcnt(0)')
    for f in range(8):
        o(f'ds_read_b128 {rng("v", T + 32 + 4*f, 4)}, v14 offset:{1024*f}')
    for f in range(8):
        o(f's_waitcnt lgkmcnt({7 - f})')
        vv = vD1 if f < 4 else vD2
        o(f'buffer_store_dwordx4 {rng("v", T + 32 + 4*f, 4)}, {vv}, s[4:7], s55 offen offset:{1024*(f%4)}')
    o('L_dq_done:')

def lane_reduce(op, tmp):
    r = []
    for sw in ('v_permlane16_swap_b32', 'v_permlane32_swap_b32'):
        r += [f'v_mov_b32_e32 v{tmp+q}, {vL[q]}' for q in range(4)]
        r += [f'{sw} {vL[q]}, v{tmp+q}' for q in range(4)]
        r += [f'{op} {vL[q]}, {vL[q]}, v{tmp+q}' for q in range(4)]
    return r

FA = 144
def out_group(qb, r, b, packed):
    f = FA + 4*qb + r
    ops = []
    if packed:
        fp, sel = f & ~1, f & 1
        ops += [f'v_pk_mul_f32 {rng("v", b+2*p, 2)}, {rng("v", b+2*p, 2)}, {rng("v", fp, 2)} op_sel:[0,{sel}] op_sel_hi:[1,{sel}]' for p in range(4)]
    else:
        ops += [f'v_mul_f32_e32 v{b+p}, v{b+p}, v{f}' for p in range(8)]
    ops += [f'v_cvt_pk_bf16_f32 v{b+p}, v{b+2*p}, v{b+2*p+1}' for p in range(4)]
    so = 's22' if qb == 0 else f's{60+qb}'
    ops.append(f'buffer_store_dwordx4 {rng("v", b, 4)}, v14, s[12:15], {so} offen offset:{256*r}{OPOL}')
    return ops

def factor_ops():
    return ([f'v_rcp_f32_e32 {vL[q]}, {vL[q]}' for q in range(4)],
            [f'ds_write_b32 v12, {vL[q]} offset:{64*q}' for q in range(4)],
            [f'ds_read_b128 {rng("v", FA+4*q, 4)}, v13 offset:{64*q}' for q in range(4)])

EPI_ADDR = f'''
    s_lshl_b32 s53, s16, 8
    s_add_u32 s53, s53, {LDS_SCR}
    v_lshl_add_u32 v12, v7, 2, s53
    v_lshl_add_u32 v13, v3, 4, s53
    v_lshlrev_b32_e32 v14, 10, v3
    v_lshl_add_u32 v14, v7, 4, v14'''

def gen_core(o, errs, pre_lines):
    st = OPT['st']
    c = Out()
    c(f'v_add_u32_e32 v12, {3*32768}, {vD1}')
    for f in range(16):
        if f == 12: c('s_waitcnt lgkmcnt(8)')
        c(f'ds_read_b128 {aF(f)}, v12 offset:{frag_off(f)}')
    def check(tag):
        c(f'''
L_chk{tag}:
        v_cmp_eq_u64_e32 vcc, v[116:117], v[114:115]
        s_mov_b32 s95, {tag}
        s_andn2_b32 s56, s101, vcc_lo
        s_cbranch_scc1 L_pollslow
L_ok{tag}:''')
    c(f'''
    s_add_u32 s17, s21, 1
    s_and_b32 s17, s17, 31
    s_lshl_b32 s101, 1, s17
    s_cmp_lt_u32 s16, 2
    s_cselect_b32 s101, s101, 0
    s_lshl_b32 s17, s17, 14
    s_lshl_b32 s19, s16, 13
    s_mov_b32 s57, {OPT['spin']}
    v_mov_b32_e32 {vRd}, {vD1}
    s_mov_b32 s18, 15''')
    def first_dma():
        c('s_cmp_ge_u32 s16, 2\ns_cbranch_scc1 L_nok1')
        for grp in range(2):
            c(f's_add_u32 m0, s19, {grp*4096}\ns_nop 0')
            for i in range(4): c(dma(grp, i))
        c('s_add_u32 s17, s17, 16384\ns_and_b32 s17, s17, 0x7ffff\nL_nok1:\ns_mov_b32 s101, -1')
    def second_dma():
        for grp in range(2):
            c(f's_add_u32 m0, s19, {32768 + grp*4096}\ns_nop 0')
            for i in range(4): c(dma(grp, i))
        c('''
        s_add_u32 s17, s17, 16384
        s_and_b32 s17, s17, 0x7ffff
        s_xor_b32 s19, s19, 0x10000''')
    def wait_typed(n, tag):
        c(f'''
        s_cmp_ge_u32 s16, 2
        s_cbranch_scc1 L_wv{tag}
        s_waitcnt vmcnt({n + 8})
        s_branch L_wd{tag}
L_wv{tag}:
        s_waitcnt vmcnt({n})
L_wd{tag}:''')
    carry = {}
    for rg, pr, tx in sm_ops(0):
        if st + rg >= 128: carry.setdefault(st + rg - 128, []).append((pr, tx))
    late = set(tx for l in carry.values() for _, tx in l)
    for qb in range(4):
        if qb == 0:
            c(f's_waitcnt vmcnt({13 - OPT["nql"]})')
            stamp(c, 3)
        elif qb == 1:
            c('s_waitcnt vmcnt(8)')
        else:
            wait_typed(4 * (3 - qb), qb)
        if qb == 0: c(f's_waitcnt lgkmcnt({0 if OPT["stamp"] else 8})')
        qreads(c, [qb])
        if qb == 1:
            check(1)
            stamp(c, 4)
            first_dma()
        if qb == 3:
            c(POLL)
        if qb == 0:
            qdma(c, range(16 - OPT['nql'], 16))
        c('s_waitcnt lgkmcnt(0)')
        ex = [(kb, r) for kb in range(4) for r in range(4)]
        pend = []
        for i in range(16):
            c(qk_mfma(i // 4, qb, i % 4))
            if pend:
                for x in pend: c(x)
                pend = []
            elif ex and 4*ex[0][0] + 3 + 4 <= i:
                kb, r = ex.pop(0)
                ops = [tx for _, _, tx in sm_elem(0, kb, qb, r)]
                c(ops[0]); pend = ops[1:]
        for kb, r in ex:
            ops = [tx for _, _, tx in sm_elem(0, kb, qb, r) if tx not in late]
            if ops and ops[0].startswith('v_exp'):
                c(ops[0]); ops = ops[1:]
            for x in pend: c(x)
            pend = ops
        for x in pend: c(x)
    stamp(c, 7)
    c('s_waitcnt vmcnt(0)')
    check(2)
    c('s_barrier')
    for f in range(D):
        c(f'ds_read_b128 {aF(f)}, {vRd} offset:{frag_off(f)}')
    second_dma()
    c(EPI_ADDR)
    stamp(c, 5)
    c(f's_waitcnt lgkmcnt({0 if OPT["stamp"] else D - 4})')
    c.l = fix_hazards(pre_lines, c.l, 'start')
    B = Block(256, carry)
    B.stage(0, 0); B.stage(1, 1)
    B.waits.append((256, [(2, j) for j in range(4)]))
    bars = [(256, 0)] if OPT['pairbar'] else [(128, 8), (256, 8)]
    for ge, vm in bars:
        gb = ge + RP - 4*D - 1
        B.mem[gb] += [f's_waitcnt vmcnt({vm})', 's_barrier']
    B.val[256 + RP - 4*D - 1].append((5, f'v_xor_b32_e32 {vRd}, 0x10000, {vRd}'))
    for j in range(16):
        g = OPT['dma0'] + OPT['dmastep'] * j if OPT['pairbar'] else 128*(j // 8) + OPT['dma0'] + 12*(j % 8)
        if j % 4 == 0:
            B.mem[g - 1].append(f's_add_u32 m0, s19, {(j // 8)*32768 + ((j // 4) % 2)*4096}')
        B.mem[g].append(dma((j // 4) % 2, j % 4))
        if j % 8 == 7:
            B.mem[g + 1].append('s_add_u32 s17, s17, 16384')
            B.mem[g + 2].append('s_and_b32 s17, s17, 0x7ffff')
        if j == 15:
            B.mem[g + 3].append('s_xor_b32 s19, s19, 0x10000')
    if OPT['stamp'] >= 2:
        B.mem[1].append('s_memtime s[84:85]')
        B.mem[2].append('s_memrealtime s[86:87]')
        B.mem[14].insert(0, 's_waitcnt lgkmcnt(0)')
        B.val[18].append((9, f'v_cmp_eq_u32_e32 vcc, s18, v2'))
        for k in range(4):
            B.val[20 + 2*k].append((9, f'v_mov_b32_e32 v244, s{84+k}'))
            B.val[21 + 2*k].append((9, f'v_cndmask_b32_e32 v{240+k}, v{240+k}, v244, vcc'))
    B.mem[253].append('s_sub_u32 s18, s18, 1')
    B.mem[254].append('s_cmp_lg_u32 s18, 0')
    assert B.finish() == carry
    loop = Out()
    B.emit(loop, 255)
    loop(B.mf[255])
    sc, head = B.gap_lines(255)
    for x in sc: loop(x)
    loop('s_cbranch_scc1 L_loop')
    E = Block(192, carry)
    E.stage(0, 0, nxt=False)
    for j in range(16):
        E.read(72 + 4*j + RP, (1, 16 + j), 16 + j, 32768 + frag_off(16 + j))
    if not OPT['pairbar']:
        E.mem[70 + RP] += ['s_waitcnt vmcnt(0)', 's_barrier']
    for i in range(64):
        E.mf[128 + i] = pv_mfma((i % 16) // 2, i // 16, i % 2, 1)
    for m in range(4):
        E.waits.append((128 + 4*m, [(1, 16 + 4*m + j) for j in range(4)]))
    if OPT['stamp'] >= 2:
        E.mem[1].append('s_memtime s[84:85]')
        E.mem[2].append('s_memrealtime s[86:87]')
        E.mem[14].insert(0, 's_waitcnt lgkmcnt(0)')
        for k in range(4):
            E.val[20 + k].append((9, f'v_writelane_b32 v{240+k}, s{84+k}, 0'))
    assert not E.finish()
    rc, dw, dr = factor_ops()
    seq = [(0, x) for x in lane_reduce('v_add_f32_e32', 32)]
    seq += [(0, x) for x in [
        f'v_min_f32_e32 v36, {vL[0]}, {vL[1]}', f'v_max_f32_e32 v37, {vL[0]}, {vL[1]}', f'v_add_f32_e32 v38, {vL[0]}, {vL[1]}',
        f'v_min3_f32 v36, v36, {vL[2]}, {vL[3]}', f'v_max3_f32 v37, v37, {vL[2]}, {vL[3]}', f'v_add_f32_e32 v39, {vL[2]}, {vL[3]}']]
    seq += [(0, x) for x in rc]
    seq += [(0, 'v_cmp_nle_f32_e64 s[56:57], s54, v36'), (0, 'v_cmp_nge_f32_e64 s[58:59], s55, v37'), (0, 'v_cmp_u_f32_e32 vcc, v38, v39')]
    seq += [(0, x) for x in dw] + [(0, 's_or_b64 s[56:57], s[56:57], s[58:59]'), (0, 's_waitcnt lgkmcnt(0)')] + [(0, x) for x in dr]
    seq += [(0, 's_or_b64 s[56:57], s[56:57], vcc'), (0, f's_cbranch_scc{1 if not OPT.get("nofb") else 0} L_fallback' if not OPT.get('nofb') else 's_nop 0')]
    E.mem[128].append(f's_mov_b32 s54, 0x{f32bits(2.0**-60):08x}')
    E.mem[129].append(f's_mov_b32 s55, 0x{f32bits(2.0**60):08x}')
    groups = []
    for qb in range(4):
        for r in range(4):
            b = 160 + ((qb*4 + r) % 8) * 8
            groups.append((qb, r, b))
    after = []
    g = 128 + st + 2
    def place(ops):
        nonlocal g
        used = 0
        for k, (eg, x) in enumerate(ops):
            if x.startswith('s_'):
                if used:
                    g += 1; used = 0
                if g >= 192: return ops[k:]
                E.mem[g].append(x); g += 1
                continue
            cost = 2 if (x.startswith('v_rcp') or x.startswith('buffer_')) else 1
            if used + cost > 2 or (used and not x.startswith('v_')):
                g += 1; used = 0
            if eg > g:
                g = eg; used = 0
            if g >= 192: return ops[k:]
            E.val[g].append((20 + k, x)); used += cost
        if used: g += 1
        return []
    left = place(seq)
    assert not left
    first = True
    for qb, r, b in groups:
        rd = [(128 + 16*qb + 20, f'v_accvgpr_read_b32 v{b+db}, {aOr(qb, db, r)}') for db in range(8)]
        if left or g >= 190:
            left += rd + [(0, x) for x in out_group(qb, r, b, True)]
            continue
        ops = rd + ([(0, 's_waitcnt lgkmcnt(0)')] if first else []) + [(0, x) for x in out_group(qb, r, b, False)]
        first = False
        left = place(ops)
    tail = Out()
    for x in head: tail(x)
    E.emit(tail)
    stamp(tail, 6)
    tail('s_nop 7')
    for _, x in left: tail(x)
    lin = pre_lines + c.l + loop.l + ['    ' + x for x in head] + loop.l + tail.l
    errs += check_hazards(lin, 'core') + check_waits(lin, 'core')
    o.l += c.l
    o('s_branch L_loop_in')
    o('.p2align 6')
    o('L_loop:')
    for x in head: o(x)
    o('L_loop_in:')
    o.l += loop.l + tail.l

def gen_main():
    errs = []
    o = Out()
    o('s_cmp_ge_u32 s2, 256\ns_cbranch_scc1 L_end')
    stamp(o, 0)
    if OPT['stamp']: o('s_memrealtime s[80:81]')
    o(f'''
    s_load_dwordx4 s[8:11], s[0:1], 0         ; q, qk
    s_load_dwordx4 s[32:35], s[0:1], 16
    s_load_dwordx4 s[36:39], s[0:1], 32       ; k_zeros, v_scales
    s_load_dwordx4 s[12:15], s[0:1], 48       ; v_zeros, out
    s_load_dwordx4 s[24:27], s[0:1], 64
    s_memrealtime s[94:95]
    v_lshrrev_b32_e32 v1, 6, v0
    v_and_b32_e32 v2, 63, v0                  ; lane
    v_readfirstlane_b32 s16, v1               ; wave
    v_lshrrev_b32_e32 v3, 4, v2               ; g
    v_and_b32_e32 v7, 15, v2                  ; n
    v_lshlrev_b32_e32 {vD1}, 4, v2
    v_add_u32_e32 {vD2}, 0x1000, {vD1}
    s_and_b32 s20, s2, 7
    s_lshr_b32 s21, s2, 3
    s_lshl_b32 s22, s20, 5
    s_add_u32 s22, s22, s21
    s_lshl_b32 s22, s22, 16
    s_lshl_b32 s23, s16, 14
    s_add_u32 s22, s22, s23
    s_add_u32 s61, s22, 4096
    s_add_u32 s62, s22, 8192
    s_add_u32 s63, s22, 12288
    v_lshlrev_b32_e32 v118, 7, v2
    v_xor_b32_e32 v126, v7, v3
    v_lshlrev_b32_e32 v126, 4, v126
    v_lshl_add_u32 v130, v7, 8, v126
    v_lshl_add_u32 v126, v3, 8, v126            ; Q staging source: (lane/16)*256 + ((lane%16)^(lane/16))*16
    v_xor_b32_e32 v127, 64, v126
    v_xor_b32_e32 v128, 0x80, v126
    v_xor_b32_e32 v129, 0xc0, v126
    s_lshl_b32 s100, s16, 14
    s_add_u32 s100, s100, {2*32768}
    s_cmp_eq_u32 s16, 2
    s_cselect_b32 s100, {3*32768 + 16384}, s100
    s_cmp_eq_u32 s16, 3
    s_cselect_b32 s100, {LDS_QX}, s100
    v_add_u32_e32 v130, s100, v130
    v_xor_b32_e32 v131, 64, v130
    v_xor_b32_e32 v132, 0x80, v130
    v_xor_b32_e32 v133, 0xc0, v130
    s_and_b32 s23, s16, 1
    s_lshl_b32 s48, s20, 20
    s_lshl_b32 s53, s23, 14
    s_add_u32 s48, s48, s53
    s_lshl_b32 s49, s20, 12                   ; head*4096
    s_lshl_b32 s54, s20, 19                   ; head*512KB
    s_lshl_b32 s55, s23, 13
    s_add_u32 s55, s55, s54
    s_mov_b32 s60, 0xffff0000
    s_mov_b32 s93, 0
    s_getreg_b32 s3, hwreg(HW_REG_XCC_ID, 0, 4)
    v_mov_b32_e32 v1, 0
    s_mov_b32 s58, 0x{CSCALE:08x}
    s_mov_b32 s59, 0x{CSCALE:08x}
    s_mov_b32 s51, s21
    s_mov_b32 s52, 0
    s_lshl_b32 s92, s16, 13
    s_mov_b32 s6, {512 << 10}
    s_mov_b32 s7, 0x20000
    s_mov_b32 s30, {V_OFF + (512 << 10)}
    s_mov_b32 s31, 0x20000
    s_mov_b32 s42, 32768
    s_mov_b32 s43, 0x20000
    s_mov_b32 s46, 256
    s_mov_b32 s47, 0x20000
    s_mov_b32 s98, 8192
    s_mov_b32 s99, 0x20000
    s_lshl_b32 s56, s20, 2
    s_add_u32 s56, s56, s16
    s_lshl_b32 s56, s56, 13
    s_add_u32 s56, s56, {FLAG_OFF}
    s_cmp_ge_u32 s16, 2
    s_waitcnt lgkmcnt(0)
    s_cbranch_scc1 L_setv
    s_mov_b32 s40, s36
    s_mov_b32 s41, s37
    s_mov_b32 s36, s34
    s_mov_b32 s37, s35
    s_mov_b32 s32, s10
    s_mov_b32 s33, s11
    s_add_u32 s92, s92, {3*32768}
    s_branch L_setdone
L_setv:
    s_mov_b32 s40, s12                        ; v_zeros
    s_mov_b32 s41, s13
    s_mov_b32 s36, s38                        ; v_scales
    s_mov_b32 s37, s39
    s_add_u32 s55, s55, {V_OFF}
    s_lshl_b32 s23, s23, 6
    s_add_u32 s49, s49, s23
L_setdone:
    s_mov_b32 s34, {8 << 20}
    s_mov_b32 s35, 0x20000
    s_mov_b32 s38, 32768
    s_mov_b32 s39, 0x20000
    s_mov_b32 s10, {16 << 20}
    s_mov_b32 s11, 0x20000
    s_mov_b32 s12, s14
    s_mov_b32 s13, s15
    s_mov_b32 s14, {16 << 20}
    s_mov_b32 s15, 0x20000
    s_add_u32 s4, s26, s55
    s_addc_u32 s5, s27, 0
    s_add_u32 s28, s26, s54
    s_addc_u32 s29, s27, 0
    s_mov_b32 s44, s24
    s_mov_b32 s45, s25
    s_add_u32 s96, s26, s56
    s_addc_u32 s97, s27, 0
    s_lshl_b32 s23, s20, 5
    s_or_b32 s54, s21, s16
    s_cbranch_scc1 L_notag
    s_lshl_b64 s[94:95], s[94:95], 8
    s_or_b32 s94, s94, 0x80
    v_mov_b32_e32 v112, s94
    v_mov_b32_e32 v113, s95
    s_mov_b64 exec, 1
    buffer_store_dwordx2 v[112:113], v1, s[44:47], s23 offen sc1
    s_mov_b64 exec, -1
L_notag:
    v_add_u32_e32 v14, s92, {vD1}''')
    stampdq(o, 3)
    dq = Out()
    gen_dequant(dq)
    head = list(o.l)
    o.l += dq.l
    pre = Out()
    pre('s_cmp_lg_u32 s52, 0\ns_cbranch_scc1 L_help_next')
    nq1 = 0
    stamp(pre, 1)
    pre(f'''
    v_cmp_gt_u32_e32 vcc, 32, v2
    v_mov_b32_e32 v116, s3
    s_lshl_b32 s53, s21, 7
    s_mov_b32 s57, {OPT['spin']}
    s_mov_b32 s94, 0
    v_cndmask_b32_e32 v116, 16, v116, vcc
    s_waitcnt vmcnt({nq1})
L_tag:
    v_cmp_eq_u64_e32 vcc, 0, v[112:113]
    s_cbranch_vccnz L_tagslow
    v_add_u32_e32 v116, v116, v112
    v_mov_b32_e32 v117, v113
    s_mov_b64 exec, 1
    buffer_store_dwordx2 v[116:117], v1, s[96:99], s53 offen
    s_mov_b64 exec, -1
L_nopub:''')
    stampp(pre, 4)
    if OPT['barfirst']:
        qdma(pre, range(0, OPT['barfirst'] - 1))
        pre('s_barrier')
    qdma(pre, range(max(0, OPT['barfirst'] - 1), 8))
    stampp(pre, 7)
    pre(POLL)
    qdma(pre, range(8, 16 - OPT['nql']))
    stampp(pre, 5)
    if not OPT['barfirst']: pre('s_waitcnt lgkmcnt(0)\ns_barrier')
    stamp(pre, 2)
    if OPT['stamp']: pre('s_waitcnt lgkmcnt(0)')
    o.l += pre.l
    ik, iv = dq.l.index('L_dq_v:'), dq.l.index('L_dq_out:')
    for path, nm in ((dq.l[:ik] + dq.l[iv:], 'dqk'), (dq.l[:11] + dq.l[ik:], 'dqv')):
        errs += check_hazards(head + path + pre.l, nm) + check_waits(head + path + pre.l, nm)
    gen_core(o, errs, pre.l)
    o('L_fin:')
    if OPT['stamp']:
        o(f'''
    s_memtime s[86:87]
    s_waitcnt vmcnt(0)
    s_memtime s[84:85]
    s_memrealtime s[82:83]
    s_waitcnt lgkmcnt(0)
    s_mov_b32 s88, s26
    s_mov_b32 s89, s27
    s_mov_b32 s90, 0x10000000
    s_mov_b32 s91, 0x20000
    s_lshl_b32 s101, s2, 2
    s_add_u32 s101, s101, s16
    s_lshl_b32 s92, s101, 7
    s_add_u32 s92, s92, {16 << 20}
    s_lshl_b32 s101, s101, 10
    s_add_u32 s101, s101, {17 << 20}''')
        for k in range(24):
            o(f'v_mov_b32_e32 v{16+k}, s{64+k}')
        o('v_mov_b32_e32 v40, 0')
        for k in range(6):
            o(f'buffer_store_dwordx4 {rng("v", 16+4*k, 4)}, v40, s[88:91], s92 offen offset:{16*k}')
        if OPT['stamp'] >= 2:
            o(f'buffer_store_dwordx4 v[240:243], {vD1}, s[88:91], s101 offen')
    o('L_end:\ns_endpgm')
    o(f'''
L_tagslow:
    s_sub_u32 s57, s57, 1
    s_cselect_b32 s93, 1, 0
    s_cbranch_scc1 L_nopub
    s_sleep 1
    buffer_load_dwordx2 v[112:113], v1, s[44:47], s23 offen sc1
    s_waitcnt vmcnt(0)
    s_branch L_tag
L_pollslow:
    s_cmp_eq_u32 s93, 2
    s_cbranch_scc1 L_polldone
    s_cmp_eq_u32 s93, 1
    s_cbranch_scc1 L_help_nopub
    s_or_b32 s54, vcc_lo, vcc_hi
    s_andn2_b32 s54, s101, s54
    s_cselect_b32 s55, 0, 1
    s_sub_u32 s57, s57, 1
    s_cselect_b32 s56, 1, 0
    s_cmp_lt_u32 s57, {OPT['spin'] - OPT['upg'] if OPT['spin'] > OPT['upg'] else 0}
    s_cselect_b32 s55, 1, s55
    s_or_b32 s55, s55, s56
    s_cmp_gt_u32 s55, s94
    s_cbranch_scc0 L_noupg
    s_mov_b32 s94, 1
    s_add_u32 s55, s53, 4096
    buffer_wbl2 sc1
    s_waitcnt vmcnt(0)
    s_mov_b32 exec_lo, 0
    s_mov_b32 exec_hi, 1
    buffer_store_dwordx2 v[116:117], v1, s[96:99], s55 offen sc1
    s_mov_b64 exec, -1
L_noupg:
    s_cmp_lg_u32 s56, 0
    s_cbranch_scc1 L_help_nopub
    s_cmp_eq_u32 s54, 0
    s_cbranch_scc1 L_polldone
    buffer_load_dwordx2 v[114:115], v118, s[96:99], 0 offen sc1
    s_waitcnt vmcnt(0)
    s_cmp_eq_u32 s95, 1
    s_cbranch_scc1 L_chk1
    s_branch L_chk2
L_polldone:
    s_cmp_eq_u32 s95, 1
    s_cbranch_scc1 L_ok1
    s_branch L_ok2
L_help_nopub:
    s_waitcnt lgkmcnt(0)
    s_mov_b32 s92, s100
    v_add_u32_e32 v14, s92, {vD1}
    s_mov_b32 s52, 31
    s_branch L_help_go
L_help_next:
    s_sub_u32 s52, s52, 1
    s_cmp_eq_u32 s52, 0
    s_cbranch_scc1 L_help_done
L_help_go:
    s_waitcnt vmcnt(0)
    s_add_u32 s51, s21, s52
    s_and_b32 s51, s51, 31
    s_branch L_dq
L_help_done:
    s_waitcnt vmcnt(0) lgkmcnt(0)
    s_mov_b32 s93, 2
    s_branch L_polldone''')
    fb = Out()
    def kloads(off):
        for f in range(16):
            if f % 8 == 0: fb(f's_add_u32 s53, s17, {off + (f // 8)*8192}')
            v = vD1 if f % 8 < 4 else vD2
            k = f if off == 0 else 16 + 2*(f % 8) + f // 8
            fb(f'buffer_load_dwordx4 {aF(k)}, {v}, s[28:31], s53 offen offset:{1024*(f%4)} sc1')
        fb('s_waitcnt vmcnt(0)')
    fb('L_fallback:\ns_waitcnt vmcnt(0) lgkmcnt(0)\ns_nop 7\ns_nop 7')
    for q in range(4): fb(f'v_mov_b32_e32 {vL[q]}, 0xff800000')
    fb('s_mov_b32 s17, 0\nL_maxloop:')
    kloads(0)
    for i in range(64): fb(qk_mfma(i // 16, (i // 4) % 4, i % 4))
    fb('s_nop 7')
    for kb in range(4):
        for qb in range(4):
            for r in (0, 2):
                fb(f'v_max3_f32 {vL[qb]}, {vL[qb]}, {vSr(kb, qb, r)}, {vSr(kb, qb, r+1)}')
    fb(f's_add_u32 s17, s17, 16384\ns_cmp_lt_u32 s17, {512 << 10}\ns_cbranch_scc1 L_maxloop')
    for x in lane_reduce('v_max_f32_e32', 16): fb(x)
    for q in range(4):
        for r in range(4): fb(f'v_sub_f32_e32 v{C0 + 4*q + r}, 0, {vL[q]}')
    for r in range(128): fb(f'v_accvgpr_write_b32 a{r}, 0')
    for q in range(4): fb(f'v_mov_b32_e32 {vL[q]}, 0')
    fb('s_mov_b32 s17, 0\nL_p2loop:')
    kloads(0)
    for i in range(64): fb(qk_mfma(i // 16, (i // 4) % 4, i % 4, True))
    kloads(V_OFF)
    for kb in range(4):
        for qb in range(4):
            el = [sm_elem(0, kb, qb, r) for r in range(4)]
            for r in range(4): fb(el[r][0][2])
            for r in range(4):
                for _, _, tx in el[r][1:]: fb(tx)
    fb('s_nop 1')
    for i in range(64): fb(pv_mfma(i // 8, (i // 2) % 4, i % 2, 0))
    fb(f's_add_u32 s17, s17, 16384\ns_cmp_lt_u32 s17, {512 << 10}\ns_cbranch_scc1 L_p2loop')
    for x in lane_reduce('v_add_f32_e32', 16): fb(x)
    rc, dw, dr = factor_ops()
    for x in rc + ['s_nop 0'] + dw + ['s_waitcnt lgkmcnt(0)'] + dr + ['s_waitcnt lgkmcnt(0)']: fb(x)
    for qb in range(4):
        for r in range(4):
            b = 160 + ((qb*4 + r) % 8) * 8
            for db in range(8): fb(f'v_accvgpr_read_b32 v{b+db}, {aOr(qb, db, r)}')
            for x in out_group(qb, r, b, True): fb(x)
    fb('s_branch L_fin')
    i1, i2 = fb.l.index('L_maxloop:'), fb.l.index('L_p2loop:')
    errs += check_hazards(fb.l, 'fb') + check_waits(fb.l, 'fb')
    p2 = fb.l[i2:[k for k, x in enumerate(fb.l) if 'L_p2loop' in x][-1] + 1]
    errs += check_hazards(p2 + p2, 'fb2')
    o.l += fb.l
    return o.l, errs

HEADER = open('cdna_kernels/' + NAME + '.s.ref').read().split('; @launch')[0]

def main():
    mn, errs = gen_main()
    for e in errs:
        print(e, file=sys.stderr)
    if errs and not OPT.get('nofb'):
        sys.exit(1)
    nm = NAME + '_kernel'
    txt = HEADER + f'; @launch grid=(256,1,1) block=(256,1,1) lds={LDS_TOTAL}\n'
    txt += '.amdgcn_target "amdgcn-amd-amdhsa--gfx950"\n.text\n'
    txt += f'.globl {nm}\n.p2align 8\n.type {nm},@function\n{nm}:\n' + '\n'.join(mn) + '\n'
    txt += f'''.section .rodata,"a"
.p2align 6
.amdhsa_kernel {nm}
  .amdhsa_next_free_vgpr 512
  .amdhsa_next_free_sgpr 102
  .amdhsa_accum_offset 256
  .amdhsa_group_segment_fixed_size 0
  .amdhsa_kernarg_size 80
  .amdhsa_user_sgpr_count 2
  .amdhsa_user_sgpr_kernarg_segment_ptr 1
  .amdhsa_system_sgpr_workgroup_id_x 1
  .amdhsa_float_denorm_mode_32 3
.end_amdhsa_kernel
'''
    open(sys.argv[1], 'w').write(txt)

main()
```

```python
import sys, struct, math
from asmlib import *

NAME = 'standalone__kv_cache_quant_int4_int2_kv_with_per_channel_or_per_token_scales__prompt'
OPT = dict(nb1=11, barfirst=0, nql=0, nqb=0, nqa=0, touch=1, upg=8, pol='nt', stamp=0, d=8, st=7, dma0=6, dmastep=10, spin=20000, opol='sc0_sc1', rp=0, pairbar=0)
for a in sys.argv[2:]:
    k, v = a.split('=', 1)
    OPT[k] = eval(v)

def f32bits(x):
    return struct.unpack('<I', struct.pack('<f', x))[0]

CSCALE = f32bits(128 ** -0.5 * math.log2(math.e))
V_OFF = 4 << 20
FLAG_OFF = 9 << 20
MF = 'v_mfma_f32_16x16x32_bf16'
D, RP = OPT['d'], OPT['rp']
def flags(x): return (' ' + x.replace('_', ' ')) if x else ''
POL, OPOL, SC1 = flags(OPT['pol']), flags(OPT['opol']), ' sc1'

class Out:
    def __init__(self):
        self.l = []
    def __call__(self, s):
        for x in s.strip('\n').split('\n'):
            if x.strip():
                self.l.append(x.strip() if x.strip().endswith(':') or x.startswith('.') else '    ' + x.strip())

def rng(p, b, n): return f'{p}[{b}:{b+n-1}]'
def aO(qb, db): return rng('a', (qb*8+db)*4, 4)
def aOr(qb, db, r): return f'a{(qb*8+db)*4 + r}'
def aQ(qb, ks): return rng('a', 128 + (qb*4+ks)*4, 4)
def aF(k): return rng('a', 192 + (k % 16)*4, 4)
S0, P0, C0, T0 = 16, 80, 144, 144
def vS(kb, qb): return rng('v', S0 + (kb*4+qb)*4, 4)
def vSr(kb, qb, r): return f'v{S0 + (kb*4+qb)*4 + r}'
def vP(buf, t, qb): return rng('v', P0 + buf*32 + (t*4+qb)*4, 4)
def vPr(buf, t, qb, i): return f'v{P0 + buf*32 + (t*4+qb)*4 + i}'
def vC(qb): return rng('v', C0 + qb*4, 4)
vL = ['v8', 'v9', 'v10', 'v11']
vRd, vD1, vD2 = 'v4', 'v5', 'v6'
LDS_RING = 131072
LDS_SCR = LDS_RING
LDS_QX = LDS_RING + 4096
LDS_TOTAL = LDS_QX + 16384

def frag_off(k):
    if k < 16:
        return k * 1024
    db, t = (k - 16) // 2, (k - 16) % 2
    return 16384 + t * 8192 + db * 1024

def sm_elem(buf, kb, qb, r):
    s = vSr(kb, qb, r)
    ops = [(0, 0, f'v_exp_f32_e32 {s}, {s}'), (1, 1, f'v_add_f32_e32 {vL[qb]}, {vL[qb]}, {s}')]
    if r & 1:
        ops.append((1, 2, f'v_cvt_pk_bf16_f32 {vPr(buf, kb//2, qb, (kb%2)*2 + r//2)}, {vSr(kb, qb, r-1)}, {s}'))
    return ops

def sm_ops(buf, order=None):
    order = order or [(e // 4, e % 4) for e in range(16)]
    return [(2*e + dg, pr, tx) for e in range(64) for dg, pr, tx in sm_elem(buf, order[e // 4][0], order[e // 4][1], e % 4)]

def qk_mfma(kb, qb, ks, cinit=False):
    c = (vC(qb) if cinit else '0') if ks == 0 else vS(kb, qb)
    return f'{MF} {vS(kb, qb)}, {aF(kb*4+ks)}, {aQ(qb, ks)}, {c}'

def pv_mfma(db, qb, t, buf):
    return f'{MF} {aO(qb, db)}, {vP(buf, t, qb)}, {aF(16 + db*2 + t)}, {aO(qb, db)}'

def dma(grp, i, srd='s[4:7]', so='s17'):
    v = vD1 if grp == 0 else vD2
    return f'buffer_load_dwordx4 {v}, {srd}, {so} offen offset:{1024*i}{SC1} lds'

class Block:
    def __init__(self, G, carry):
        self.G = G
        self.mf = [None] * G
        self.mem = [[] for _ in range(G)]
        self.val = [[] for _ in range(G + 140)]
        for g, lst in carry.items():
            self.val[g] += lst
        self.reads = [(4*f + RP - 4*D, (0, f)) for f in range(D)]
        self.waits = []
    def read(self, g, ident, f, off):
        self.mem[g].append(f'ds_read_b128 {aF(f)}, {vRd} offset:{off}')
        self.reads.append((g, ident))
    def finish(self):
        self.reads.sort(key=lambda r: r[0])
        ids = [r[1] for r in self.reads]
        for gw, need in self.waits:
            if gw == 0: continue
            p = max(ids.index(x) for x in need)
            assert self.reads[p][0] < gw - 1, (gw, need)
            w = len([1 for r in self.reads[p+1:] if r[0] < gw - 1])
            self.mem[gw - 1].insert(0, f's_waitcnt lgkmcnt({w})')
        return {g - self.G: self.val[g] for g in range(self.G, len(self.val)) if self.val[g]}
    def stage(self, k, par, nxt=True):
        g0 = 128 * k
        for i in range(64):
            self.mf[g0 + i] = qk_mfma(i // 16, (i // 4) % 4, i % 4)
            self.mf[g0 + 64 + i] = pv_mfma(i // 8, (i // 2) % 4, i % 2, par)
        for rg, pr, tx in sm_ops(par ^ 1):
            self.val[g0 + OPT['st'] + rg].append((pr, tx))
        for f in range(D, 32 + (D if nxt else 0)):
            g = g0 + 4*f + RP - 4*D
            if f < 32: self.read(g, (k, f), f, par*32768 + frag_off(f))
            else: self.read(g, (k + 1, f - 32), f, (par ^ 1)*32768 + frag_off(f - 32))
        for m in range(8):
            self.waits.append((g0 + 16*m, [(k, 4*m + j) for j in range(4)]))
    def gap_lines(self, g):
        v = [t for _, t in sorted(self.val[g], key=lambda z: z[0])]
        m = self.mem[g]
        if OPT.get('no_exp'): v = [t for t in v if not t.startswith('v_exp')]
        if OPT.get('no_add'): v = [t for t in v if not t.startswith('v_add')]
        if OPT.get('no_cvt'): v = [t for t in v if not t.startswith('v_cvt')]
        if OPT.get('no_lds'): m = [t for t in m if not t.startswith('ds_read')]
        if OPT.get('no_dma'): m = [t for t in m if not t.startswith('buffer_load')]
        sc = [t for t in m if t.startswith('s_')]
        return sc, [t for t in m if not t.startswith('s_')] + v
    def emit(self, o, upto=None):
        for g in range(upto if upto is not None else self.G):
            o(self.mf[g])
            sc, ve = self.gap_lines(g)
            for x in sc + ve: o(x)

def stampdq(o, k):
    if OPT.get('stampdq'):
        o(f's_memtime s[{64+2*k}:{65+2*k}]')

def stampp(o, k):
    if OPT.get('stampp'):
        o(f's_memtime s[{64+2*k}:{65+2*k}]')

def stamp(o, k):
    if OPT.get('stampp') and k in (4, 5, 7):
        return
    if OPT.get('stampdq') and k in (3, 4, 5, 7):
        return
    if OPT['stamp']:
        o(f's_memtime s[{64+2*k}:{65+2*k}]')

NINIT = 0
def init_work(o):
    global NINIT
    NINIT += 1
    o(f's_cmp_lg_u32 s52, 0\ns_cbranch_scc1 L_noinit{NINIT}')
    for r in range(128):
        o(f'v_accvgpr_write_b32 a{r}, 0')
    for q in range(4):
        o(f'v_mov_b32_e32 {vL[q]}, 0')
    o(f'L_noinit{NINIT}:')

def qdma(o, idx):
    idx = list(idx)
    for i in idx:
        if i % 4 == 0 or i == idx[0]:
            o(f's_add_u32 m0, s100, {(i // 4)*4096}')
            o('s_nop 0')
        so = 's22' if i < 4 else f's{60 + i // 4}'
        o(f'buffer_load_dwordx4 v{126 + i % 4}, s[8:11], {so} offen offset:{1024*(i % 4)}{POL} lds')
    return len(idx)

def qreads(o, qbs):
    for qb in qbs:
        for ks in range(4):
            o(f'ds_read_b128 {aQ(qb, ks)}, v{130 + ks} offset:{4096*qb}')

POLL = 'buffer_load_dwordx2 v[114:115], v118, s[96:99], 0 offen sc1'

def gen_dequant(o):
    T = T0
    NT = 4 if OPT.get('touch') else 0
    NB1 = OPT['nb1']
    def dload(x):
        gs, j = x // 8, x % 8
        so = 's53' if j < 4 else 's54'
        o(f'buffer_load_dwordx4 {rng("v", T + gs*32 + j*4, 4)}, v12, s[32:35], {so} offen offset:{512*(4*gs + j%4)}{POL}')
    def dwait(x, young):
        issued = min(16, NB1 + x)
        extra = young if x < NB1 else young - NT
        o(f's_waitcnt vmcnt({issued - x - 1 + extra})')
        if NB1 + x < 16: dload(NB1 + x)
    def data_loads():
        for x in range(NB1): dload(x)
        if OPT.get('touch'):
            o(f'''
            buffer_load_dword v122, v1, s[4:7], s55 offen sc1
            buffer_load_dword v123, v1, s[96:99], 0 offen sc1
            buffer_load_dword v124, v1, s[12:15], s22 offen sc1
            buffer_load_dword v125, v1, s[8:11], s22 offen''')
        stampdq(o, 4)
        init_work(o)
        stampdq(o, 5)
    def mid(gs, j):
        if gs == 0 and j == 0: stampdq(o, 7)
        if gs == 1 and j == 0:
            o('buffer_load_dwordx2 v[112:113], v1, s[44:47], s23 offen sc1')
            return 1
        return 0
    o(f'''
L_dq:
    s_lshl_b32 s53, s51, 15
    s_add_u32 s53, s53, s48
    s_add_u32 s54, s53, 8192
    s_lshl_b32 s55, s51, 14
    v_lshrrev_b32_e32 v13, 5, v2              ; h
    v_and_b32_e32 v120, 31, v2                 ; m
    v_lshlrev_b32_e32 v12, 12, v13
    v_lshl_add_u32 v12, v120, 4, v12           ; h*8*512 + m*16
    s_cmp_ge_u32 s16, 2
    s_cbranch_scc1 L_dq_v
    s_lshr_b32 s56, s51, 1
    s_lshl_b32 s56, s56, 8
    s_add_u32 s56, s56, s49
    v_lshlrev_b32_e32 v121, 3, v120             ; m*8
    buffer_load_dwordx2 v[208:209], v121, s[36:39], s56 offen
    buffer_load_dwordx2 v[210:211], v121, s[40:43], s56 offen''')
    data_loads()
    o(f'''
    v_lshrrev_b32_e32 v119, 1, v120
    v_lshlrev_b32_e32 v119, 8, v119
    v_and_b32_e32 v120, 1, v120
    v_lshl_add_u32 v119, v120, 3, v119
    v_lshl_add_u32 v119, v13, 7, v119
    v_add_u32_e32 v119, s92, v119               ; LDS: (m/2)*256 + (m%2)*8 + h*128
    s_waitcnt vmcnt({NB1 + NT})
    v_lshlrev_b32_e32 v212, 16, v208
    v_and_b32_e32 v213, s60, v208
    v_lshlrev_b32_e32 v214, 16, v209
    v_and_b32_e32 v215, s60, v209
    v_lshlrev_b32_e32 v216, 16, v210
    v_and_b32_e32 v217, s60, v210
    v_lshlrev_b32_e32 v218, 16, v211
    v_and_b32_e32 v219, s60, v211
    v_pk_mul_f32 v[212:213], v[212:213], s[58:59]
    v_pk_mul_f32 v[214:215], v[214:215], s[58:59]
    v_pk_mul_f32 v[216:217], v[216:217], v[212:213] neg_lo:[1,0] neg_hi:[1,0]
    v_pk_mul_f32 v[218:219], v[218:219], v[214:215] neg_lo:[1,0] neg_hi:[1,0]''')
    young = NT
    for gs in range(2):
        for j in range(8):
            dwait(gs*8 + j, young)
            young += mid(gs, j)
            b = T + gs*32 + j*4
            for c in range(4): o(f'v_cvt_f32_i32_e32 v{b+c}, v{b+c}')
            o(f'v_pk_fma_f32 {rng("v", b, 2)}, {rng("v", b, 2)}, v[212:213], v[216:217]')
            o(f'v_pk_fma_f32 {rng("v", b+2, 2)}, {rng("v", b+2, 2)}, v[214:215], v[218:219]')
            o(f'v_cvt_pk_bf16_f32 v{b}, v{b}, v{b+1}')
            o(f'v_cvt_pk_bf16_f32 v{b+1}, v{b+2}, v{b+3}')
            o(f'ds_write_b64 v119, {rng("v", b, 2)} offset:{(j // 4)*4096 + (4*gs + j % 4)*16}')
    o('s_branch L_dq_out')
    o(f'''
L_dq_v:
    s_lshl_b32 s56, s51, 7
    s_add_u32 s56, s56, s49
    v_lshlrev_b32_e32 v121, 4, v13             ; h*16
    buffer_load_dwordx4 v[208:211], v121, s[36:39], s56 offen
    buffer_load_dwordx4 v[212:215], v121, s[36:39], s56 offen offset:32
    buffer_load_dwordx4 v[216:219], v121, s[40:43], s56 offen
    buffer_load_dwordx4 v[220:223], v121, s[40:43], s56 offen offset:32''')
    data_loads()
    o(f'''
    v_and_b32_e32 v119, 1, v120
    v_lshlrev_b32_e32 v119, 12, v119
    v_lshl_add_u32 v119, v13, 9, v119
    v_lshrrev_b32_e32 v120, 1, v120
    v_lshl_add_u32 v119, v120, 4, v119
    v_add_u32_e32 v119, s92, v119               ; LDS: (m%2)*4096 + h*512 + (m/2)*16
    s_waitcnt vmcnt({NB1 + NT})''')
    SCU, ZRU = 224, 240
    for p in range(8):
        o(f'v_lshlrev_b32_e32 v{SCU+2*p}, 16, v{208+p}')
        o(f'v_and_b32_e32 v{SCU+2*p+1}, s60, v{208+p}')
        o(f'v_lshlrev_b32_e32 v{ZRU+2*p}, 16, v{216+p}')
        o(f'v_and_b32_e32 v{ZRU+2*p+1}, s60, v{216+p}')
        o(f'v_pk_mul_f32 {rng("v", ZRU+2*p, 2)}, {rng("v", ZRU+2*p, 2)}, {rng("v", SCU+2*p, 2)} neg_lo:[1,0] neg_hi:[1,0]')
    young = NT
    for gs in range(2):
        ob = 208 if gs == 0 else T
        for j in range(8):
            dwait(gs*8 + j, young)
            young += mid(gs, j)
            b = T + gs*32 + j*4
            ix = (j // 4)*8 + 4*gs + j % 4
            zr, sc, sel = ZRU + (ix & ~1), SCU + (ix & ~1), ix & 1
            bc = f'op_sel:[0,{sel},{sel}] op_sel_hi:[1,{sel},{sel}]'
            for c in range(4): o(f'v_cvt_f32_i32_e32 v{b+c}, v{b+c}')
            for p in range(2):
                o(f'v_pk_fma_f32 {rng("v", b+2*p, 2)}, {rng("v", b+2*p, 2)}, {rng("v", sc, 2)}, {rng("v", zr, 2)} {bc}')
            if j & 1:
                for c in range(4):
                    o(f'v_cvt_pk_bf16_f32 v{ob + 4*c + j//2}, v{b - 4 + c}, v{b + c}')
        for c in range(4):
            o(f'ds_write_b128 v119, {rng("v", ob + 4*c, 4)} offset:{1024*c + 256*gs}')
    o('L_dq_out:')
    o('s_waitcnt lgkmcnt(0)')
    for f in range(8):
        o(f'ds_read_b128 {rng("v", T + 32 + 4*f, 4)}, v14 offset:{1024*f}')
    for f in range(8):
        o(f's_waitcnt lgkmcnt({7 - f})')
        vv = vD1 if f < 4 else vD2
        o(f'buffer_store_dwordx4 {rng("v", T + 32 + 4*f, 4)}, {vv}, s[4:7], s55 offen offset:{1024*(f%4)}')
    o('L_dq_done:')

def lane_reduce(op, tmp):
    r = []
    for sw in ('v_permlane16_swap_b32', 'v_permlane32_swap_b32'):
        r += [f'v_mov_b32_e32 v{tmp+q}, {vL[q]}' for q in range(4)]
        r += [f'{sw} {vL[q]}, v{tmp+q}' for q in range(4)]
        r += [f'{op} {vL[q]}, {vL[q]}, v{tmp+q}' for q in range(4)]
    return r

FA = 144
def out_group(qb, r, b, packed):
    f = FA + 4*qb + r
    ops = []
    if packed:
        fp, sel = f & ~1, f & 1
        ops += [f'v_pk_mul_f32 {rng("v", b+2*p, 2)}, {rng("v", b+2*p, 2)}, {rng("v", fp, 2)} op_sel:[0,{sel}] op_sel_hi:[1,{sel}]' for p in range(4)]
    else:
        ops += [f'v_mul_f32_e32 v{b+p}, v{b+p}, v{f}' for p in range(8)]
    ops += [f'v_cvt_pk_bf16_f32 v{b+p}, v{b+2*p}, v{b+2*p+1}' for p in range(4)]
    so = 's22' if qb == 0 else f's{60+qb}'
    ops.append(f'buffer_store_dwordx4 {rng("v", b, 4)}, v14, s[12:15], {so} offen offset:{256*r}{OPOL}')
    return ops

def factor_ops():
    return ([f'v_rcp_f32_e32 {vL[q]}, {vL[q]}' for q in range(4)],
            [f'ds_write_b32 v12, {vL[q]} offset:{64*q}' for q in range(4)],
            [f'ds_read_b128 {rng("v", FA+4*q, 4)}, v13 offset:{64*q}' for q in range(4)])

EPI_ADDR = f'''
    s_lshl_b32 s53, s16, 8
    s_add_u32 s53, s53, {LDS_SCR}
    v_lshl_add_u32 v12, v7, 2, s53
    v_lshl_add_u32 v13, v3, 4, s53
    v_lshlrev_b32_e32 v14, 10, v3
    v_lshl_add_u32 v14, v7, 4, v14'''

def gen_core(o, errs, pre_lines):
    st = OPT['st']
    c = Out()
    c(f'v_add_u32_e32 v12, {3*32768}, {vD1}')
    for f in range(16):
        if f == 12: c('s_waitcnt lgkmcnt(8)')
        c(f'ds_read_b128 {aF(f)}, v12 offset:{frag_off(f)}')
    def check(tag):
        c(f'''
L_chk{tag}:
        v_cmp_eq_u64_e32 vcc, v[116:117], v[114:115]
        s_mov_b32 s95, {tag}
        s_andn2_b32 s56, s101, vcc_lo
        s_cbranch_scc1 L_pollslow
L_ok{tag}:''')
    c(f'''
    s_add_u32 s17, s21, 1
    s_and_b32 s17, s17, 31
    s_lshl_b32 s101, 1, s17
    s_cmp_lt_u32 s16, 2
    s_cselect_b32 s101, s101, 0
    s_lshl_b32 s17, s17, 14
    s_lshl_b32 s19, s16, 13
    s_mov_b32 s57, {OPT['spin']}
    v_mov_b32_e32 {vRd}, {vD1}
    s_mov_b32 s18, 15''')
    def first_dma():
        c('s_cmp_ge_u32 s16, 2\ns_cbranch_scc1 L_nok1')
        for grp in range(2):
            c(f's_add_u32 m0, s19, {grp*4096}\ns_nop 0')
            for i in range(4): c(dma(grp, i))
        c('s_add_u32 s17, s17, 16384\ns_and_b32 s17, s17, 0x7ffff\nL_nok1:\ns_mov_b32 s101, -1')
    def second_dma():
        for grp in range(2):
            c(f's_add_u32 m0, s19, {32768 + grp*4096}\ns_nop 0')
            for i in range(4): c(dma(grp, i))
        c('''
        s_add_u32 s17, s17, 16384
        s_and_b32 s17, s17, 0x7ffff
        s_xor_b32 s19, s19, 0x10000''')
    def wait_typed(n, tag):
        c(f'''
        s_cmp_ge_u32 s16, 2
        s_cbranch_scc1 L_wv{tag}
        s_waitcnt vmcnt({n + 8})
        s_branch L_wd{tag}
L_wv{tag}:
        s_waitcnt vmcnt({n})
L_wd{tag}:''')
    carry = {}
    for rg, pr, tx in sm_ops(0):
        if st + rg >= 128: carry.setdefault(st + rg - 128, []).append((pr, tx))
    late = set(tx for l in carry.values() for _, tx in l)
    for qb in range(4):
        if qb == 0:
            c(f's_waitcnt vmcnt({13 - OPT["nql"]})')
            stamp(c, 3)
        elif qb == 1:
            c('s_waitcnt vmcnt(8)')
        else:
            wait_typed(4 * (3 - qb), qb)
        if qb == 0: c(f's_waitcnt lgkmcnt({0 if OPT["stamp"] else 8})')
        qreads(c, [qb])
        if qb == 1:
            check(1)
            stamp(c, 4)
            first_dma()
        if qb == 3:
            c(POLL)
        if qb == 0:
            qdma(c, range(16 - OPT['nql'], 16))
        c('s_waitcnt lgkmcnt(0)')
        ex = [(kb, r) for kb in range(4) for r in range(4)]
        pend = []
        for i in range(16):
            c(qk_mfma(i // 4, qb, i % 4))
            if pend:
                for x in pend: c(x)
                pend = []
            elif ex and 4*ex[0][0] + 3 + 4 <= i:
                kb, r = ex.pop(0)
                ops = [tx for _, _, tx in sm_elem(0, kb, qb, r)]
                c(ops[0]); pend = ops[1:]
        for kb, r in ex:
            ops = [tx for _, _, tx in sm_elem(0, kb, qb, r) if tx not in late]
            if ops and ops[0].startswith('v_exp'):
                c(ops[0]); ops = ops[1:]
            for x in pend: c(x)
            pend = ops
        for x in pend: c(x)
    stamp(c, 7)
    c('s_waitcnt vmcnt(0)')
    check(2)
    c('s_barrier')
    for f in range(D):
        c(f'ds_read_b128 {aF(f)}, {vRd} offset:{frag_off(f)}')
    second_dma()
    c(EPI_ADDR)
    stamp(c, 5)
    c(f's_waitcnt lgkmcnt({0 if OPT["stamp"] else D - 4})')
    c.l = fix_hazards(pre_lines, c.l, 'start')
    B = Block(256, carry)
    B.stage(0, 0); B.stage(1, 1)
    B.waits.append((256, [(2, j) for j in range(4)]))
    bars = [(256, 0)] if OPT['pairbar'] else [(128, 8), (256, 8)]
    for ge, vm in bars:
        gb = ge + RP - 4*D - 1
        B.mem[gb] += [f's_waitcnt vmcnt({vm})', 's_barrier']
    B.val[256 + RP - 4*D - 1].append((5, f'v_xor_b32_e32 {vRd}, 0x10000, {vRd}'))
    for j in range(16):
        g = OPT['dma0'] + OPT['dmastep'] * j if OPT['pairbar'] else 128*(j // 8) + OPT['dma0'] + 12*(j % 8)
        if j % 4 == 0:
            B.mem[g - 1].append(f's_add_u32 m0, s19, {(j // 8)*32768 + ((j // 4) % 2)*4096}')
        B.mem[g].append(dma((j // 4) % 2, j % 4))
        if j % 8 == 7:
            B.mem[g + 1].append('s_add_u32 s17, s17, 16384')
            B.mem[g + 2].append('s_and_b32 s17, s17, 0x7ffff')
        if j == 15:
            B.mem[g + 3].append('s_xor_b32 s19, s19, 0x10000')
    if OPT['stamp'] >= 2:
        B.mem[1].append('s_memtime s[84:85]')
        B.mem[2].append('s_memrealtime s[86:87]')
        B.mem[14].insert(0, 's_waitcnt lgkmcnt(0)')
        B.val[18].append((9, f'v_cmp_eq_u32_e32 vcc, s18, v2'))
        for k in range(4):
            B.val[20 + 2*k].append((9, f'v_mov_b32_e32 v244, s{84+k}'))
            B.val[21 + 2*k].append((9, f'v_cndmask_b32_e32 v{240+k}, v{240+k}, v244, vcc'))
    B.mem[253].append('s_sub_u32 s18, s18, 1')
    B.mem[254].append('s_cmp_lg_u32 s18, 0')
    assert B.finish() == carry
    loop = Out()
    B.emit(loop, 255)
    loop(B.mf[255])
    sc, head = B.gap_lines(255)
    for x in sc: loop(x)
    loop('s_cbranch_scc1 L_loop')
    E = Block(192, carry)
    E.stage(0, 0, nxt=False)
    for j in range(16):
        E.read(72 + 4*j + RP, (1, 16 + j), 16 + j, 32768 + frag_off(16 + j))
    if not OPT['pairbar']:
        E.mem[70 + RP] += ['s_waitcnt vmcnt(0)', 's_barrier']
    for i in range(64):
        E.mf[128 + i] = pv_mfma((i % 16) // 2, i // 16, i % 2, 1)
    for m in range(4):
        E.waits.append((128 + 4*m, [(1, 16 + 4*m + j) for j in range(4)]))
    if OPT['stamp'] >= 2:
        E.mem[1].append('s_memtime s[84:85]')
        E.mem[2].append('s_memrealtime s[86:87]')
        E.mem[14].insert(0, 's_waitcnt lgkmcnt(0)')
        for k in range(4):
            E.val[20 + k].append((9, f'v_writelane_b32 v{240+k}, s{84+k}, 0'))
    assert not E.finish()
    rc, dw, dr = factor_ops()
    seq = [(0, x) for x in lane_reduce('v_add_f32_e32', 32)]
    seq += [(0, x) for x in [
        f'v_min_f32_e32 v36, {vL[0]}, {vL[1]}', f'v_max_f32_e32 v37, {vL[0]}, {vL[1]}', f'v_add_f32_e32 v38, {vL[0]}, {vL[1]}',
        f'v_min3_f32 v36, v36, {vL[2]}, {vL[3]}', f'v_max3_f32 v37, v37, {vL[2]}, {vL[3]}', f'v_add_f32_e32 v39, {vL[2]}, {vL[3]}']]
    seq += [(0, x) for x in rc]
    seq += [(0, 'v_cmp_nle_f32_e64 s[56:57], s54, v36'), (0, 'v_cmp_nge_f32_e64 s[58:59], s55, v37'), (0, 'v_cmp_u_f32_e32 vcc, v38, v39')]
    seq += [(0, x) for x in dw] + [(0, 's_or_b64 s[56:57], s[56:57], s[58:59]'), (0, 's_waitcnt lgkmcnt(0)')] + [(0, x) for x in dr]
    seq += [(0, 's_or_b64 s[56:57], s[56:57], vcc'), (0, f's_cbranch_scc{1 if not OPT.get("nofb") else 0} L_fallback' if not OPT.get('nofb') else 's_nop 0')]
    E.mem[128].append(f's_mov_b32 s54, 0x{f32bits(2.0**-60):08x}')
    E.mem[129].append(f's_mov_b32 s55, 0x{f32bits(2.0**60):08x}')
    groups = []
    for qb in range(4):
        for r in range(4):
            b = 160 + ((qb*4 + r) % 8) * 8
            groups.append((qb, r, b))
    after = []
    g = 128 + st + 2
    def place(ops):
        nonlocal g
        used = 0
        for k, (eg, x) in enumerate(ops):
            if x.startswith('s_'):
                if used:
                    g += 1; used = 0
                if g >= 192: return ops[k:]
                E.mem[g].append(x); g += 1
                continue
            cost = 2 if (x.startswith('v_rcp') or x.startswith('buffer_')) else 1
            if used + cost > 2 or (used and not x.startswith('v_')):
                g += 1; used = 0
            if eg > g:
                g = eg; used = 0
            if g >= 192: return ops[k:]
            E.val[g].append((20 + k, x)); used += cost
        if used: g += 1
        return []
    left = place(seq)
    assert not left
    first = True
    for qb, r, b in groups:
        rd = [(128 + 16*qb + 20, f'v_accvgpr_read_b32 v{b+db}, {aOr(qb, db, r)}') for db in range(8)]
        if left or g >= 190:
            left += rd + [(0, x) for x in out_group(qb, r, b, True)]
            continue
        ops = rd + ([(0, 's_waitcnt lgkmcnt(0)')] if first else []) + [(0, x) for x in out_group(qb, r, b, False)]
        first = False
        left = place(ops)
    tail = Out()
    for x in head: tail(x)
    E.emit(tail)
    stamp(tail, 6)
    tail('s_nop 7')
    for _, x in left: tail(x)
    lin = pre_lines + c.l + loop.l + ['    ' + x for x in head] + loop.l + tail.l
    errs += check_hazards(lin, 'core') + check_waits(lin, 'core')
    o.l += c.l
    o('s_branch L_loop_in')
    o('.p2align 6')
    o('L_loop:')
    for x in head: o(x)
    o('L_loop_in:')
    o.l += loop.l + tail.l

def gen_main():
    errs = []
    o = Out()
    o('s_cmp_ge_u32 s2, 256\ns_cbranch_scc1 L_end')
    stamp(o, 0)
    if OPT['stamp']: o('s_memrealtime s[80:81]')
    o(f'''
    s_load_dwordx4 s[8:11], s[0:1], 0         ; q, qk
    s_load_dwordx4 s[32:35], s[0:1], 16
    s_load_dwordx4 s[36:39], s[0:1], 32       ; k_zeros, v_scales
    s_load_dwordx4 s[12:15], s[0:1], 48       ; v_zeros, out
    s_load_dwordx4 s[24:27], s[0:1], 64
    s_memrealtime s[94:95]
    v_lshrrev_b32_e32 v1, 6, v0
    v_and_b32_e32 v2, 63, v0                  ; lane
    v_readfirstlane_b32 s16, v1               ; wave
    v_lshrrev_b32_e32 v3, 4, v2               ; g
    v_and_b32_e32 v7, 15, v2                  ; n
    v_lshlrev_b32_e32 {vD1}, 4, v2
    v_add_u32_e32 {vD2}, 0x1000, {vD1}
    s_and_b32 s20, s2, 7
    s_lshr_b32 s21, s2, 3
    s_lshl_b32 s22, s20, 5
    s_add_u32 s22, s22, s21
    s_lshl_b32 s22, s22, 16
    s_lshl_b32 s23, s16, 14
    s_add_u32 s22, s22, s23
    s_add_u32 s61, s22, 4096
    s_add_u32 s62, s22, 8192
    s_add_u32 s63, s22, 12288
    v_lshlrev_b32_e32 v118, 7, v2
    v_xor_b32_e32 v126, v7, v3
    v_lshlrev_b32_e32 v126, 4, v126
    v_lshl_add_u32 v130, v7, 8, v126
    v_lshl_add_u32 v126, v3, 8, v126            ; Q staging source: (lane/16)*256 + ((lane%16)^(lane/16))*16
    v_xor_b32_e32 v127, 64, v126
    v_xor_b32_e32 v128, 0x80, v126
    v_xor_b32_e32 v129, 0xc0, v126
    s_lshl_b32 s100, s16, 14
    s_add_u32 s100, s100, {2*32768}
    s_cmp_eq_u32 s16, 2
    s_cselect_b32 s100, {3*32768 + 16384}, s100
    s_cmp_eq_u32 s16, 3
    s_cselect_b32 s100, {LDS_QX}, s100
    v_add_u32_e32 v130, s100, v130
    v_xor_b32_e32 v131, 64, v130
    v_xor_b32_e32 v132, 0x80, v130
    v_xor_b32_e32 v133, 0xc0, v130
    s_and_b32 s23, s16, 1
    s_lshl_b32 s48, s20, 20
    s_lshl_b32 s53, s23, 14
    s_add_u32 s48, s48, s53
    s_lshl_b32 s49, s20, 12                   ; head*4096
    s_lshl_b32 s54, s20, 19                   ; head*512KB
    s_lshl_b32 s55, s23, 13
    s_add_u32 s55, s55, s54
    s_mov_b32 s60, 0xffff0000
    s_mov_b32 s93, 0
    s_getreg_b32 s3, hwreg(HW_REG_XCC_ID, 0, 4)
    v_mov_b32_e32 v1, 0
    s_mov_b32 s58, 0x{CSCALE:08x}
    s_mov_b32 s59, 0x{CSCALE:08x}
    s_mov_b32 s51, s21
    s_mov_b32 s52, 0
    s_lshl_b32 s92, s16, 13
    s_mov_b32 s6, {512 << 10}
    s_mov_b32 s7, 0x20000
    s_mov_b32 s30, {V_OFF + (512 << 10)}
    s_mov_b32 s31, 0x20000
    s_mov_b32 s42, 32768
    s_mov_b32 s43, 0x20000
    s_mov_b32 s46, 256
    s_mov_b32 s47, 0x20000
    s_mov_b32 s98, 8192
    s_mov_b32 s99, 0x20000
    s_lshl_b32 s56, s20, 2
    s_add_u32 s56, s56, s16
    s_lshl_b32 s56, s56, 13
    s_add_u32 s56, s56, {FLAG_OFF}
    s_cmp_ge_u32 s16, 2
    s_waitcnt lgkmcnt(0)
    s_cbranch_scc1 L_setv
    s_mov_b32 s40, s36
    s_mov_b32 s41, s37
    s_mov_b32 s36, s34
    s_mov_b32 s37, s35
    s_mov_b32 s32, s10
    s_mov_b32 s33, s11
    s_add_u32 s92, s92, {3*32768}
    s_branch L_setdone
L_setv:
    s_mov_b32 s40, s12                        ; v_zeros
    s_mov_b32 s41, s13
    s_mov_b32 s36, s38                        ; v_scales
    s_mov_b32 s37, s39
    s_add_u32 s55, s55, {V_OFF}
    s_lshl_b32 s23, s23, 6
    s_add_u32 s49, s49, s23
L_setdone:
    s_mov_b32 s34, {8 << 20}
    s_mov_b32 s35, 0x20000
    s_mov_b32 s38, 32768
    s_mov_b32 s39, 0x20000
    s_mov_b32 s10, {16 << 20}
    s_mov_b32 s11, 0x20000
    s_mov_b32 s12, s14
    s_mov_b32 s13, s15
    s_mov_b32 s14, {16 << 20}
    s_mov_b32 s15, 0x20000
    s_add_u32 s4, s26, s55
    s_addc_u32 s5, s27, 0
    s_add_u32 s28, s26, s54
    s_addc_u32 s29, s27, 0
    s_mov_b32 s44, s24
    s_mov_b32 s45, s25
    s_add_u32 s96, s26, s56
    s_addc_u32 s97, s27, 0
    s_lshl_b32 s23, s20, 5
    s_or_b32 s54, s21, s16
    s_cbranch_scc1 L_notag
    s_lshl_b64 s[94:95], s[94:95], 8
    s_or_b32 s94, s94, 0x80
    v_mov_b32_e32 v112, s94
    v_mov_b32_e32 v113, s95
    s_mov_b64 exec, 1
    buffer_store_dwordx2 v[112:113], v1, s[44:47], s23 offen sc1
    s_mov_b64 exec, -1
L_notag:
    v_add_u32_e32 v14, s92, {vD1}''')
    stampdq(o, 3)
    dq = Out()
    gen_dequant(dq)
    head = list(o.l)
    o.l += dq.l
    pre = Out()
    pre('s_cmp_lg_u32 s52, 0\ns_cbranch_scc1 L_help_next')
    nq1 = 0
    stamp(pre, 1)
    pre(f'''
    v_cmp_gt_u32_e32 vcc, 32, v2
    v_mov_b32_e32 v116, s3
    s_lshl_b32 s53, s21, 7
    s_mov_b32 s57, {OPT['spin']}
    s_mov_b32 s94, 0
    v_cndmask_b32_e32 v116, 16, v116, vcc
    s_waitcnt vmcnt({nq1})
L_tag:
    v_cmp_eq_u64_e32 vcc, 0, v[112:113]
    s_cbranch_vccnz L_tagslow
    v_add_u32_e32 v116, v116, v112
    v_mov_b32_e32 v117, v113
    s_mov_b64 exec, 1
    buffer_store_dwordx2 v[116:117], v1, s[96:99], s53 offen
    s_mov_b64 exec, -1
L_nopub:''')
    stampp(pre, 4)
    if OPT['barfirst']:
        qdma(pre, range(0, OPT['barfirst'] - 1))
        pre('s_barrier')
    qdma(pre, range(max(0, OPT['barfirst'] - 1), 8))
    stampp(pre, 7)
    pre(POLL)
    qdma(pre, range(8, 16 - OPT['nql']))
    stampp(pre, 5)
    if not OPT['barfirst']: pre('s_waitcnt lgkmcnt(0)\ns_barrier')
    stamp(pre, 2)
    if OPT['stamp']: pre('s_waitcnt lgkmcnt(0)')
    o.l += pre.l
    ik, iv = dq.l.index('L_dq_v:'), dq.l.index('L_dq_out:')
    for path, nm in ((dq.l[:ik] + dq.l[iv:], 'dqk'), (dq.l[:11] + dq.l[ik:], 'dqv')):
        errs += check_hazards(head + path + pre.l, nm) + check_waits(head + path + pre.l, nm)
    gen_core(o, errs, pre.l)
    o('L_fin:')
    if OPT['stamp']:
        o(f'''
    s_memtime s[86:87]
    s_waitcnt vmcnt(0)
    s_memtime s[84:85]
    s_memrealtime s[82:83]
    s_waitcnt lgkmcnt(0)
    s_mov_b32 s88, s26
    s_mov_b32 s89, s27
    s_mov_b32 s90, 0x10000000
    s_mov_b32 s91, 0x20000
    s_lshl_b32 s101, s2, 2
    s_add_u32 s101, s101, s16
    s_lshl_b32 s92, s101, 7
    s_add_u32 s92, s92, {16 << 20}
    s_lshl_b32 s101, s101, 10
    s_add_u32 s101, s101, {17 << 20}''')
        if OPT.get('dbg'):
            o(f'''
    s_cmp_lg_u32 s16, 0
    s_cbranch_scc1 L_nodbg
    s_mov_b32 s53, 8
    s_cmp_eq_u32 s2, 9
    s_cbranch_scc1 L_dodbg
    s_mov_b32 s53, 40
    s_cmp_eq_u32 s2, 254
    s_cbranch_scc0 L_nodbg
L_dodbg:
    s_sub_u32 s54, s74, s64
    s_sub_u32 s55, s76, s64
    s_sub_u32 s56, s84, s64
    s_sub_u32 s57, s82, s80
    v_mov_b32_e32 v16, s54
    v_mov_b32_e32 v17, s55
    v_mov_b32_e32 v18, s56
    v_mov_b32_e32 v19, s57
    v_mov_b32_e32 v20, s80
    v_mov_b32_e32 v21, s82
    s_mov_b64 exec, 1
    buffer_store_dwordx4 v[16:19], v1, s[44:47], s53 offen
    buffer_store_dwordx2 v[20:21], v1, s[44:47], s53 offen offset:16
    s_mov_b64 exec, -1
    s_nop 1
L_nodbg:''')
        for k in range(24):
            o(f'v_mov_b32_e32 v{16+k}, s{64+k}')
        o('v_mov_b32_e32 v40, 0')
        for k in range(6):
            o(f'buffer_store_dwordx4 {rng("v", 16+4*k, 4)}, v40, s[88:91], s92 offen offset:{16*k}')
        if OPT['stamp'] >= 2:
            o(f'buffer_store_dwordx4 v[240:243], {vD1}, s[88:91], s101 offen')
    o('L_end:\ns_endpgm')
    o(f'''
L_tagslow:
    s_sub_u32 s57, s57, 1
    s_cselect_b32 s93, 1, 0
    s_cbranch_scc1 L_nopub
    s_sleep 1
    buffer_load_dwordx2 v[112:113], v1, s[44:47], s23 offen sc1
    s_waitcnt vmcnt(0)
    s_branch L_tag
L_pollslow:
    s_cmp_eq_u32 s93, 2
    s_cbranch_scc1 L_polldone
    s_cmp_eq_u32 s93, 1
    s_cbranch_scc1 L_help_nopub
    s_or_b32 s54, vcc_lo, vcc_hi
    s_andn2_b32 s54, s101, s54
    s_cselect_b32 s55, 0, 1
    s_sub_u32 s57, s57, 1
    s_cselect_b32 s56, 1, 0
    s_cmp_lt_u32 s57, {OPT['spin'] - OPT['upg'] if OPT['spin'] > OPT['upg'] else 0}
    s_cselect_b32 s55, 1, s55
    s_or_b32 s55, s55, s56
    s_cmp_gt_u32 s55, s94
    s_cbranch_scc0 L_noupg
    s_mov_b32 s94, 1
    s_add_u32 s55, s53, 4096
    buffer_wbl2 sc1
    s_waitcnt vmcnt(0)
    s_mov_b32 exec_lo, 0
    s_mov_b32 exec_hi, 1
    buffer_store_dwordx2 v[116:117], v1, s[96:99], s55 offen sc1
    s_mov_b64 exec, -1
L_noupg:
    s_cmp_lg_u32 s56, 0
    s_cbranch_scc1 L_help_nopub
    s_cmp_eq_u32 s54, 0
    s_cbranch_scc1 L_polldone
    buffer_load_dwordx2 v[114:115], v118, s[96:99], 0 offen sc1
    s_waitcnt vmcnt(0)
    s_cmp_eq_u32 s95, 1
    s_cbranch_scc1 L_chk1
    s_branch L_chk2
L_polldone:
    s_cmp_eq_u32 s95, 1
    s_cbranch_scc1 L_ok1
    s_branch L_ok2
L_help_nopub:
    s_waitcnt lgkmcnt(0)
    s_mov_b32 s92, s100
    v_add_u32_e32 v14, s92, {vD1}
    s_mov_b32 s52, 31
    s_branch L_help_go
L_help_next:
    s_sub_u32 s52, s52, 1
    s_cmp_eq_u32 s52, 0
    s_cbranch_scc1 L_help_done
L_help_go:
    s_waitcnt vmcnt(0)
    s_add_u32 s51, s21, s52
    s_and_b32 s51, s51, 31
    s_branch L_dq
L_help_done:
    s_waitcnt vmcnt(0) lgkmcnt(0)
    s_mov_b32 s93, 2
    s_branch L_polldone''')
    fb = Out()
    def kloads(off):
        for f in range(16):
            if f % 8 == 0: fb(f's_add_u32 s53, s17, {off + (f // 8)*8192}')
            v = vD1 if f % 8 < 4 else vD2
            k = f if off == 0 else 16 + 2*(f % 8) + f // 8
            fb(f'buffer_load_dwordx4 {aF(k)}, {v}, s[28:31], s53 offen offset:{1024*(f%4)} sc1')
        fb('s_waitcnt vmcnt(0)')
    fb('L_fallback:\ns_waitcnt vmcnt(0) lgkmcnt(0)\ns_nop 7\ns_nop 7')
    for q in range(4): fb(f'v_mov_b32_e32 {vL[q]}, 0xff800000')
    fb('s_mov_b32 s17, 0\nL_maxloop:')
    kloads(0)
    for i in range(64): fb(qk_mfma(i // 16, (i // 4) % 4, i % 4))
    fb('s_nop 7')
    for kb in range(4):
        for qb in range(4):
            for r in (0, 2):
                fb(f'v_max3_f32 {vL[qb]}, {vL[qb]}, {vSr(kb, qb, r)}, {vSr(kb, qb, r+1)}')
    fb(f's_add_u32 s17, s17, 16384\ns_cmp_lt_u32 s17, {512 << 10}\ns_cbranch_scc1 L_maxloop')
    for x in lane_reduce('v_max_f32_e32', 16): fb(x)
    for q in range(4):
        for r in range(4): fb(f'v_sub_f32_e32 v{C0 + 4*q + r}, 0, {vL[q]}')
    for r in range(128): fb(f'v_accvgpr_write_b32 a{r}, 0')
    for q in range(4): fb(f'v_mov_b32_e32 {vL[q]}, 0')
    fb('s_mov_b32 s17, 0\nL_p2loop:')
    kloads(0)
    for i in range(64): fb(qk_mfma(i // 16, (i // 4) % 4, i % 4, True))
    kloads(V_OFF)
    for kb in range(4):
        for qb in range(4):
            el = [sm_elem(0, kb, qb, r) for r in range(4)]
            for r in range(4): fb(el[r][0][2])
            for r in range(4):
                for _, _, tx in el[r][1:]: fb(tx)
    fb('s_nop 1')
    for i in range(64): fb(pv_mfma(i // 8, (i // 2) % 4, i % 2, 0))
    fb(f's_add_u32 s17, s17, 16384\ns_cmp_lt_u32 s17, {512 << 10}\ns_cbranch_scc1 L_p2loop')
    for x in lane_reduce('v_add_f32_e32', 16): fb(x)
    rc, dw, dr = factor_ops()
    for x in rc + ['s_nop 0'] + dw + ['s_waitcnt lgkmcnt(0)'] + dr + ['s_waitcnt lgkmcnt(0)']: fb(x)
    for qb in range(4):
        for r in range(4):
            b = 160 + ((qb*4 + r) % 8) * 8
            for db in range(8): fb(f'v_accvgpr_read_b32 v{b+db}, {aOr(qb, db, r)}')
            for x in out_group(qb, r, b, True): fb(x)
    fb('s_branch L_fin')
    i1, i2 = fb.l.index('L_maxloop:'), fb.l.index('L_p2loop:')
    errs += check_hazards(fb.l, 'fb') + check_waits(fb.l, 'fb')
    p2 = fb.l[i2:[k for k, x in enumerate(fb.l) if 'L_p2loop' in x][-1] + 1]
    errs += check_hazards(p2 + p2, 'fb2')
    o.l += fb.l
    return o.l, errs

HEADER = open('cdna_kernels/' + NAME + '.s.ref').read().split('; @launch')[0]

def main():
    mn, errs = gen_main()
    for e in errs:
        print(e, file=sys.stderr)
    if errs and not OPT.get('nofb'):
        sys.exit(1)
    nm = NAME + '_kernel'
    txt = HEADER + f'; @launch grid=(256,1,1) block=(256,1,1) lds={LDS_TOTAL}\n'
    txt += '.amdgcn_target "amdgcn-amd-amdhsa--gfx950"\n.text\n'
    txt += f'.globl {nm}\n.p2align 8\n.type {nm},@function\n{nm}:\n' + '\n'.join(mn) + '\n'
    txt += f'''.section .rodata,"a"
.p2align 6
.amdhsa_kernel {nm}
  .amdhsa_next_free_vgpr 512
  .amdhsa_next_free_sgpr 102
  .amdhsa_accum_offset 256
  .amdhsa_group_segment_fixed_size 0
  .amdhsa_kernarg_size 80
  .amdhsa_user_sgpr_count 2
  .amdhsa_user_sgpr_kernarg_segment_ptr 1
  .amdhsa_system_sgpr_workgroup_id_x 1
  .amdhsa_float_denorm_mode_32 3
.end_amdhsa_kernel
'''
    open(sys.argv[1], 'w').write(txt)

main()
```

```python
import sys, struct, math
from asmlib import *

NAME = 'standalone__kv_cache_quant_int4_int2_kv_with_per_channel_or_per_token_scales__prompt'
OPT = dict(nb1=11, barfirst=0, nql=0, nqb=0, nqa=0, touch=1, upg=8, pol='nt', stamp=0, d=8, st=7, dma0=6, dmastep=10, spin=20000, opol='sc0_sc1', rp=0, pairbar=0)
for a in sys.argv[2:]:
    k, v = a.split('=', 1)
    OPT[k] = eval(v)

def f32bits(x):
    return struct.unpack('<I', struct.pack('<f', x))[0]

CSCALE = f32bits(128 ** -0.5 * math.log2(math.e))
V_OFF = 4 << 20
FLAG_OFF = 9 << 20
MF = 'v_mfma_f32_16x16x32_bf16'
D, RP = OPT['d'], OPT['rp']
def flags(x): return (' ' + x.replace('_', ' ')) if x else ''
POL, OPOL, SC1 = flags(OPT['pol']), flags(OPT['opol']), ' sc1'

class Out:
    def __init__(self):
        self.l = []
    def __call__(self, s):
        for x in s.strip('\n').split('\n'):
            if x.strip():
                self.l.append(x.strip() if x.strip().endswith(':') or x.startswith('.') else '    ' + x.strip())

def rng(p, b, n): return f'{p}[{b}:{b+n-1}]'
def aO(qb, db): return rng('a', (qb*8+db)*4, 4)
def aOr(qb, db, r): return f'a{(qb*8+db)*4 + r}'
def aQ(qb, ks): return rng('a', 128 + (qb*4+ks)*4, 4)
def aF(k): return rng('a', 192 + (k % 16)*4, 4)
S0, P0, C0, T0 = 16, 80, 144, 144
def vS(kb, qb): return rng('v', S0 + (kb*4+qb)*4, 4)
def vSr(kb, qb, r): return f'v{S0 + (kb*4+qb)*4 + r}'
def vP(buf, t, qb): return rng('v', P0 + buf*32 + (t*4+qb)*4, 4)
def vPr(buf, t, qb, i): return f'v{P0 + buf*32 + (t*4+qb)*4 + i}'
def vC(qb): return rng('v', C0 + qb*4, 4)
vL = ['v8', 'v9', 'v10', 'v11']
vRd, vD1, vD2 = 'v4', 'v5', 'v6'
LDS_RING = 131072
LDS_SCR = LDS_RING
LDS_QX = LDS_RING + 4096
LDS_TOTAL = LDS_QX + 16384

def frag_off(k):
    if k < 16:
        return k * 1024
    db, t = (k - 16) // 2, (k - 16) % 2
    return 16384 + t * 8192 + db * 1024

def sm_elem(buf, kb, qb, r):
    s = vSr(kb, qb, r)
    ops = [(0, 0, f'v_exp_f32_e32 {s}, {s}'), (1, 1, f'v_add_f32_e32 {vL[qb]}, {vL[qb]}, {s}')]
    if r & 1:
        ops.append((1, 2, f'v_cvt_pk_bf16_f32 {vPr(buf, kb//2, qb, (kb%2)*2 + r//2)}, {vSr(kb, qb, r-1)}, {s}'))
    return ops

def sm_ops(buf, order=None):
    order = order or [(e // 4, e % 4) for e in range(16)]
    return [(2*e + dg, pr, tx) for e in range(64) for dg, pr, tx in sm_elem(buf, order[e // 4][0], order[e // 4][1], e % 4)]

def qk_mfma(kb, qb, ks, cinit=False):
    c = (vC(qb) if cinit else '0') if ks == 0 else vS(kb, qb)
    return f'{MF} {vS(kb, qb)}, {aF(kb*4+ks)}, {aQ(qb, ks)}, {c}'

def pv_mfma(db, qb, t, buf):
    return f'{MF} {aO(qb, db)}, {vP(buf, t, qb)}, {aF(16 + db*2 + t)}, {aO(qb, db)}'

def dma(grp, i, srd='s[4:7]', so='s17'):
    v = vD1 if grp == 0 else vD2
    return f'buffer_load_dwordx4 {v}, {srd}, {so} offen offset:{1024*i}{SC1} lds'

class Block:
    def __init__(self, G, carry):
        self.G = G
        self.mf = [None] * G
        self.mem = [[] for _ in range(G)]
        self.val = [[] for _ in range(G + 140)]
        for g, lst in carry.items():
            self.val[g] += lst
        self.reads = [(4*f + RP - 4*D, (0, f)) for f in range(D)]
        self.waits = []
    def read(self, g, ident, f, off):
        self.mem[g].append(f'ds_read_b128 {aF(f)}, {vRd} offset:{off}')
        self.reads.append((g, ident))
    def finish(self):
        self.reads.sort(key=lambda r: r[0])
        ids = [r[1] for r in self.reads]
        for gw, need in self.waits:
            if gw == 0: continue
            p = max(ids.index(x) for x in need)
            assert self.reads[p][0] < gw - 1, (gw, need)
            w = len([1 for r in self.reads[p+1:] if r[0] < gw - 1])
            self.mem[gw - 1].insert(0, f's_waitcnt lgkmcnt({w})')
        return {g - self.G: self.val[g] for g in range(self.G, len(self.val)) if self.val[g]}
    def stage(self, k, par, nxt=True):
        g0 = 128 * k
        for i in range(64):
            self.mf[g0 + i] = qk_mfma(i // 16, (i // 4) % 4, i % 4)
            self.mf[g0 + 64 + i] = pv_mfma(i // 8, (i // 2) % 4, i % 2, par)
        for rg, pr, tx in sm_ops(par ^ 1):
            self.val[g0 + OPT['st'] + rg].append((pr, tx))
        for f in range(D, 32 + (D if nxt else 0)):
            g = g0 + 4*f + RP - 4*D
            if f < 32: self.read(g, (k, f), f, par*32768 + frag_off(f))
            else: self.read(g, (k + 1, f - 32), f, (par ^ 1)*32768 + frag_off(f - 32))
        for m in range(8):
            self.waits.append((g0 + 16*m, [(k, 4*m + j) for j in range(4)]))
    def gap_lines(self, g):
        v = [t for _, t in sorted(self.val[g], key=lambda z: z[0])]
        m = self.mem[g]
        if OPT.get('no_exp'): v = [t for t in v if not t.startswith('v_exp')]
        if OPT.get('no_add'): v = [t for t in v if not t.startswith('v_add')]
        if OPT.get('no_cvt'): v = [t for t in v if not t.startswith('v_cvt')]
        if OPT.get('no_lds'): m = [t for t in m if not t.startswith('ds_read')]
        if OPT.get('no_dma'): m = [t for t in m if not t.startswith('buffer_load')]
        if any(t.endswith(':') for t in m):
            return m, v
        sc = [t for t in m if t.startswith('s_')]
        return sc, [t for t in m if not t.startswith('s_')] + v
    def emit(self, o, upto=None):
        for g in range(upto if upto is not None else self.G):
            o(self.mf[g])
            sc, ve = self.gap_lines(g)
            for x in sc + ve: o(x)

def stampdq(o, k):
    if OPT.get('stampdq'):
        o(f's_memtime s[{64+2*k}:{65+2*k}]')

def stampp(o, k):
    if OPT.get('stampp'):
        o(f's_memtime s[{64+2*k}:{65+2*k}]')

def stamp(o, k):
    if OPT.get('stampp') and k in (4, 5, 7):
        return
    if OPT.get('stampdq') and k in (3, 4, 5, 7):
        return
    if OPT['stamp']:
        o(f's_memtime s[{64+2*k}:{65+2*k}]')

NINIT = 0
def init_work(o):
    global NINIT
    NINIT += 1
    o(f's_cmp_lg_u32 s52, 0\ns_cbranch_scc1 L_noinit{NINIT}')
    for r in range(128):
        o(f'v_accvgpr_write_b32 a{r}, 0')
    for q in range(4):
        o(f'v_mov_b32_e32 {vL[q]}, 0')
    o(f'L_noinit{NINIT}:')

def qdma(o, idx):
    idx = list(idx)
    for i in idx:
        if i % 4 == 0 or i == idx[0]:
            o(f's_add_u32 m0, s100, {(i // 4)*4096}')
            o('s_nop 0')
        so = 's22' if i < 4 else f's{60 + i // 4}'
        o(f'buffer_load_dwordx4 v{126 + i % 4}, s[8:11], {so} offen offset:{1024*(i % 4)}{POL} lds')
    return len(idx)

def qreads(o, qbs):
    for qb in qbs:
        for ks in range(4):
            o(f'ds_read_b128 {aQ(qb, ks)}, v{130 + ks} offset:{4096*qb}')

POLL = 'buffer_load_dwordx2 v[114:115], v118, s[96:99], 0 offen sc1'

def gen_dequant(o):
    T = T0
    NT = 4 if OPT.get('touch') else 0
    NB1 = OPT['nb1']
    def dload(x):
        gs, j = x // 8, x % 8
        so = 's53' if j < 4 else 's54'
        o(f'buffer_load_dwordx4 {rng("v", T + gs*32 + j*4, 4)}, v12, s[32:35], {so} offen offset:{512*(4*gs + j%4)}{POL}')
    def dwait(x, young):
        issued = min(16, NB1 + x)
        extra = young if x < NB1 else young - NT
        o(f's_waitcnt vmcnt({issued - x - 1 + extra})')
        if NB1 + x < 16: dload(NB1 + x)
    def data_loads():
        for x in range(NB1): dload(x)
        if OPT.get('touch'):
            o(f'''
            buffer_load_dword v122, v1, s[4:7], s55 offen sc1
            buffer_load_dword v123, v1, s[96:99], 0 offen sc1
            buffer_load_dword v124, v1, s[12:15], s22 offen sc1
            buffer_load_dword v125, v1, s[8:11], s22 offen''')
        stampdq(o, 4)
        init_work(o)
        stampdq(o, 5)
    def mid(gs, j):
        if gs == 0 and j == 0: stampdq(o, 7)
        if gs == 1 and j == 0:
            o('buffer_load_dwordx2 v[112:113], v1, s[44:47], s23 offen sc1')
            return 1
        return 0
    o(f'''
L_dq:
    s_lshl_b32 s53, s51, 15
    s_add_u32 s53, s53, s48
    s_add_u32 s54, s53, 8192
    s_lshl_b32 s55, s51, 14
    v_lshrrev_b32_e32 v13, 5, v2              ; h
    v_and_b32_e32 v120, 31, v2                 ; m
    v_lshlrev_b32_e32 v12, 12, v13
    v_lshl_add_u32 v12, v120, 4, v12           ; h*8*512 + m*16
    s_cmp_ge_u32 s16, 2
    s_cbranch_scc1 L_dq_v
    s_lshr_b32 s56, s51, 1
    s_lshl_b32 s56, s56, 8
    s_add_u32 s56, s56, s49
    v_lshlrev_b32_e32 v121, 3, v120             ; m*8
    buffer_load_dwordx2 v[208:209], v121, s[36:39], s56 offen
    buffer_load_dwordx2 v[210:211], v121, s[40:43], s56 offen''')
    data_loads()
    o(f'''
    v_lshrrev_b32_e32 v119, 1, v120
    v_lshlrev_b32_e32 v119, 8, v119
    v_and_b32_e32 v120, 1, v120
    v_lshl_add_u32 v119, v120, 3, v119
    v_lshl_add_u32 v119, v13, 7, v119
    v_add_u32_e32 v119, s92, v119               ; LDS: (m/2)*256 + (m%2)*8 + h*128
    s_waitcnt vmcnt({NB1 + NT})
    v_lshlrev_b32_e32 v212, 16, v208
    v_and_b32_e32 v213, s60, v208
    v_lshlrev_b32_e32 v214, 16, v209
    v_and_b32_e32 v215, s60, v209
    v_lshlrev_b32_e32 v216, 16, v210
    v_and_b32_e32 v217, s60, v210
    v_lshlrev_b32_e32 v218, 16, v211
    v_and_b32_e32 v219, s60, v211
    v_pk_mul_f32 v[212:213], v[212:213], s[58:59]
    v_pk_mul_f32 v[214:215], v[214:215], s[58:59]
    v_pk_mul_f32 v[216:217], v[216:217], v[212:213] neg_lo:[1,0] neg_hi:[1,0]
    v_pk_mul_f32 v[218:219], v[218:219], v[214:215] neg_lo:[1,0] neg_hi:[1,0]''')
    young = NT
    for gs in range(2):
        for j in range(8):
            dwait(gs*8 + j, young)
            young += mid(gs, j)
            b = T + gs*32 + j*4
            for c in range(4): o(f'v_cvt_f32_i32_e32 v{b+c}, v{b+c}')
            o(f'v_pk_fma_f32 {rng("v", b, 2)}, {rng("v", b, 2)}, v[212:213], v[216:217]')
            o(f'v_pk_fma_f32 {rng("v", b+2, 2)}, {rng("v", b+2, 2)}, v[214:215], v[218:219]')
            o(f'v_cvt_pk_bf16_f32 v{b}, v{b}, v{b+1}')
            o(f'v_cvt_pk_bf16_f32 v{b+1}, v{b+2}, v{b+3}')
            o(f'ds_write_b64 v119, {rng("v", b, 2)} offset:{(j // 4)*4096 + (4*gs + j % 4)*16}')
    o('s_branch L_dq_out')
    o(f'''
L_dq_v:
    s_lshl_b32 s56, s51, 7
    s_add_u32 s56, s56, s49
    v_lshlrev_b32_e32 v121, 4, v13             ; h*16
    buffer_load_dwordx4 v[208:211], v121, s[36:39], s56 offen
    buffer_load_dwordx4 v[212:215], v121, s[36:39], s56 offen offset:32
    buffer_load_dwordx4 v[216:219], v121, s[40:43], s56 offen
    buffer_load_dwordx4 v[220:223], v121, s[40:43], s56 offen offset:32''')
    data_loads()
    o(f'''
    v_and_b32_e32 v119, 1, v120
    v_lshlrev_b32_e32 v119, 12, v119
    v_lshl_add_u32 v119, v13, 9, v119
    v_lshrrev_b32_e32 v120, 1, v120
    v_lshl_add_u32 v119, v120, 4, v119
    v_add_u32_e32 v119, s92, v119               ; LDS: (m%2)*4096 + h*512 + (m/2)*16
    s_waitcnt vmcnt({NB1 + NT})''')
    SCU, ZRU = 224, 240
    for p in range(8):
        o(f'v_lshlrev_b32_e32 v{SCU+2*p}, 16, v{208+p}')
        o(f'v_and_b32_e32 v{SCU+2*p+1}, s60, v{208+p}')
        o(f'v_lshlrev_b32_e32 v{ZRU+2*p}, 16, v{216+p}')
        o(f'v_and_b32_e32 v{ZRU+2*p+1}, s60, v{216+p}')
        o(f'v_pk_mul_f32 {rng("v", ZRU+2*p, 2)}, {rng("v", ZRU+2*p, 2)}, {rng("v", SCU+2*p, 2)} neg_lo:[1,0] neg_hi:[1,0]')
    young = NT
    for gs in range(2):
        ob = 208 if gs == 0 else T
        for j in range(8):
            dwait(gs*8 + j, young)
            young += mid(gs, j)
            b = T + gs*32 + j*4
            ix = (j // 4)*8 + 4*gs + j % 4
            zr, sc, sel = ZRU + (ix & ~1), SCU + (ix & ~1), ix & 1
            bc = f'op_sel:[0,{sel},{sel}] op_sel_hi:[1,{sel},{sel}]'
            for c in range(4): o(f'v_cvt_f32_i32_e32 v{b+c}, v{b+c}')
            for p in range(2):
                o(f'v_pk_fma_f32 {rng("v", b+2*p, 2)}, {rng("v", b+2*p, 2)}, {rng("v", sc, 2)}, {rng("v", zr, 2)} {bc}')
            if j & 1:
                for c in range(4):
                    o(f'v_cvt_pk_bf16_f32 v{ob + 4*c + j//2}, v{b - 4 + c}, v{b + c}')
        for c in range(4):
            o(f'ds_write_b128 v119, {rng("v", ob + 4*c, 4)} offset:{1024*c + 256*gs}')
    o('L_dq_out:')
    o('s_waitcnt lgkmcnt(0)')
    for f in range(8):
        o(f'ds_read_b128 {rng("v", T + 32 + 4*f, 4)}, v14 offset:{1024*f}')
    for f in range(8):
        o(f's_waitcnt lgkmcnt({7 - f})')
        vv = vD1 if f < 4 else vD2
        o(f'buffer_store_dwordx4 {rng("v", T + 32 + 4*f, 4)}, {vv}, s[4:7], s55 offen offset:{1024*(f%4)}')
    o('L_dq_done:')

def lane_reduce(op, tmp):
    r = []
    for sw in ('v_permlane16_swap_b32', 'v_permlane32_swap_b32'):
        r += [f'v_mov_b32_e32 v{tmp+q}, {vL[q]}' for q in range(4)]
        r += [f'{sw} {vL[q]}, v{tmp+q}' for q in range(4)]
        r += [f'{op} {vL[q]}, {vL[q]}, v{tmp+q}' for q in range(4)]
    return r

FA = 144
def out_group(qb, r, b, packed):
    f = FA + 4*qb + r
    ops = []
    if packed:
        fp, sel = f & ~1, f & 1
        ops += [f'v_pk_mul_f32 {rng("v", b+2*p, 2)}, {rng("v", b+2*p, 2)}, {rng("v", fp, 2)} op_sel:[0,{sel}] op_sel_hi:[1,{sel}]' for p in range(4)]
    else:
        ops += [f'v_mul_f32_e32 v{b+p}, v{b+p}, v{f}' for p in range(8)]
    ops += [f'v_cvt_pk_bf16_f32 v{b+p}, v{b+2*p}, v{b+2*p+1}' for p in range(4)]
    so = 's22' if qb == 0 else f's{60+qb}'
    ops.append(f'buffer_store_dwordx4 {rng("v", b, 4)}, v14, s[12:15], {so} offen offset:{256*r}{OPOL}')
    return ops

def factor_ops():
    return ([f'v_rcp_f32_e32 {vL[q]}, {vL[q]}' for q in range(4)],
            [f'ds_write_b32 v12, {vL[q]} offset:{64*q}' for q in range(4)],
            [f'ds_read_b128 {rng("v", FA+4*q, 4)}, v13 offset:{64*q}' for q in range(4)])

EPI_ADDR = f'''
    s_lshl_b32 s53, s16, 8
    s_add_u32 s53, s53, {LDS_SCR}
    v_lshl_add_u32 v12, v7, 2, s53
    v_lshl_add_u32 v13, v3, 4, s53
    v_lshlrev_b32_e32 v14, 10, v3
    v_lshl_add_u32 v14, v7, 4, v14'''

def gen_core(o, errs, pre_lines):
    st = OPT['st']
    c = Out()
    c(f'v_add_u32_e32 v12, {3*32768}, {vD1}')
    for f in range(16):
        if f == 12: c('s_waitcnt lgkmcnt(8)')
        c(f'ds_read_b128 {aF(f)}, v12 offset:{frag_off(f)}')
    def check(tag):
        c(f'''
L_chk{tag}:
        v_cmp_eq_u64_e32 vcc, v[116:117], v[114:115]
        s_mov_b32 s95, {tag}
        s_andn2_b32 s56, s101, vcc_lo
        s_cbranch_scc1 L_pollslow
L_ok{tag}:''')
    c(f'''
    s_add_u32 s17, s21, 1
    s_and_b32 s17, s17, 31
    s_lshl_b32 s101, 1, s17
    s_cmp_lt_u32 s16, 2
    s_cselect_b32 s101, s101, 0
    s_lshl_b32 s17, s17, 14
    s_lshl_b32 s19, s16, 13
    s_mov_b32 s57, {OPT['spin']}
    v_mov_b32_e32 {vRd}, {vD1}
    s_and_b32 s50, s21, {OPT.get('wbmask', 31)}
    s_or_b32 s50, s50, s16
    s_cselect_b32 s50, 99, 12
    s_mov_b32 s18, 15''')
    def first_dma():
        c('s_cmp_ge_u32 s16, 2\ns_cbranch_scc1 L_nok1')
        for grp in range(2):
            c(f's_add_u32 m0, s19, {grp*4096}\ns_nop 0')
            for i in range(4): c(dma(grp, i))
        c('s_add_u32 s17, s17, 16384\ns_and_b32 s17, s17, 0x7ffff\nL_nok1:\ns_mov_b32 s101, -1')
    def second_dma():
        for grp in range(2):
            c(f's_add_u32 m0, s19, {32768 + grp*4096}\ns_nop 0')
            for i in range(4): c(dma(grp, i))
        c('''
        s_add_u32 s17, s17, 16384
        s_and_b32 s17, s17, 0x7ffff
        s_xor_b32 s19, s19, 0x10000''')
    def wait_typed(n, tag):
        c(f'''
        s_cmp_ge_u32 s16, 2
        s_cbranch_scc1 L_wv{tag}
        s_waitcnt vmcnt({n + 8})
        s_branch L_wd{tag}
L_wv{tag}:
        s_waitcnt vmcnt({n})
L_wd{tag}:''')
    carry = {}
    for rg, pr, tx in sm_ops(0):
        if st + rg >= 128: carry.setdefault(st + rg - 128, []).append((pr, tx))
    late = set(tx for l in carry.values() for _, tx in l)
    for qb in range(4):
        if qb == 0:
            c(f's_waitcnt vmcnt({13 - OPT["nql"]})')
            stamp(c, 3)
        elif qb == 1:
            c('s_waitcnt vmcnt(8)')
        else:
            wait_typed(4 * (3 - qb), qb)
        if qb == 0: c(f's_waitcnt lgkmcnt({0 if OPT["stamp"] else 8})')
        qreads(c, [qb])
        if qb == 1:
            check(1)
            stamp(c, 4)
            first_dma()
        if qb == 3:
            c(POLL)
        if qb == 0:
            qdma(c, range(16 - OPT['nql'], 16))
        c('s_waitcnt lgkmcnt(0)')
        ex = [(kb, r) for kb in range(4) for r in range(4)]
        pend = []
        for i in range(16):
            c(qk_mfma(i // 4, qb, i % 4))
            if pend:
                for x in pend: c(x)
                pend = []
            elif ex and 4*ex[0][0] + 3 + 4 <= i:
                kb, r = ex.pop(0)
                ops = [tx for _, _, tx in sm_elem(0, kb, qb, r)]
                c(ops[0]); pend = ops[1:]
        for kb, r in ex:
            ops = [tx for _, _, tx in sm_elem(0, kb, qb, r) if tx not in late]
            if ops and ops[0].startswith('v_exp'):
                c(ops[0]); ops = ops[1:]
            for x in pend: c(x)
            pend = ops
        for x in pend: c(x)
    stamp(c, 7)
    c('s_waitcnt vmcnt(0)')
    check(2)
    c('s_barrier')
    for f in range(D):
        c(f'ds_read_b128 {aF(f)}, {vRd} offset:{frag_off(f)}')
    second_dma()
    c(EPI_ADDR)
    stamp(c, 5)
    c(f's_waitcnt lgkmcnt({0 if OPT["stamp"] else D - 4})')
    c.l = fix_hazards(pre_lines, c.l, 'start')
    B = Block(256, carry)
    B.stage(0, 0); B.stage(1, 1)
    B.waits.append((256, [(2, j) for j in range(4)]))
    bars = [(256, 0)] if OPT['pairbar'] else [(128, 8), (256, 8)]
    for ge, vm in bars:
        gb = ge + RP - 4*D - 1
        B.mem[gb] += [f's_waitcnt vmcnt({vm})', 's_barrier']
    B.val[256 + RP - 4*D - 1].append((5, f'v_xor_b32_e32 {vRd}, 0x10000, {vRd}'))
    for j in range(16):
        g = OPT['dma0'] + OPT['dmastep'] * j if OPT['pairbar'] else 128*(j // 8) + OPT['dma0'] + 12*(j % 8)
        if j % 4 == 0:
            B.mem[g - 1].append(f's_add_u32 m0, s19, {(j // 8)*32768 + ((j // 4) % 2)*4096}')
        B.mem[g].append(dma((j // 4) % 2, j % 4))
        if j % 8 == 7:
            B.mem[g + 1].append('s_add_u32 s17, s17, 16384')
            B.mem[g + 2].append('s_and_b32 s17, s17, 0x7ffff')
        if j == 15:
            B.mem[g + 3].append('s_xor_b32 s19, s19, 0x10000')
    if OPT['stamp'] >= 2:
        B.mem[1].append('s_memtime s[84:85]')
        B.mem[2].append('s_memrealtime s[86:87]')
        B.mem[14].insert(0, 's_waitcnt lgkmcnt(0)')
        B.val[18].append((9, f'v_cmp_eq_u32_e32 vcc, s18, v2'))
        for k in range(4):
            B.val[20 + 2*k].append((9, f'v_mov_b32_e32 v244, s{84+k}'))
            B.val[21 + 2*k].append((9, f'v_cndmask_b32_e32 v{240+k}, v{240+k}, v244, vcc'))
    if OPT.get('wb'):
        g = OPT['dma0'] + 12*7 + 3
        assert not B.mem[g]
        B.mem[g] += ['s_cmp_lg_u32 s18, s50', 's_cbranch_scc1 L_nowb', 'buffer_wbl2 sc1', 'L_nowb:']
    B.mem[253].append('s_sub_u32 s18, s18, 1')
    B.mem[254].append('s_cmp_lg_u32 s18, 0')
    assert B.finish() == carry
    loop = Out()
    B.emit(loop, 255)
    loop(B.mf[255])
    sc, head = B.gap_lines(255)
    for x in sc: loop(x)
    loop('s_cbranch_scc1 L_loop')
    E = Block(192, carry)
    E.stage(0, 0, nxt=False)
    for j in range(16):
        E.read(72 + 4*j + RP, (1, 16 + j), 16 + j, 32768 + frag_off(16 + j))
    if not OPT['pairbar']:
        E.mem[70 + RP] += ['s_waitcnt vmcnt(0)', 's_barrier']
    for i in range(64):
        E.mf[128 + i] = pv_mfma((i % 16) // 2, i // 16, i % 2, 1)
    for m in range(4):
        E.waits.append((128 + 4*m, [(1, 16 + 4*m + j) for j in range(4)]))
    if OPT['stamp'] >= 2:
        E.mem[1].append('s_memtime s[84:85]')
        E.mem[2].append('s_memrealtime s[86:87]')
        E.mem[14].insert(0, 's_waitcnt lgkmcnt(0)')
        for k in range(4):
            E.val[20 + k].append((9, f'v_writelane_b32 v{240+k}, s{84+k}, 0'))
    assert not E.finish()
    rc, dw, dr = factor_ops()
    seq = [(0, x) for x in lane_reduce('v_add_f32_e32', 32)]
    seq += [(0, x) for x in [
        f'v_min_f32_e32 v36, {vL[0]}, {vL[1]}', f'v_max_f32_e32 v37, {vL[0]}, {vL[1]}', f'v_add_f32_e32 v38, {vL[0]}, {vL[1]}',
        f'v_min3_f32 v36, v36, {vL[2]}, {vL[3]}', f'v_max3_f32 v37, v37, {vL[2]}, {vL[3]}', f'v_add_f32_e32 v39, {vL[2]}, {vL[3]}']]
    seq += [(0, x) for x in rc]
    seq += [(0, 'v_cmp_nle_f32_e64 s[56:57], s54, v36'), (0, 'v_cmp_nge_f32_e64 s[58:59], s55, v37'), (0, 'v_cmp_u_f32_e32 vcc, v38, v39')]
    seq += [(0, x) for x in dw] + [(0, 's_or_b64 s[56:57], s[56:57], s[58:59]'), (0, 's_waitcnt lgkmcnt(0)')] + [(0, x) for x in dr]
    seq += [(0, 's_or_b64 s[56:57], s[56:57], vcc'), (0, f's_cbranch_scc{1 if not OPT.get("nofb") else 0} L_fallback' if not OPT.get('nofb') else 's_nop 0')]
    E.mem[128].append(f's_mov_b32 s54, 0x{f32bits(2.0**-60):08x}')
    E.mem[129].append(f's_mov_b32 s55, 0x{f32bits(2.0**60):08x}')
    groups = []
    for qb in range(4):
        for r in range(4):
            b = 160 + ((qb*4 + r) % 8) * 8
            groups.append((qb, r, b))
    after = []
    g = 128 + st + 2
    def place(ops):
        nonlocal g
        used = 0
        for k, (eg, x) in enumerate(ops):
            if x.startswith('s_'):
                if used:
                    g += 1; used = 0
                if g >= 192: return ops[k:]
                E.mem[g].append(x); g += 1
                continue
            cost = 2 if (x.startswith('v_rcp') or x.startswith('buffer_')) else 1
            if used + cost > 2 or (used and not x.startswith('v_')):
                g += 1; used = 0
            if eg > g:
                g = eg; used = 0
            if g >= 192: return ops[k:]
            E.val[g].append((20 + k, x)); used += cost
        if used: g += 1
        return []
    left = place(seq)
    assert not left
    first = True
    for qb, r, b in groups:
        rd = [(128 + 16*qb + 20, f'v_accvgpr_read_b32 v{b+db}, {aOr(qb, db, r)}') for db in range(8)]
        if left or g >= 190:
            left += rd + [(0, x) for x in out_group(qb, r, b, True)]
            continue
        ops = rd + ([(0, 's_waitcnt lgkmcnt(0)')] if first else []) + [(0, x) for x in out_group(qb, r, b, False)]
        first = False
        left = place(ops)
    tail = Out()
    for x in head: tail(x)
    E.emit(tail)
    stamp(tail, 6)
    tail('s_nop 7')
    for _, x in left: tail(x)
    lin = pre_lines + c.l + loop.l + ['    ' + x for x in head] + loop.l + tail.l
    errs += check_hazards(lin, 'core') + check_waits(lin, 'core')
    o.l += c.l
    o('s_branch L_loop_in')
    o('.p2align 6')
    o('L_loop:')
    for x in head: o(x)
    o('L_loop_in:')
    o.l += loop.l + tail.l

def gen_main():
    errs = []
    o = Out()
    o('s_cmp_ge_u32 s2, 256\ns_cbranch_scc1 L_end')
    stamp(o, 0)
    if OPT['stamp']: o('s_memrealtime s[80:81]')
    o(f'''
    s_load_dwordx4 s[8:11], s[0:1], 0         ; q, qk
    s_load_dwordx4 s[32:35], s[0:1], 16
    s_load_dwordx4 s[36:39], s[0:1], 32       ; k_zeros, v_scales
    s_load_dwordx4 s[12:15], s[0:1], 48       ; v_zeros, out
    s_load_dwordx4 s[24:27], s[0:1], 64
    s_memrealtime s[94:95]
    v_lshrrev_b32_e32 v1, 6, v0
    v_and_b32_e32 v2, 63, v0                  ; lane
    v_readfirstlane_b32 s16, v1               ; wave
    v_lshrrev_b32_e32 v3, 4, v2               ; g
    v_and_b32_e32 v7, 15, v2                  ; n
    v_lshlrev_b32_e32 {vD1}, 4, v2
    v_add_u32_e32 {vD2}, 0x1000, {vD1}
    s_and_b32 s20, s2, 7
    s_lshr_b32 s21, s2, 3
    s_lshl_b32 s22, s20, 5
    s_add_u32 s22, s22, s21
    s_lshl_b32 s22, s22, 16
    s_lshl_b32 s23, s16, 14
    s_add_u32 s22, s22, s23
    s_add_u32 s61, s22, 4096
    s_add_u32 s62, s22, 8192
    s_add_u32 s63, s22, 12288
    v_lshlrev_b32_e32 v118, 7, v2
    v_xor_b32_e32 v126, v7, v3
    v_lshlrev_b32_e32 v126, 4, v126
    v_lshl_add_u32 v130, v7, 8, v126
    v_lshl_add_u32 v126, v3, 8, v126            ; Q staging source: (lane/16)*256 + ((lane%16)^(lane/16))*16
    v_xor_b32_e32 v127, 64, v126
    v_xor_b32_e32 v128, 0x80, v126
    v_xor_b32_e32 v129, 0xc0, v126
    s_lshl_b32 s100, s16, 14
    s_add_u32 s100, s100, {2*32768}
    s_cmp_eq_u32 s16, 2
    s_cselect_b32 s100, {3*32768 + 16384}, s100
    s_cmp_eq_u32 s16, 3
    s_cselect_b32 s100, {LDS_QX}, s100
    v_add_u32_e32 v130, s100, v130
    v_xor_b32_e32 v131, 64, v130
    v_xor_b32_e32 v132, 0x80, v130
    v_xor_b32_e32 v133, 0xc0, v130
    s_and_b32 s23, s16, 1
    s_lshl_b32 s48, s20, 20
    s_lshl_b32 s53, s23, 14
    s_add_u32 s48, s48, s53
    s_lshl_b32 s49, s20, 12                   ; head*4096
    s_lshl_b32 s54, s20, 19                   ; head*512KB
    s_lshl_b32 s55, s23, 13
    s_add_u32 s55, s55, s54
    s_mov_b32 s60, 0xffff0000
    s_mov_b32 s93, 0
    s_getreg_b32 s3, hwreg(HW_REG_XCC_ID, 0, 4)
    v_mov_b32_e32 v1, 0
    s_mov_b32 s58, 0x{CSCALE:08x}
    s_mov_b32 s59, 0x{CSCALE:08x}
    s_mov_b32 s51, s21
    s_mov_b32 s52, 0
    s_lshl_b32 s92, s16, 13
    s_mov_b32 s6, {512 << 10}
    s_mov_b32 s7, 0x20000
    s_mov_b32 s30, {V_OFF + (512 << 10)}
    s_mov_b32 s31, 0x20000
    s_mov_b32 s42, 32768
    s_mov_b32 s43, 0x20000
    s_mov_b32 s46, 256
    s_mov_b32 s47, 0x20000
    s_mov_b32 s98, 8192
    s_mov_b32 s99, 0x20000
    s_lshl_b32 s56, s20, 2
    s_add_u32 s56, s56, s16
    s_lshl_b32 s56, s56, 13
    s_add_u32 s56, s56, {FLAG_OFF}
    s_cmp_ge_u32 s16, 2
    s_waitcnt lgkmcnt(0)
    s_cbranch_scc1 L_setv
    s_mov_b32 s40, s36
    s_mov_b32 s41, s37
    s_mov_b32 s36, s34
    s_mov_b32 s37, s35
    s_mov_b32 s32, s10
    s_mov_b32 s33, s11
    s_add_u32 s92, s92, {3*32768}
    s_branch L_setdone
L_setv:
    s_mov_b32 s40, s12                        ; v_zeros
    s_mov_b32 s41, s13
    s_mov_b32 s36, s38                        ; v_scales
    s_mov_b32 s37, s39
    s_add_u32 s55, s55, {V_OFF}
    s_lshl_b32 s23, s23, 6
    s_add_u32 s49, s49, s23
L_setdone:
    s_mov_b32 s34, {8 << 20}
    s_mov_b32 s35, 0x20000
    s_mov_b32 s38, 32768
    s_mov_b32 s39, 0x20000
    s_mov_b32 s10, {16 << 20}
    s_mov_b32 s11, 0x20000
    s_mov_b32 s12, s14
    s_mov_b32 s13, s15
    s_mov_b32 s14, {16 << 20}
    s_mov_b32 s15, 0x20000
    s_add_u32 s4, s26, s55
    s_addc_u32 s5, s27, 0
    s_add_u32 s28, s26, s54
    s_addc_u32 s29, s27, 0
    s_mov_b32 s44, s24
    s_mov_b32 s45, s25
    s_add_u32 s96, s26, s56
    s_addc_u32 s97, s27, 0
    s_lshl_b32 s23, s20, 5
    s_or_b32 s54, s21, s16
    s_cbranch_scc1 L_notag
    s_lshl_b64 s[94:95], s[94:95], 8
    s_or_b32 s94, s94, 0x80
    v_mov_b32_e32 v112, s94
    v_mov_b32_e32 v113, s95
    s_mov_b64 exec, 1
    buffer_store_dwordx2 v[112:113], v1, s[44:47], s23 offen sc1
    s_mov_b64 exec, -1
L_notag:
    v_add_u32_e32 v14, s92, {vD1}''')
    stampdq(o, 3)
    dq = Out()
    gen_dequant(dq)
    head = list(o.l)
    o.l += dq.l
    pre = Out()
    pre('s_cmp_lg_u32 s52, 0\ns_cbranch_scc1 L_help_next')
    nq1 = 0
    stamp(pre, 1)
    pre(f'''
    v_cmp_gt_u32_e32 vcc, 32, v2
    v_mov_b32_e32 v116, s3
    s_lshl_b32 s53, s21, 7
    s_mov_b32 s57, {OPT['spin']}
    s_mov_b32 s94, 0
    v_cndmask_b32_e32 v116, 16, v116, vcc
    s_waitcnt vmcnt({nq1})
L_tag:
    v_cmp_eq_u64_e32 vcc, 0, v[112:113]
    s_cbranch_vccnz L_tagslow
    v_add_u32_e32 v116, v116, v112
    v_mov_b32_e32 v117, v113
    s_mov_b64 exec, 1
    buffer_store_dwordx2 v[116:117], v1, s[96:99], s53 offen
    s_mov_b64 exec, -1
L_nopub:''')
    stampp(pre, 4)
    if OPT['barfirst']:
        qdma(pre, range(0, OPT['barfirst'] - 1))
        pre('s_barrier')
    qdma(pre, range(max(0, OPT['barfirst'] - 1), 8))
    stampp(pre, 7)
    pre(POLL)
    qdma(pre, range(8, 16 - OPT['nql']))
    stampp(pre, 5)
    if not OPT['barfirst']: pre('s_waitcnt lgkmcnt(0)\ns_barrier')
    stamp(pre, 2)
    if OPT['stamp']: pre('s_waitcnt lgkmcnt(0)')
    o.l += pre.l
    ik, iv = dq.l.index('L_dq_v:'), dq.l.index('L_dq_out:')
    for path, nm in ((dq.l[:ik] + dq.l[iv:], 'dqk'), (dq.l[:11] + dq.l[ik:], 'dqv')):
        errs += check_hazards(head + path + pre.l, nm) + check_waits(head + path + pre.l, nm)
    gen_core(o, errs, pre.l)
    o('L_fin:')
    if OPT['stamp']:
        o(f'''
    s_memtime s[86:87]
    s_waitcnt vmcnt(0)
    s_memtime s[84:85]
    s_memrealtime s[82:83]
    s_waitcnt lgkmcnt(0)
    s_mov_b32 s88, s26
    s_mov_b32 s89, s27
    s_mov_b32 s90, 0x10000000
    s_mov_b32 s91, 0x20000
    s_lshl_b32 s101, s2, 2
    s_add_u32 s101, s101, s16
    s_lshl_b32 s92, s101, 7
    s_add_u32 s92, s92, {16 << 20}
    s_lshl_b32 s101, s101, 10
    s_add_u32 s101, s101, {17 << 20}''')
        if OPT.get('dbg'):
            o(f'''
    s_cmp_lg_u32 s16, 0
    s_cbranch_scc1 L_nodbg
    s_mov_b32 s53, 8
    s_cmp_eq_u32 s2, 9
    s_cbranch_scc1 L_dodbg
    s_mov_b32 s53, 40
    s_cmp_eq_u32 s2, 254
    s_cbranch_scc0 L_nodbg
L_dodbg:
    s_sub_u32 s54, s74, s64
    s_sub_u32 s55, s76, s64
    s_sub_u32 s56, s84, s64
    s_sub_u32 s57, s82, s80
    v_mov_b32_e32 v16, s54
    v_mov_b32_e32 v17, s55
    v_mov_b32_e32 v18, s56
    v_mov_b32_e32 v19, s57
    v_mov_b32_e32 v20, s80
    v_mov_b32_e32 v21, s82
    s_mov_b64 exec, 1
    buffer_store_dwordx4 v[16:19], v1, s[44:47], s53 offen
    buffer_store_dwordx2 v[20:21], v1, s[44:47], s53 offen offset:16
    s_mov_b64 exec, -1
    s_nop 1
L_nodbg:''')
        for k in range(24):
            o(f'v_mov_b32_e32 v{16+k}, s{64+k}')
        o('v_mov_b32_e32 v40, 0')
        for k in range(6):
            o(f'buffer_store_dwordx4 {rng("v", 16+4*k, 4)}, v40, s[88:91], s92 offen offset:{16*k}')
        if OPT['stamp'] >= 2:
            o(f'buffer_store_dwordx4 v[240:243], {vD1}, s[88:91], s101 offen')
    o('L_end:\ns_endpgm')
    o(f'''
L_tagslow:
    s_sub_u32 s57, s57, 1
    s_cselect_b32 s93, 1, 0
    s_cbranch_scc1 L_nopub
    s_sleep 1
    buffer_load_dwordx2 v[112:113], v1, s[44:47], s23 offen sc1
    s_waitcnt vmcnt(0)
    s_branch L_tag
L_pollslow:
    s_cmp_eq_u32 s93, 2
    s_cbranch_scc1 L_polldone
    s_cmp_eq_u32 s93, 1
    s_cbranch_scc1 L_help_nopub
    s_or_b32 s54, vcc_lo, vcc_hi
    s_andn2_b32 s54, s101, s54
    s_cselect_b32 s55, 0, 1
    s_sub_u32 s57, s57, 1
    s_cselect_b32 s56, 1, 0
    s_cmp_lt_u32 s57, {OPT['spin'] - OPT['upg'] if OPT['spin'] > OPT['upg'] else 0}
    s_cselect_b32 s55, 1, s55
    s_or_b32 s55, s55, s56
    s_cmp_gt_u32 s55, s94
    s_cbranch_scc0 L_noupg
    s_mov_b32 s94, 1
    s_add_u32 s55, s53, 4096
    buffer_wbl2 sc1
    s_waitcnt vmcnt(0)
    s_mov_b32 exec_lo, 0
    s_mov_b32 exec_hi, 1
    buffer_store_dwordx2 v[116:117], v1, s[96:99], s55 offen sc1
    s_mov_b64 exec, -1
L_noupg:
    s_cmp_lg_u32 s56, 0
    s_cbranch_scc1 L_help_nopub
    s_cmp_eq_u32 s54, 0
    s_cbranch_scc1 L_polldone
    buffer_load_dwordx2 v[114:115], v118, s[96:99], 0 offen sc1
    s_waitcnt vmcnt(0)
    s_cmp_eq_u32 s95, 1
    s_cbranch_scc1 L_chk1
    s_branch L_chk2
L_polldone:
    s_cmp_eq_u32 s95, 1
    s_cbranch_scc1 L_ok1
    s_branch L_ok2
L_help_nopub:
    s_waitcnt lgkmcnt(0)
    s_mov_b32 s92, s100
    v_add_u32_e32 v14, s92, {vD1}
    s_mov_b32 s52, 31
    s_branch L_help_go
L_help_next:
    s_sub_u32 s52, s52, 1
    s_cmp_eq_u32 s52, 0
    s_cbranch_scc1 L_help_done
L_help_go:
    s_waitcnt vmcnt(0)
    s_add_u32 s51, s21, s52
    s_and_b32 s51, s51, 31
    s_branch L_dq
L_help_done:
    s_waitcnt vmcnt(0) lgkmcnt(0)
    s_mov_b32 s93, 2
    s_branch L_polldone''')
    fb = Out()
    def kloads(off):
        for f in range(16):
            if f % 8 == 0: fb(f's_add_u32 s53, s17, {off + (f // 8)*8192}')
            v = vD1 if f % 8 < 4 else vD2
            k = f if off == 0 else 16 + 2*(f % 8) + f // 8
            fb(f'buffer_load_dwordx4 {aF(k)}, {v}, s[28:31], s53 offen offset:{1024*(f%4)} sc1')
        fb('s_waitcnt vmcnt(0)')
    fb('L_fallback:\ns_waitcnt vmcnt(0) lgkmcnt(0)\ns_nop 7\ns_nop 7')
    for q in range(4): fb(f'v_mov_b32_e32 {vL[q]}, 0xff800000')
    fb('s_mov_b32 s17, 0\nL_maxloop:')
    kloads(0)
    for i in range(64): fb(qk_mfma(i // 16, (i // 4) % 4, i % 4))
    fb('s_nop 7')
    for kb in range(4):
        for qb in range(4):
            for r in (0, 2):
                fb(f'v_max3_f32 {vL[qb]}, {vL[qb]}, {vSr(kb, qb, r)}, {vSr(kb, qb, r+1)}')
    fb(f's_add_u32 s17, s17, 16384\ns_cmp_lt_u32 s17, {512 << 10}\ns_cbranch_scc1 L_maxloop')
    for x in lane_reduce('v_max_f32_e32', 16): fb(x)
    for q in range(4):
        for r in range(4): fb(f'v_sub_f32_e32 v{C0 + 4*q + r}, 0, {vL[q]}')
    for r in range(128): fb(f'v_accvgpr_write_b32 a{r}, 0')
    for q in range(4): fb(f'v_mov_b32_e32 {vL[q]}, 0')
    fb('s_mov_b32 s17, 0\nL_p2loop:')
    kloads(0)
    for i in range(64): fb(qk_mfma(i // 16, (i // 4) % 4, i % 4, True))
    kloads(V_OFF)
    for kb in range(4):
        for qb in range(4):
            el = [sm_elem(0, kb, qb, r) for r in range(4)]
            for r in range(4): fb(el[r][0][2])
            for r in range(4):
                for _, _, tx in el[r][1:]: fb(tx)
    fb('s_nop 1')
    for i in range(64): fb(pv_mfma(i // 8, (i // 2) % 4, i % 2, 0))
    fb(f's_add_u32 s17, s17, 16384\ns_cmp_lt_u32 s17, {512 << 10}\ns_cbranch_scc1 L_p2loop')
    for x in lane_reduce('v_add_f32_e32', 16): fb(x)
    rc, dw, dr = factor_ops()
    for x in rc + ['s_nop 0'] + dw + ['s_waitcnt lgkmcnt(0)'] + dr + ['s_waitcnt lgkmcnt(0)']: fb(x)
    for qb in range(4):
        for r in range(4):
            b = 160 + ((qb*4 + r) % 8) * 8
            for db in range(8): fb(f'v_accvgpr_read_b32 v{b+db}, {aOr(qb, db, r)}')
            for x in out_group(qb, r, b, True): fb(x)
    fb('s_branch L_fin')
    i1, i2 = fb.l.index('L_maxloop:'), fb.l.index('L_p2loop:')
    errs += check_hazards(fb.l, 'fb') + check_waits(fb.l, 'fb')
    p2 = fb.l[i2:[k for k, x in enumerate(fb.l) if 'L_p2loop' in x][-1] + 1]
    errs += check_hazards(p2 + p2, 'fb2')
    o.l += fb.l
    return o.l, errs

HEADER = open('cdna_kernels/' + NAME + '.s.ref').read().split('; @launch')[0]

def main():
    mn, errs = gen_main()
    for e in errs:
        print(e, file=sys.stderr)
    if errs and not OPT.get('nofb'):
        sys.exit(1)
    nm = NAME + '_kernel'
    txt = HEADER + f'; @launch grid=(256,1,1) block=(256,1,1) lds={LDS_TOTAL}\n'
    txt += '.amdgcn_target "amdgcn-amd-amdhsa--gfx950"\n.text\n'
    txt += f'.globl {nm}\n.p2align 8\n.type {nm},@function\n{nm}:\n' + '\n'.join(mn) + '\n'
    txt += f'''.section .rodata,"a"
.p2align 6
.amdhsa_kernel {nm}
  .amdhsa_next_free_vgpr 512
  .amdhsa_next_free_sgpr 102
  .amdhsa_accum_offset 256
  .amdhsa_group_segment_fixed_size 0
  .amdhsa_kernarg_size 80
  .amdhsa_user_sgpr_count 2
  .amdhsa_user_sgpr_kernarg_segment_ptr 1
  .amdhsa_system_sgpr_workgroup_id_x 1
  .amdhsa_float_denorm_mode_32 3
.end_amdhsa_kernel
'''
    open(sys.argv[1], 'w').write(txt)

main()
```

```python
import sys, struct, math
from asmlib import *

NAME = 'standalone__kv_cache_quant_int4_int2_kv_with_per_channel_or_per_token_scales__prompt'
OPT = dict(wb=1, nb1=11, barfirst=1, nql=8, nqb=0, nqa=0, touch=1, upg=8, pol='nt', stamp=0, d=8, st=7, dma0=6, dmastep=10, spin=20000, opol='sc0_sc1', rp=0, pairbar=0)
for a in sys.argv[2:]:
    k, v = a.split('=', 1)
    OPT[k] = eval(v)

def f32bits(x):
    return struct.unpack('<I', struct.pack('<f', x))[0]

CSCALE = f32bits(128 ** -0.5 * math.log2(math.e))
V_OFF = 4 << 20
FLAG_OFF = 9 << 20
MF = 'v_mfma_f32_16x16x32_bf16'
D, RP = OPT['d'], OPT['rp']
def flags(x): return (' ' + x.replace('_', ' ')) if x else ''
POL, OPOL, SC1 = flags(OPT['pol']), flags(OPT['opol']), ' sc1'

class Out:
    def __init__(self):
        self.l = []
    def __call__(self, s):
        for x in s.strip('\n').split('\n'):
            if x.strip():
                self.l.append(x.strip() if x.strip().endswith(':') or x.startswith('.') else '    ' + x.strip())

def rng(p, b, n): return f'{p}[{b}:{b+n-1}]'
def aO(qb, db): return rng('a', (qb*8+db)*4, 4)
def aOr(qb, db, r): return f'a{(qb*8+db)*4 + r}'
def aQ(qb, ks): return rng('a', 128 + (qb*4+ks)*4, 4)
def aF(k): return rng('a', 192 + (k % 16)*4, 4)
S0, P0, C0, T0 = 16, 80, 144, 144
def vS(kb, qb): return rng('v', S0 + (kb*4+qb)*4, 4)
def vSr(kb, qb, r): return f'v{S0 + (kb*4+qb)*4 + r}'
def vP(buf, t, qb): return rng('v', P0 + buf*32 + (t*4+qb)*4, 4)
def vPr(buf, t, qb, i): return f'v{P0 + buf*32 + (t*4+qb)*4 + i}'
def vC(qb): return rng('v', C0 + qb*4, 4)
vL = ['v8', 'v9', 'v10', 'v11']
vRd, vD1, vD2 = 'v4', 'v5', 'v6'
LDS_RING = 131072
LDS_SCR = LDS_RING
LDS_QX = LDS_RING + 4096
LDS_TOTAL = LDS_QX + 16384

def frag_off(k):
    if k < 16:
        return k * 1024
    db, t = (k - 16) // 2, (k - 16) % 2
    return 16384 + t * 8192 + db * 1024

def sm_elem(buf, kb, qb, r):
    s = vSr(kb, qb, r)
    ops = [(0, 0, f'v_exp_f32_e32 {s}, {s}'), (1, 1, f'v_add_f32_e32 {vL[qb]}, {vL[qb]}, {s}')]
    if r & 1:
        ops.append((1, 2, f'v_cvt_pk_bf16_f32 {vPr(buf, kb//2, qb, (kb%2)*2 + r//2)}, {vSr(kb, qb, r-1)}, {s}'))
    return ops

def sm_ops(buf, order=None):
    order = order or [(e // 4, e % 4) for e in range(16)]
    return [(2*e + dg, pr, tx) for e in range(64) for dg, pr, tx in sm_elem(buf, order[e // 4][0], order[e // 4][1], e % 4)]

def qk_mfma(kb, qb, ks, cinit=False):
    c = (vC(qb) if cinit else '0') if ks == 0 else vS(kb, qb)
    return f'{MF} {vS(kb, qb)}, {aF(kb*4+ks)}, {aQ(qb, ks)}, {c}'

def pv_mfma(db, qb, t, buf):
    return f'{MF} {aO(qb, db)}, {vP(buf, t, qb)}, {aF(16 + db*2 + t)}, {aO(qb, db)}'

def dma(grp, i, srd='s[4:7]', so='s17'):
    v = vD1 if grp == 0 else vD2
    return f'buffer_load_dwordx4 {v}, {srd}, {so} offen offset:{1024*i}{SC1} lds'

class Block:
    def __init__(self, G, carry):
        self.G = G
        self.mf = [None] * G
        self.mem = [[] for _ in range(G)]
        self.val = [[] for _ in range(G + 140)]
        for g, lst in carry.items():
            self.val[g] += lst
        self.reads = [(4*f + RP - 4*D, (0, f)) for f in range(D)]
        self.waits = []
    def read(self, g, ident, f, off):
        self.mem[g].append(f'ds_read_b128 {aF(f)}, {vRd} offset:{off}')
        self.reads.append((g, ident))
    def finish(self):
        self.reads.sort(key=lambda r: r[0])
        ids = [r[1] for r in self.reads]
        for gw, need in self.waits:
            if gw == 0: continue
            p = max(ids.index(x) for x in need)
            assert self.reads[p][0] < gw - 1, (gw, need)
            w = len([1 for r in self.reads[p+1:] if r[0] < gw - 1])
            self.mem[gw - 1].insert(0, f's_waitcnt lgkmcnt({w})')
        return {g - self.G: self.val[g] for g in range(self.G, len(self.val)) if self.val[g]}
    def stage(self, k, par, nxt=True):
        g0 = 128 * k
        for i in range(64):
            self.mf[g0 + i] = qk_mfma(i // 16, (i // 4) % 4, i % 4)
            self.mf[g0 + 64 + i] = pv_mfma(i // 8, (i // 2) % 4, i % 2, par)
        for rg, pr, tx in sm_ops(par ^ 1):
            self.val[g0 + OPT['st'] + rg].append((pr, tx))
        for f in range(D, 32 + (D if nxt else 0)):
            g = g0 + 4*f + RP - 4*D
            if f < 32: self.read(g, (k, f), f, par*32768 + frag_off(f))
            else: self.read(g, (k + 1, f - 32), f, (par ^ 1)*32768 + frag_off(f - 32))
        for m in range(8):
            self.waits.append((g0 + 16*m, [(k, 4*m + j) for j in range(4)]))
    def gap_lines(self, g):
        v = [t for _, t in sorted(self.val[g], key=lambda z: z[0])]
        m = self.mem[g]
        if OPT.get('no_exp'): v = [t for t in v if not t.startswith('v_exp')]
        if OPT.get('no_add'): v = [t for t in v if not t.startswith('v_add')]
        if OPT.get('no_cvt'): v = [t for t in v if not t.startswith('v_cvt')]
        if OPT.get('no_lds'): m = [t for t in m if not t.startswith('ds_read')]
        if OPT.get('no_dma'): m = [t for t in m if not t.startswith('buffer_load')]
        if any(t.endswith(':') for t in m):
            return m, v
        sc = [t for t in m if t.startswith('s_')]
        return sc, [t for t in m if not t.startswith('s_')] + v
    def emit(self, o, upto=None):
        for g in range(upto if upto is not None else self.G):
            o(self.mf[g])
            sc, ve = self.gap_lines(g)
            for x in sc + ve: o(x)

def stampdq(o, k):
    if OPT.get('stampdq'):
        o(f's_memtime s[{64+2*k}:{65+2*k}]')

def stampp(o, k):
    if OPT.get('stampp'):
        o(f's_memtime s[{64+2*k}:{65+2*k}]')

def stamp(o, k):
    if OPT.get('stampp') and k in (4, 5, 7):
        return
    if OPT.get('stampdq') and k in (3, 4, 5, 7):
        return
    if OPT['stamp']:
        o(f's_memtime s[{64+2*k}:{65+2*k}]')

NINIT = 0
def init_work(o):
    global NINIT
    NINIT += 1
    o(f's_cmp_lg_u32 s52, 0\ns_cbranch_scc1 L_noinit{NINIT}')
    for r in range(128):
        o(f'v_accvgpr_write_b32 a{r}, 0')
    for q in range(4):
        o(f'v_mov_b32_e32 {vL[q]}, 0')
    o(f'L_noinit{NINIT}:')

def qdma(o, idx):
    idx = list(idx)
    for i in idx:
        if i % 4 == 0 or i == idx[0]:
            o(f's_add_u32 m0, s100, {(i // 4)*4096}')
            o('s_nop 0')
        so = 's22' if i < 4 else f's{60 + i // 4}'
        o(f'buffer_load_dwordx4 v{126 + i % 4}, s[8:11], {so} offen offset:{1024*(i % 4)}{POL} lds')
    return len(idx)

def qreads(o, qbs):
    for qb in qbs:
        for ks in range(4):
            o(f'ds_read_b128 {aQ(qb, ks)}, v{130 + ks} offset:{4096*qb}')

POLL = 'buffer_load_dwordx2 v[114:115], v118, s[96:99], 0 offen sc1'

def gen_dequant(o):
    T = T0
    NT = 4 if OPT.get('touch') else 0
    NB1 = OPT['nb1']
    def dload(x):
        gs, j = x // 8, x % 8
        so = 's53' if j < 4 else 's54'
        o(f'buffer_load_dwordx4 {rng("v", T + gs*32 + j*4, 4)}, v12, s[32:35], {so} offen offset:{512*(4*gs + j%4)}{POL}')
    def dwait(x, young):
        issued = min(16, NB1 + x)
        extra = young if x < NB1 else young - NT
        o(f's_waitcnt vmcnt({issued - x - 1 + extra})')
        if NB1 + x < 16: dload(NB1 + x)
    def data_loads():
        for x in range(NB1): dload(x)
        if OPT.get('touch'):
            o(f'''
            buffer_load_dword v122, v1, s[4:7], s55 offen sc1
            buffer_load_dword v123, v1, s[96:99], 0 offen sc1
            buffer_load_dword v124, v1, s[12:15], s22 offen sc1
            buffer_load_dword v125, v1, s[8:11], s22 offen''')
        stampdq(o, 4)
        init_work(o)
        stampdq(o, 5)
    def mid(gs, j):
        if gs == 0 and j == 0: stampdq(o, 7)
        if gs == 1 and j == 0:
            o('buffer_load_dwordx2 v[112:113], v1, s[44:47], s23 offen sc1')
            return 1
        return 0
    o(f'''
L_dq:
    s_lshl_b32 s53, s51, 15
    s_add_u32 s53, s53, s48
    s_add_u32 s54, s53, 8192
    s_lshl_b32 s55, s51, 14
    v_lshrrev_b32_e32 v13, 5, v2              ; h
    v_and_b32_e32 v120, 31, v2                 ; m
    v_lshlrev_b32_e32 v12, 12, v13
    v_lshl_add_u32 v12, v120, 4, v12           ; h*8*512 + m*16
    s_cmp_ge_u32 s16, 2
    s_cbranch_scc1 L_dq_v
    s_lshr_b32 s56, s51, 1
    s_lshl_b32 s56, s56, 8
    s_add_u32 s56, s56, s49
    v_lshlrev_b32_e32 v121, 3, v120             ; m*8
    buffer_load_dwordx2 v[208:209], v121, s[36:39], s56 offen
    buffer_load_dwordx2 v[210:211], v121, s[40:43], s56 offen''')
    data_loads()
    o(f'''
    v_lshrrev_b32_e32 v119, 1, v120
    v_lshlrev_b32_e32 v119, 8, v119
    v_and_b32_e32 v120, 1, v120
    v_lshl_add_u32 v119, v120, 3, v119
    v_lshl_add_u32 v119, v13, 7, v119
    v_add_u32_e32 v119, s92, v119               ; LDS: (m/2)*256 + (m%2)*8 + h*128
    s_waitcnt vmcnt({NB1 + NT})
    v_lshlrev_b32_e32 v212, 16, v208
    v_and_b32_e32 v213, s60, v208
    v_lshlrev_b32_e32 v214, 16, v209
    v_and_b32_e32 v215, s60, v209
    v_lshlrev_b32_e32 v216, 16, v210
    v_and_b32_e32 v217, s60, v210
    v_lshlrev_b32_e32 v218, 16, v211
    v_and_b32_e32 v219, s60, v211
    v_pk_mul_f32 v[212:213], v[212:213], s[58:59]
    v_pk_mul_f32 v[214:215], v[214:215], s[58:59]
    v_pk_mul_f32 v[216:217], v[216:217], v[212:213] neg_lo:[1,0] neg_hi:[1,0]
    v_pk_mul_f32 v[218:219], v[218:219], v[214:215] neg_lo:[1,0] neg_hi:[1,0]''')
    young = NT
    for gs in range(2):
        for j in range(8):
            dwait(gs*8 + j, young)
            young += mid(gs, j)
            b = T + gs*32 + j*4
            for c in range(4): o(f'v_cvt_f32_i32_e32 v{b+c}, v{b+c}')
            o(f'v_pk_fma_f32 {rng("v", b, 2)}, {rng("v", b, 2)}, v[212:213], v[216:217]')
            o(f'v_pk_fma_f32 {rng("v", b+2, 2)}, {rng("v", b+2, 2)}, v[214:215], v[218:219]')
            o(f'v_cvt_pk_bf16_f32 v{b}, v{b}, v{b+1}')
            o(f'v_cvt_pk_bf16_f32 v{b+1}, v{b+2}, v{b+3}')
            o(f'ds_write_b64 v119, {rng("v", b, 2)} offset:{(j // 4)*4096 + (4*gs + j % 4)*16}')
    o('s_branch L_dq_out')
    o(f'''
L_dq_v:
    s_lshl_b32 s56, s51, 7
    s_add_u32 s56, s56, s49
    v_lshlrev_b32_e32 v121, 4, v13             ; h*16
    buffer_load_dwordx4 v[208:211], v121, s[36:39], s56 offen
    buffer_load_dwordx4 v[212:215], v121, s[36:39], s56 offen offset:32
    buffer_load_dwordx4 v[216:219], v121, s[40:43], s56 offen
    buffer_load_dwordx4 v[220:223], v121, s[40:43], s56 offen offset:32''')
    data_loads()
    o(f'''
    v_and_b32_e32 v119, 1, v120
    v_lshlrev_b32_e32 v119, 12, v119
    v_lshl_add_u32 v119, v13, 9, v119
    v_lshrrev_b32_e32 v120, 1, v120
    v_lshl_add_u32 v119, v120, 4, v119
    v_add_u32_e32 v119, s92, v119               ; LDS: (m%2)*4096 + h*512 + (m/2)*16
    s_waitcnt vmcnt({NB1 + NT})''')
    SCU, ZRU = 224, 240
    for p in range(8):
        o(f'v_lshlrev_b32_e32 v{SCU+2*p}, 16, v{208+p}')
        o(f'v_and_b32_e32 v{SCU+2*p+1}, s60, v{208+p}')
        o(f'v_lshlrev_b32_e32 v{ZRU+2*p}, 16, v{216+p}')
        o(f'v_and_b32_e32 v{ZRU+2*p+1}, s60, v{216+p}')
        o(f'v_pk_mul_f32 {rng("v", ZRU+2*p, 2)}, {rng("v", ZRU+2*p, 2)}, {rng("v", SCU+2*p, 2)} neg_lo:[1,0] neg_hi:[1,0]')
    young = NT
    for gs in range(2):
        ob = 208 if gs == 0 else T
        for j in range(8):
            dwait(gs*8 + j, young)
            young += mid(gs, j)
            b = T + gs*32 + j*4
            ix = (j // 4)*8 + 4*gs + j % 4
            zr, sc, sel = ZRU + (ix & ~1), SCU + (ix & ~1), ix & 1
            bc = f'op_sel:[0,{sel},{sel}] op_sel_hi:[1,{sel},{sel}]'
            for c in range(4): o(f'v_cvt_f32_i32_e32 v{b+c}, v{b+c}')
            for p in range(2):
                o(f'v_pk_fma_f32 {rng("v", b+2*p, 2)}, {rng("v", b+2*p, 2)}, {rng("v", sc, 2)}, {rng("v", zr, 2)} {bc}')
            if j & 1:
                for c in range(4):
                    o(f'v_cvt_pk_bf16_f32 v{ob + 4*c + j//2}, v{b - 4 + c}, v{b + c}')
        for c in range(4):
            o(f'ds_write_b128 v119, {rng("v", ob + 4*c, 4)} offset:{1024*c + 256*gs}')
    o('L_dq_out:')
    o('s_waitcnt lgkmcnt(0)')
    for f in range(8):
        o(f'ds_read_b128 {rng("v", T + 32 + 4*f, 4)}, v14 offset:{1024*f}')
    for f in range(8):
        o(f's_waitcnt lgkmcnt({7 - f})')
        vv = vD1 if f < 4 else vD2
        o(f'buffer_store_dwordx4 {rng("v", T + 32 + 4*f, 4)}, {vv}, s[4:7], s55 offen offset:{1024*(f%4)}')
    o('L_dq_done:')

def lane_reduce(op, tmp):
    r = []
    for sw in ('v_permlane16_swap_b32', 'v_permlane32_swap_b32'):
        r += [f'v_mov_b32_e32 v{tmp+q}, {vL[q]}' for q in range(4)]
        r += [f'{sw} {vL[q]}, v{tmp+q}' for q in range(4)]
        r += [f'{op} {vL[q]}, {vL[q]}, v{tmp+q}' for q in range(4)]
    return r

FA = 144
def out_group(qb, r, b, packed):
    f = FA + 4*qb + r
    ops = []
    if packed:
        fp, sel = f & ~1, f & 1
        ops += [f'v_pk_mul_f32 {rng("v", b+2*p, 2)}, {rng("v", b+2*p, 2)}, {rng("v", fp, 2)} op_sel:[0,{sel}] op_sel_hi:[1,{sel}]' for p in range(4)]
    else:
        ops += [f'v_mul_f32_e32 v{b+p}, v{b+p}, v{f}' for p in range(8)]
    ops += [f'v_cvt_pk_bf16_f32 v{b+p}, v{b+2*p}, v{b+2*p+1}' for p in range(4)]
    so = 's22' if qb == 0 else f's{60+qb}'
    ops.append(f'buffer_store_dwordx4 {rng("v", b, 4)}, v14, s[12:15], {so} offen offset:{256*r}{OPOL}')
    return ops

def factor_ops():
    return ([f'v_rcp_f32_e32 {vL[q]}, {vL[q]}' for q in range(4)],
            [f'ds_write_b32 v12, {vL[q]} offset:{64*q}' for q in range(4)],
            [f'ds_read_b128 {rng("v", FA+4*q, 4)}, v13 offset:{64*q}' for q in range(4)])

EPI_ADDR = f'''
    s_lshl_b32 s53, s16, 8
    s_add_u32 s53, s53, {LDS_SCR}
    v_lshl_add_u32 v12, v7, 2, s53
    v_lshl_add_u32 v13, v3, 4, s53
    v_lshlrev_b32_e32 v14, 10, v3
    v_lshl_add_u32 v14, v7, 4, v14'''

def gen_core(o, errs, pre_lines):
    st = OPT['st']
    c = Out()
    c(f'v_add_u32_e32 v12, {3*32768}, {vD1}')
    for f in range(16):
        if f == 12: c('s_waitcnt lgkmcnt(8)')
        c(f'ds_read_b128 {aF(f)}, v12 offset:{frag_off(f)}')
    def check(tag):
        c(f'''
L_chk{tag}:
        v_cmp_eq_u64_e32 vcc, v[116:117], v[114:115]
        s_mov_b32 s95, {tag}
        s_andn2_b32 s56, s101, vcc_lo
        s_cbranch_scc1 L_pollslow
L_ok{tag}:''')
    c(f'''
    s_add_u32 s17, s21, 1
    s_and_b32 s17, s17, 31
    s_lshl_b32 s101, 1, s17
    s_cmp_lt_u32 s16, 2
    s_cselect_b32 s101, s101, 0
    s_lshl_b32 s17, s17, 14
    s_lshl_b32 s19, s16, 13
    s_mov_b32 s57, {OPT['spin']}
    v_mov_b32_e32 {vRd}, {vD1}
    s_and_b32 s50, s21, {OPT.get('wbmask', 31)}
    s_or_b32 s50, s50, s16
    s_cselect_b32 s50, 99, 12
    s_mov_b32 s18, 15''')
    def first_dma():
        c('s_cmp_ge_u32 s16, 2\ns_cbranch_scc1 L_nok1')
        for grp in range(2):
            c(f's_add_u32 m0, s19, {grp*4096}\ns_nop 0')
            for i in range(4): c(dma(grp, i))
        c('s_add_u32 s17, s17, 16384\ns_and_b32 s17, s17, 0x7ffff\nL_nok1:\ns_mov_b32 s101, -1')
    def second_dma():
        for grp in range(2):
            c(f's_add_u32 m0, s19, {32768 + grp*4096}\ns_nop 0')
            for i in range(4): c(dma(grp, i))
        c('''
        s_add_u32 s17, s17, 16384
        s_and_b32 s17, s17, 0x7ffff
        s_xor_b32 s19, s19, 0x10000''')
    def wait_typed(n, tag):
        c(f'''
        s_cmp_ge_u32 s16, 2
        s_cbranch_scc1 L_wv{tag}
        s_waitcnt vmcnt({n + 8})
        s_branch L_wd{tag}
L_wv{tag}:
        s_waitcnt vmcnt({n})
L_wd{tag}:''')
    carry = {}
    for rg, pr, tx in sm_ops(0):
        if st + rg >= 128: carry.setdefault(st + rg - 128, []).append((pr, tx))
    late = set(tx for l in carry.values() for _, tx in l)
    for qb in range(4):
        if qb == 0:
            c(f's_waitcnt vmcnt({13 - OPT["nql"]})')
            stamp(c, 3)
        elif qb == 1:
            c('s_waitcnt vmcnt(8)')
        else:
            wait_typed(4 * (3 - qb), qb)
        if qb == 0: c(f's_waitcnt lgkmcnt({0 if OPT["stamp"] else 8})')
        qreads(c, [qb])
        if qb == 1:
            check(1)
            stamp(c, 4)
            first_dma()
        if qb == 3:
            c(POLL)
        if qb == 0:
            qdma(c, range(16 - OPT['nql'], 16))
        c('s_waitcnt lgkmcnt(0)')
        ex = [(kb, r) for kb in range(4) for r in range(4)]
        pend = []
        for i in range(16):
            c(qk_mfma(i // 4, qb, i % 4))
            if pend:
                for x in pend: c(x)
                pend = []
            elif ex and 4*ex[0][0] + 3 + 4 <= i:
                kb, r = ex.pop(0)
                ops = [tx for _, _, tx in sm_elem(0, kb, qb, r)]
                c(ops[0]); pend = ops[1:]
        for kb, r in ex:
            ops = [tx for _, _, tx in sm_elem(0, kb, qb, r) if tx not in late]
            if ops and ops[0].startswith('v_exp'):
                c(ops[0]); ops = ops[1:]
            for x in pend: c(x)
            pend = ops
        for x in pend: c(x)
    stamp(c, 7)
    c('s_waitcnt vmcnt(0)')
    check(2)
    c('s_barrier')
    for f in range(D):
        c(f'ds_read_b128 {aF(f)}, {vRd} offset:{frag_off(f)}')
    second_dma()
    if OPT.get('norot'): c(f's_and_b32 s17, s17, {OPT["norot"] - 1}')
    c(EPI_ADDR)
    stamp(c, 5)
    c(f's_waitcnt lgkmcnt({0 if OPT["stamp"] else D - 4})')
    c.l = fix_hazards(pre_lines, c.l, 'start')
    B = Block(256, carry)
    B.stage(0, 0); B.stage(1, 1)
    B.waits.append((256, [(2, j) for j in range(4)]))
    bars = [(256, 0)] if OPT['pairbar'] else [(128, 8), (256, 8)]
    for ge, vm in bars:
        gb = ge + RP - 4*D - 1
        B.mem[gb] += [f's_waitcnt vmcnt({vm})', 's_barrier']
    B.val[256 + RP - 4*D - 1].append((5, f'v_xor_b32_e32 {vRd}, 0x10000, {vRd}'))
    for j in range(16):
        g = OPT['dma0'] + OPT['dmastep'] * j if OPT['pairbar'] else 128*(j // 8) + OPT['dma0'] + 12*(j % 8)
        if j % 4 == 0:
            B.mem[g - 1].append(f's_add_u32 m0, s19, {(j // 8)*32768 + ((j // 4) % 2)*4096}')
        B.mem[g].append(dma((j // 4) % 2, j % 4))
        if j % 8 == 7:
            B.mem[g + 1].append('s_add_u32 s17, s17, 16384')
            B.mem[g + 2].append('s_and_b32 s17, s17, 0x7ffff')
        if j == 15:
            B.mem[g + 3].append('s_xor_b32 s19, s19, 0x10000')
    if OPT['stamp'] >= 2:
        B.mem[1].append('s_memtime s[84:85]')
        B.mem[2].append('s_memrealtime s[86:87]')
        B.mem[14].insert(0, 's_waitcnt lgkmcnt(0)')
        B.val[18].append((9, f'v_cmp_eq_u32_e32 vcc, s18, v2'))
        for k in range(4):
            B.val[20 + 2*k].append((9, f'v_mov_b32_e32 v244, s{84+k}'))
            B.val[21 + 2*k].append((9, f'v_cndmask_b32_e32 v{240+k}, v{240+k}, v244, vcc'))
    if OPT.get('wb'):
        g = OPT['dma0'] + 12*7 + 3
        assert not B.mem[g]
        B.mem[g] += ['s_cmp_lg_u32 s18, s50', 's_cbranch_scc1 L_nowb', 'buffer_wbl2 sc1', 'L_nowb:']
    B.mem[253].append('s_sub_u32 s18, s18, 1')
    B.mem[254].append('s_cmp_lg_u32 s18, 0')
    assert B.finish() == carry
    loop = Out()
    B.emit(loop, 255)
    loop(B.mf[255])
    sc, head = B.gap_lines(255)
    for x in sc: loop(x)
    loop('s_cbranch_scc1 L_loop')
    E = Block(192, carry)
    E.stage(0, 0, nxt=False)
    for j in range(16):
        E.read(72 + 4*j + RP, (1, 16 + j), 16 + j, 32768 + frag_off(16 + j))
    if not OPT['pairbar']:
        E.mem[70 + RP] += ['s_waitcnt vmcnt(0)', 's_barrier']
    for i in range(64):
        E.mf[128 + i] = pv_mfma((i % 16) // 2, i // 16, i % 2, 1)
    for m in range(4):
        E.waits.append((128 + 4*m, [(1, 16 + 4*m + j) for j in range(4)]))
    if OPT['stamp'] >= 2:
        E.mem[1].append('s_memtime s[84:85]')
        E.mem[2].append('s_memrealtime s[86:87]')
        E.mem[14].insert(0, 's_waitcnt lgkmcnt(0)')
        for k in range(4):
            E.val[20 + k].append((9, f'v_writelane_b32 v{240+k}, s{84+k}, 0'))
    assert not E.finish()
    rc, dw, dr = factor_ops()
    seq = [(0, x) for x in lane_reduce('v_add_f32_e32', 32)]
    seq += [(0, x) for x in [
        f'v_min_f32_e32 v36, {vL[0]}, {vL[1]}', f'v_max_f32_e32 v37, {vL[0]}, {vL[1]}', f'v_add_f32_e32 v38, {vL[0]}, {vL[1]}',
        f'v_min3_f32 v36, v36, {vL[2]}, {vL[3]}', f'v_max3_f32 v37, v37, {vL[2]}, {vL[3]}', f'v_add_f32_e32 v39, {vL[2]}, {vL[3]}']]
    seq += [(0, x) for x in rc]
    seq += [(0, 'v_cmp_nle_f32_e64 s[56:57], s54, v36'), (0, 'v_cmp_nge_f32_e64 s[58:59], s55, v37'), (0, 'v_cmp_u_f32_e32 vcc, v38, v39')]
    seq += [(0, x) for x in dw] + [(0, 's_or_b64 s[56:57], s[56:57], s[58:59]'), (0, 's_waitcnt lgkmcnt(0)')] + [(0, x) for x in dr]
    seq += [(0, 's_or_b64 s[56:57], s[56:57], vcc'), (0, f's_cbranch_scc{1 if not OPT.get("nofb") else 0} L_fallback' if not OPT.get('nofb') else 's_nop 0')]
    E.mem[128].append(f's_mov_b32 s54, 0x{f32bits(2.0**-60):08x}')
    E.mem[129].append(f's_mov_b32 s55, 0x{f32bits(2.0**60):08x}')
    groups = []
    for qb in range(4):
        for r in range(4):
            b = 160 + ((qb*4 + r) % 8) * 8
            groups.append((qb, r, b))
    after = []
    g = 128 + st + 2
    def place(ops):
        nonlocal g
        used = 0
        for k, (eg, x) in enumerate(ops):
            if x.startswith('s_'):
                if used:
                    g += 1; used = 0
                if g >= 192: return ops[k:]
                E.mem[g].append(x); g += 1
                continue
            cost = 2 if (x.startswith('v_rcp') or x.startswith('buffer_')) else 1
            if used + cost > 2 or (used and not x.startswith('v_')):
                g += 1; used = 0
            if eg > g:
                g = eg; used = 0
            if g >= 192: return ops[k:]
            E.val[g].append((20 + k, x)); used += cost
        if used: g += 1
        return []
    left = place(seq)
    assert not left
    first = True
    for qb, r, b in groups:
        rd = [(128 + 16*qb + 20, f'v_accvgpr_read_b32 v{b+db}, {aOr(qb, db, r)}') for db in range(8)]
        if left or g >= 190:
            left += rd + [(0, x) for x in out_group(qb, r, b, True)]
            continue
        ops = rd + ([(0, 's_waitcnt lgkmcnt(0)')] if first else []) + [(0, x) for x in out_group(qb, r, b, False)]
        first = False
        left = place(ops)
    tail = Out()
    for x in head: tail(x)
    E.emit(tail)
    stamp(tail, 6)
    tail('s_nop 7')
    for _, x in left: tail(x)
    lin = pre_lines + c.l + loop.l + ['    ' + x for x in head] + loop.l + tail.l
    errs += check_hazards(lin, 'core') + check_waits(lin, 'core')
    o.l += c.l
    o('s_branch L_loop_in')
    o('.p2align 6')
    o('L_loop:')
    for x in head: o(x)
    o('L_loop_in:')
    o.l += loop.l + tail.l

def gen_main():
    errs = []
    o = Out()
    o('s_cmp_ge_u32 s2, 256\ns_cbranch_scc1 L_end')
    stamp(o, 0)
    if OPT['stamp']: o('s_memrealtime s[80:81]')
    o(f'''
    s_load_dwordx4 s[8:11], s[0:1], 0         ; q, qk
    s_load_dwordx4 s[32:35], s[0:1], 16
    s_load_dwordx4 s[36:39], s[0:1], 32       ; k_zeros, v_scales
    s_load_dwordx4 s[12:15], s[0:1], 48       ; v_zeros, out
    s_load_dwordx4 s[24:27], s[0:1], 64
    s_memrealtime s[94:95]
    v_lshrrev_b32_e32 v1, 6, v0
    v_and_b32_e32 v2, 63, v0                  ; lane
    v_readfirstlane_b32 s16, v1               ; wave
    v_lshrrev_b32_e32 v3, 4, v2               ; g
    v_and_b32_e32 v7, 15, v2                  ; n
    v_lshlrev_b32_e32 {vD1}, 4, v2
    v_add_u32_e32 {vD2}, 0x1000, {vD1}
    s_and_b32 s20, s2, 7
    s_lshr_b32 s21, s2, 3
    s_lshl_b32 s22, s20, 5
    s_add_u32 s22, s22, s21
    s_lshl_b32 s22, s22, 16
    s_lshl_b32 s23, s16, 14
    s_add_u32 s22, s22, s23
    s_add_u32 s61, s22, 4096
    s_add_u32 s62, s22, 8192
    s_add_u32 s63, s22, 12288
    v_lshlrev_b32_e32 v118, 7, v2
    v_xor_b32_e32 v126, v7, v3
    v_lshlrev_b32_e32 v126, 4, v126
    v_lshl_add_u32 v130, v7, 8, v126
    v_lshl_add_u32 v126, v3, 8, v126            ; Q staging source: (lane/16)*256 + ((lane%16)^(lane/16))*16
    v_xor_b32_e32 v127, 64, v126
    v_xor_b32_e32 v128, 0x80, v126
    v_xor_b32_e32 v129, 0xc0, v126
    s_lshl_b32 s100, s16, 14
    s_add_u32 s100, s100, {2*32768}
    s_cmp_eq_u32 s16, 2
    s_cselect_b32 s100, {3*32768 + 16384}, s100
    s_cmp_eq_u32 s16, 3
    s_cselect_b32 s100, {LDS_QX}, s100
    v_add_u32_e32 v130, s100, v130
    v_xor_b32_e32 v131, 64, v130
    v_xor_b32_e32 v132, 0x80, v130
    v_xor_b32_e32 v133, 0xc0, v130
    s_and_b32 s23, s16, 1
    s_lshl_b32 s48, s20, 20
    s_lshl_b32 s53, s23, 14
    s_add_u32 s48, s48, s53
    s_lshl_b32 s49, s20, 12                   ; head*4096
    s_lshl_b32 s54, s20, 19                   ; head*512KB
    s_lshl_b32 s55, s23, 13
    s_add_u32 s55, s55, s54
    s_mov_b32 s60, 0xffff0000
    s_mov_b32 s93, 0
    s_getreg_b32 s3, hwreg(HW_REG_XCC_ID, 0, 4)
    v_mov_b32_e32 v1, 0
    s_mov_b32 s58, 0x{CSCALE:08x}
    s_mov_b32 s59, 0x{CSCALE:08x}
    s_mov_b32 s51, s21
    s_mov_b32 s52, 0
    s_lshl_b32 s92, s16, 13
    s_mov_b32 s6, {512 << 10}
    s_mov_b32 s7, 0x20000
    s_mov_b32 s30, {V_OFF + (512 << 10)}
    s_mov_b32 s31, 0x20000
    s_mov_b32 s42, 32768
    s_mov_b32 s43, 0x20000
    s_mov_b32 s46, 256
    s_mov_b32 s47, 0x20000
    s_mov_b32 s98, 8192
    s_mov_b32 s99, 0x20000
    s_lshl_b32 s56, s20, 2
    s_add_u32 s56, s56, s16
    s_lshl_b32 s56, s56, 13
    s_add_u32 s56, s56, {FLAG_OFF}
    s_cmp_ge_u32 s16, 2
    s_waitcnt lgkmcnt(0)
    s_cbranch_scc1 L_setv
    s_mov_b32 s40, s36
    s_mov_b32 s41, s37
    s_mov_b32 s36, s34
    s_mov_b32 s37, s35
    s_mov_b32 s32, s10
    s_mov_b32 s33, s11
    s_add_u32 s92, s92, {3*32768}
    s_branch L_setdone
L_setv:
    s_mov_b32 s40, s12                        ; v_zeros
    s_mov_b32 s41, s13
    s_mov_b32 s36, s38                        ; v_scales
    s_mov_b32 s37, s39
    s_add_u32 s55, s55, {V_OFF}
    s_lshl_b32 s23, s23, 6
    s_add_u32 s49, s49, s23
L_setdone:
    s_mov_b32 s34, {8 << 20}
    s_mov_b32 s35, 0x20000
    s_mov_b32 s38, 32768
    s_mov_b32 s39, 0x20000
    s_mov_b32 s10, {16 << 20}
    s_mov_b32 s11, 0x20000
    s_mov_b32 s12, s14
    s_mov_b32 s13, s15
    s_mov_b32 s14, {16 << 20}
    s_mov_b32 s15, 0x20000
    s_add_u32 s4, s26, s55
    s_addc_u32 s5, s27, 0
    s_add_u32 s28, s26, s54
    s_addc_u32 s29, s27, 0
    s_mov_b32 s44, s24
    s_mov_b32 s45, s25
    s_add_u32 s96, s26, s56
    s_addc_u32 s97, s27, 0
    s_lshl_b32 s23, s20, 5
    s_or_b32 s54, s21, s16
    s_cbranch_scc1 L_notag
    s_lshl_b64 s[94:95], s[94:95], 8
    s_or_b32 s94, s94, 0x80
    v_mov_b32_e32 v112, s94
    v_mov_b32_e32 v113, s95
    s_mov_b64 exec, 1
    buffer_store_dwordx2 v[112:113], v1, s[44:47], s23 offen sc1
    s_mov_b64 exec, -1
L_notag:
    v_add_u32_e32 v14, s92, {vD1}''')
    if OPT.get('pf'):
        o(f'''
    s_cmp_lg_u32 s16, 3
    s_cbranch_scc1 L_nopf
    s_getpc_b64 s[88:89]
    s_lshl_b32 s54, s21, 10
    v_add_u32_e32 v134, s54, {vD1}
    global_load_dwordx4 v[136:139], v134, s[88:89]
L_nopf:''')
    stampdq(o, 3)
    dq = Out()
    gen_dequant(dq)
    head = list(o.l)
    o.l += dq.l
    pre = Out()
    pre('s_cmp_lg_u32 s52, 0\ns_cbranch_scc1 L_help_next')
    nq1 = 0
    stamp(pre, 1)
    pre(f'''
    v_cmp_gt_u32_e32 vcc, 32, v2
    v_mov_b32_e32 v116, s3
    s_lshl_b32 s53, s21, 7
    s_mov_b32 s57, {OPT['spin']}
    s_mov_b32 s94, 0
    v_cndmask_b32_e32 v116, 16, v116, vcc
    s_waitcnt vmcnt({nq1})
L_tag:
    v_cmp_eq_u64_e32 vcc, 0, v[112:113]
    s_cbranch_vccnz L_tagslow
    v_add_u32_e32 v116, v116, v112
    v_mov_b32_e32 v117, v113
    s_mov_b64 exec, 1
    buffer_store_dwordx2 v[116:117], v1, s[96:99], s53 offen
    s_mov_b64 exec, -1
L_nopub:''')
    stampp(pre, 4)
    if OPT['barfirst']:
        qdma(pre, range(0, OPT['barfirst'] - 1))
        pre('s_barrier')
    qdma(pre, range(max(0, OPT['barfirst'] - 1), 8))
    stampp(pre, 7)
    pre(POLL)
    qdma(pre, range(8, 16 - OPT['nql']))
    stampp(pre, 5)
    if not OPT['barfirst']: pre('s_waitcnt lgkmcnt(0)\ns_barrier')
    stamp(pre, 2)
    if OPT['stamp']: pre('s_waitcnt lgkmcnt(0)')
    o.l += pre.l
    ik, iv = dq.l.index('L_dq_v:'), dq.l.index('L_dq_out:')
    for path, nm in ((dq.l[:ik] + dq.l[iv:], 'dqk'), (dq.l[:11] + dq.l[ik:], 'dqv')):
        errs += check_hazards(head + path + pre.l, nm) + check_waits(head + path + pre.l, nm)
    gen_core(o, errs, pre.l)
    o('L_fin:')
    if OPT['stamp']:
        o(f'''
    s_memtime s[86:87]
    s_waitcnt vmcnt(0)
    s_memtime s[84:85]
    s_memrealtime s[82:83]
    s_waitcnt lgkmcnt(0)
    s_mov_b32 s88, s26
    s_mov_b32 s89, s27
    s_mov_b32 s90, 0x10000000
    s_mov_b32 s91, 0x20000
    s_lshl_b32 s101, s2, 2
    s_add_u32 s101, s101, s16
    s_lshl_b32 s92, s101, 7
    s_add_u32 s92, s92, {16 << 20}
    s_lshl_b32 s101, s101, 10
    s_add_u32 s101, s101, {17 << 20}''')
        if OPT.get('dbg'):
            o(f'''
    s_cmp_lg_u32 s16, 0
    s_cbranch_scc1 L_nodbg
    s_mov_b32 s53, 8
    s_cmp_eq_u32 s2, 9
    s_cbranch_scc1 L_dodbg
    s_mov_b32 s53, 40
    s_cmp_eq_u32 s2, 254
    s_cbranch_scc0 L_nodbg
L_dodbg:
    s_sub_u32 s54, s74, s64
    s_sub_u32 s55, s76, s64
    s_sub_u32 s56, s84, s64
    s_sub_u32 s57, s82, s80
    v_mov_b32_e32 v16, s54
    v_mov_b32_e32 v17, s55
    v_mov_b32_e32 v18, s56
    v_mov_b32_e32 v19, s57
    v_mov_b32_e32 v20, s80
    v_mov_b32_e32 v21, s82
    s_mov_b64 exec, 1
    buffer_store_dwordx4 v[16:19], v1, s[44:47], s53 offen
    buffer_store_dwordx2 v[20:21], v1, s[44:47], s53 offen offset:16
    s_mov_b64 exec, -1
    s_nop 1
L_nodbg:''')
        for k in range(24):
            o(f'v_mov_b32_e32 v{16+k}, s{64+k}')
        o('v_mov_b32_e32 v40, 0')
        for k in range(6):
            o(f'buffer_store_dwordx4 {rng("v", 16+4*k, 4)}, v40, s[88:91], s92 offen offset:{16*k}')
        if OPT['stamp'] >= 2:
            o(f'buffer_store_dwordx4 v[240:243], {vD1}, s[88:91], s101 offen')
    o('L_end:\ns_endpgm')
    o(f'''
L_tagslow:
    s_sub_u32 s57, s57, 1
    s_cselect_b32 s93, 1, 0
    s_cbranch_scc1 L_nopub
    s_sleep 1
    buffer_load_dwordx2 v[112:113], v1, s[44:47], s23 offen sc1
    s_waitcnt vmcnt(0)
    s_branch L_tag
L_pollslow:
    s_cmp_eq_u32 s93, 2
    s_cbranch_scc1 L_polldone
    s_cmp_eq_u32 s93, 1
    s_cbranch_scc1 L_help_nopub
    s_or_b32 s54, vcc_lo, vcc_hi
    s_andn2_b32 s54, s101, s54
    s_cselect_b32 s55, 0, 1
    s_sub_u32 s57, s57, 1
    s_cselect_b32 s56, 1, 0
    s_cmp_lt_u32 s57, {OPT['spin'] - OPT['upg'] if OPT['spin'] > OPT['upg'] else 0}
    s_cselect_b32 s55, 1, s55
    s_or_b32 s55, s55, s56
    s_cmp_gt_u32 s55, s94
    s_cbranch_scc0 L_noupg
    s_mov_b32 s94, 1
    s_add_u32 s55, s53, 4096
    buffer_wbl2 sc1
    s_waitcnt vmcnt(0)
    s_mov_b32 exec_lo, 0
    s_mov_b32 exec_hi, 1
    buffer_store_dwordx2 v[116:117], v1, s[96:99], s55 offen sc1
    s_mov_b64 exec, -1
L_noupg:
    s_cmp_lg_u32 s56, 0
    s_cbranch_scc1 L_help_nopub
    s_cmp_eq_u32 s54, 0
    s_cbranch_scc1 L_polldone
    buffer_load_dwordx2 v[114:115], v118, s[96:99], 0 offen sc1
    s_waitcnt vmcnt(0)
    s_cmp_eq_u32 s95, 1
    s_cbranch_scc1 L_chk1
    s_branch L_chk2
L_polldone:
    s_cmp_eq_u32 s95, 1
    s_cbranch_scc1 L_ok1
    s_branch L_ok2
L_help_nopub:
    s_waitcnt lgkmcnt(0)
    s_mov_b32 s92, s100
    v_add_u32_e32 v14, s92, {vD1}
    s_mov_b32 s52, 31
    s_branch L_help_go
L_help_next:
    s_sub_u32 s52, s52, 1
    s_cmp_eq_u32 s52, 0
    s_cbranch_scc1 L_help_done
L_help_go:
    s_waitcnt vmcnt(0)
    s_add_u32 s51, s21, s52
    s_and_b32 s51, s51, 31
    s_branch L_dq
L_help_done:
    s_waitcnt vmcnt(0) lgkmcnt(0)
    s_mov_b32 s93, 2
    s_branch L_polldone''')
    fb = Out()
    def kloads(off):
        for f in range(16):
            if f % 8 == 0: fb(f's_add_u32 s53, s17, {off + (f // 8)*8192}')
            v = vD1 if f % 8 < 4 else vD2
            k = f if off == 0 else 16 + 2*(f % 8) + f // 8
            fb(f'buffer_load_dwordx4 {aF(k)}, {v}, s[28:31], s53 offen offset:{1024*(f%4)} sc1')
        fb('s_waitcnt vmcnt(0)')
    fb('L_fallback:\ns_waitcnt vmcnt(0) lgkmcnt(0)\ns_nop 7\ns_nop 7')
    for q in range(4): fb(f'v_mov_b32_e32 {vL[q]}, 0xff800000')
    fb('s_mov_b32 s17, 0\nL_maxloop:')
    kloads(0)
    for i in range(64): fb(qk_mfma(i // 16, (i // 4) % 4, i % 4))
    fb('s_nop 7')
    for kb in range(4):
        for qb in range(4):
            for r in (0, 2):
                fb(f'v_max3_f32 {vL[qb]}, {vL[qb]}, {vSr(kb, qb, r)}, {vSr(kb, qb, r+1)}')
    fb(f's_add_u32 s17, s17, 16384\ns_cmp_lt_u32 s17, {512 << 10}\ns_cbranch_scc1 L_maxloop')
    for x in lane_reduce('v_max_f32_e32', 16): fb(x)
    for q in range(4):
        for r in range(4): fb(f'v_sub_f32_e32 v{C0 + 4*q + r}, 0, {vL[q]}')
    for r in range(128): fb(f'v_accvgpr_write_b32 a{r}, 0')
    for q in range(4): fb(f'v_mov_b32_e32 {vL[q]}, 0')
    fb('s_mov_b32 s17, 0\nL_p2loop:')
    kloads(0)
    for i in range(64): fb(qk_mfma(i // 16, (i // 4) % 4, i % 4, True))
    kloads(V_OFF)
    for kb in range(4):
        for qb in range(4):
            el = [sm_elem(0, kb, qb, r) for r in range(4)]
            for r in range(4): fb(el[r][0][2])
            for r in range(4):
                for _, _, tx in el[r][1:]: fb(tx)
    fb('s_nop 1')
    for i in range(64): fb(pv_mfma(i // 8, (i // 2) % 4, i % 2, 0))
    fb(f's_add_u32 s17, s17, 16384\ns_cmp_lt_u32 s17, {512 << 10}\ns_cbranch_scc1 L_p2loop')
    for x in lane_reduce('v_add_f32_e32', 16): fb(x)
    rc, dw, dr = factor_ops()
    for x in rc + ['s_nop 0'] + dw + ['s_waitcnt lgkmcnt(0)'] + dr + ['s_waitcnt lgkmcnt(0)']: fb(x)
    for qb in range(4):
        for r in range(4):
            b = 160 + ((qb*4 + r) % 8) * 8
            for db in range(8): fb(f'v_accvgpr_read_b32 v{b+db}, {aOr(qb, db, r)}')
            for x in out_group(qb, r, b, True): fb(x)
    fb('s_branch L_fin')
    i1, i2 = fb.l.index('L_maxloop:'), fb.l.index('L_p2loop:')
    errs += check_hazards(fb.l, 'fb') + check_waits(fb.l, 'fb')
    p2 = fb.l[i2:[k for k, x in enumerate(fb.l) if 'L_p2loop' in x][-1] + 1]
    errs += check_hazards(p2 + p2, 'fb2')
    o.l += fb.l
    return o.l, errs

HEADER = open('cdna_kernels/' + NAME + '.s.ref').read().split('; @launch')[0]

def main():
    mn, errs = gen_main()
    for e in errs:
        print(e, file=sys.stderr)
    if errs and not OPT.get('nofb'):
        sys.exit(1)
    nm = NAME + '_kernel'
    txt = HEADER + f'; @launch grid=(256,1,1) block=(256,1,1) lds={LDS_TOTAL}\n'
    txt += '.amdgcn_target "amdgcn-amd-amdhsa--gfx950"\n.text\n'
    txt += f'.globl {nm}\n.p2align 8\n.type {nm},@function\n{nm}:\n' + '\n'.join(mn) + '\n'
    txt += f'''.section .rodata,"a"
.p2align 6
.amdhsa_kernel {nm}
  .amdhsa_next_free_vgpr 512
  .amdhsa_next_free_sgpr 102
  .amdhsa_accum_offset 256
  .amdhsa_group_segment_fixed_size 0
  .amdhsa_kernarg_size 80
  .amdhsa_user_sgpr_count 2
  .amdhsa_user_sgpr_kernarg_segment_ptr 1
  .amdhsa_system_sgpr_workgroup_id_x 1
  .amdhsa_float_denorm_mode_32 3
.end_amdhsa_kernel
'''
    open(sys.argv[1], 'w').write(txt)

main()
```

```python
import re

def regs_of(tok):
    tok = tok.strip()
    neg = tok.lstrip('-')
    if neg.startswith('abs(') and neg.endswith(')'):
        neg = neg[4:-1]
    if neg.startswith('|') and neg.endswith('|'):
        neg = neg[1:-1]
    m = re.fullmatch(r'([vas])(\d+)', neg)
    if m:
        return [(m.group(1), int(m.group(2)))]
    m = re.fullmatch(r'([vas])\[(\d+):(\d+)\]', neg)
    if m:
        return [(m.group(1), i) for i in range(int(m.group(2)), int(m.group(3)) + 1)]
    if neg in ('vcc', 'vcc_lo', 'vcc_hi'):
        return [('vcc', 0)]
    if neg == 'm0':
        return [('m0', 0)]
    if neg in ('exec', 'exec_lo', 'exec_hi'):
        return [('exec', 0)]
    return []

TRANS = ('v_exp_f32', 'v_log_f32', 'v_rcp_f32', 'v_rsq_f32', 'v_sqrt_f32', 'v_sin_f32', 'v_cos_f32')

class I:
    def __init__(self, text):
        self.text = text
        t = text.split(';')[0].strip()
        self.mn = t.split()[0]
        rest = t[len(self.mn):].strip()
        ops, depth, cur = [], 0, ''
        for ch in rest:
            if ch in '[(':
                depth += 1
            if ch in '])':
                depth -= 1
            if ch == ',' and depth == 0:
                ops.append(cur.strip()); cur = ''
            else:
                cur += ch
        if cur.strip():
            ops.append(cur.strip())
        self.mods = []
        if ops:
            parts = ops[-1].split()
            ops[-1] = parts[0]
            self.mods = parts[1:]
        self.ops = ops
        mn = re.sub(r'_(e32|e64|sdwa|dpp)$', '', self.mn)
        self.base = mn
        self.rd, self.wr = [], []
        self.kind = 'other'
        R = lambda k: regs_of(ops[k]) if k < len(ops) else []
        if mn.startswith('v_mfma'):
            self.kind = 'mfma'
            self.wr = R(0); self.A = R(1); self.B = R(2); self.C = R(3)
            self.rd = self.A + self.B + self.C
            self.passes = 8 if '32x32' in mn else 2 if '4x4x4' in mn else 4
        elif mn.startswith('v_cmp'):
            self.kind = 'valu'
            self.wr = R(0); self.rd = R(1) + R(2)
        elif mn in ('v_readfirstlane_b32', 'v_readlane_b32'):
            self.kind = 'valu'
            self.wr = R(0); self.rd = sum((R(k) for k in range(1, len(ops))), [])
        elif mn.startswith('v_permlane') and 'swap' in mn:
            self.kind = 'valu'
            self.wr = R(0) + R(1); self.rd = R(0) + R(1)
        elif mn.startswith('v_'):
            self.kind = 'valu'
            self.wr = R(0)
            start = 1
            if mn in ('v_add_co_u32', 'v_addc_co_u32', 'v_sub_co_u32'):
                self.wr += R(1); start = 2
            self.rd = sum((R(k) for k in range(start, len(ops))), [])
            if mn in ('v_fmac_f32', 'v_dot2c_f32_bf16'):
                self.rd += R(0)
            if mn == 'v_nop':
                self.wr = []
        elif mn.startswith('ds_read') or mn.startswith('ds_bpermute') or mn.startswith('ds_swizzle'):
            self.kind = 'ds'
            self.wr = R(0); self.rd = sum((R(k) for k in range(1, len(ops))), [])
        elif mn.startswith('ds_write') or mn.startswith('ds_'):
            self.kind = 'ds'
            self.rd = sum((R(k) for k in range(0, len(ops))), [])
        elif mn.startswith('buffer_load') or mn.startswith('global_load'):
            self.kind = 'vmem'
            self.lds = ('lds' in self.mods) or ('_lds_' in mn)
            if self.lds:
                self.rd = sum((R(k) for k in range(0, len(ops))), []) + [('m0', 0)]
            else:
                self.wr = R(0); self.rd = sum((R(k) for k in range(1, len(ops))), [])
        elif mn.startswith('buffer_store') or mn.startswith('global_store') or mn.startswith('buffer_atomic') or mn.startswith('global_atomic'):
            self.kind = 'vmem'
            self.store = True
            self.rd = sum((R(k) for k in range(0, len(ops))), [])
            if mn.startswith('buffer_'):
                self.data = R(0)
            else:
                self.data = R(1)
            if 'atomic' in mn and 'sc0' in self.mods:
                self.wr = R(0)
        elif mn in ('buffer_inv', 'buffer_wbl2'):
            self.kind = 'vmem'
        elif mn.startswith('s_load') or mn in ('s_memtime', 's_memrealtime'):
            self.kind = 'smem'
            self.wr = R(0); self.rd = R(1)
        elif mn.startswith('s_cmp') or mn.startswith('s_bitcmp'):
            self.kind = 'salu'
            self.rd = R(0) + R(1)
        elif mn in ('s_waitcnt', 's_barrier', 's_nop', 's_endpgm', 's_setprio', 's_sleep', 's_branch') or mn.startswith('s_cbranch'):
            self.kind = 'ctl'
        elif mn.startswith('s_'):
            self.kind = 'salu'
            self.wr = R(0); self.rd = sum((R(k) for k in range(1, len(ops))), [])
            if 'saveexec' in mn:
                self.wr += [('exec', 0)]
        self.trans = mn in TRANS
        self.states = 1
        if mn == 's_nop':
            self.states = int(ops[0], 0) + 1

def ov(a, b):
    return bool(set(a) & set(b))

def check_hazards(lines, name=''):
    ins = [I(l) for l in lines if l.strip() and not l.strip().startswith(';') and not l.strip().endswith(':') and not l.strip().startswith('.')]
    errs = []
    n = len(ins)
    for j, c in enumerate(ins):
        dist = 0
        for i in range(j - 1, max(-1, j - 40), -1):
            p = ins[i]
            need = 0
            why = ''
            if p.kind == 'mfma':
                big = {8: 12, 4: 8, 2: 5}[p.passes]
                if c.kind == 'mfma':
                    if ov(p.wr, c.A + c.B):
                        need, why = big, 'mfma D -> mfma A/B'
                    if ov(p.wr, c.C):
                        if not (p.wr == c.C and p.passes == c.passes):
                            need, why = max(need, {8: 10, 4: 6, 2: 4}[p.passes]), 'mfma D -> mfma C partial'
                        elif p.passes == 2:
                            need, why = max(need, 2), 'mfma 2-pass chain'
                elif c.kind == 'valu':
                    if ov(p.wr, c.rd + c.wr):
                        need, why = big, 'mfma D -> valu'
                    if ov(p.C, c.wr):
                        w = {8: 7, 4: 3, 2: 1}[p.passes]
                        if w > need:
                            need, why = w, 'mfma C read -> valu write'
                elif c.kind in ('ds', 'vmem'):
                    if ov(p.wr, c.rd + c.wr):
                        need, why = big, 'mfma D -> mem'
            elif p.kind == 'valu':
                vw = [r for r in p.wr if r[0] in 'va']
                sw = [r for r in p.wr if r[0] in ('s', 'vcc')]
                if c.kind == 'mfma' and ov(vw, c.rd):
                    need, why = 2, 'valu -> mfma'
                if c.kind == 'valu':
                    if p.trans and not c.trans and ov(vw, c.rd):
                        need, why = max(need, 1), 'trans -> valu'
                    if c.base.startswith('v_permlane') and ov(vw, c.rd):
                        need, why = max(need, 2), 'valu -> permlane'
                    if c.mn.endswith('_dpp') and ov(vw, c.rd):
                        need, why = max(need, 2), 'valu -> dpp'
                    if c.base in ('v_readfirstlane_b32', 'v_readlane_b32') and ov(vw, c.rd):
                        need, why = max(need, 1), 'valu -> readlane'
                    if ov(sw, c.rd):
                        need, why = max(need, 2), 'valu sgpr -> valu'
                    if (p.mn.endswith('_sdwa')) and ov(vw, c.rd + c.wr):
                        need, why = max(need, 1), 'sdwa -> valu'
                if c.kind == 'vmem' and ov(sw, c.rd):
                    need, why = 5, 'valu sgpr -> vmem'
                if c.kind in ('salu',) and ov(sw, c.rd):
                    need, why = max(need, 1), 'valu sgpr -> salu (pad)'
            elif p.kind == 'salu':
                if ('m0', 0) in p.wr and c.kind == 'vmem' and getattr(c, 'lds', False):
                    need, why = 1, 'm0 -> lds dma'
            elif p.kind == 'vmem' and getattr(p, 'store', False):
                if len(p.data) >= 3 and ov(p.data, c.wr):
                    need, why = (2 if c.kind == 'valu' else 1), 'store data WAR'
            if need > dist:
                errs.append(f'{name}: hazard "{why}" need {need} have {dist}:\n   [{i}] {p.text.strip()}\n   [{j}] {c.text.strip()}')
            dist += p.states
            if dist >= 20:
                break
    return errs

def check_waits(lines, name='', lg_init=None, vm_init=None):
    ins = [I(l) for l in lines if l.strip() and not l.strip().startswith(';') and not l.strip().endswith(':') and not l.strip().startswith('.')]
    lg, vm = list(lg_init or []), list(vm_init or [])
    errs = []
    for j, c in enumerate(ins):
        if c.mn == 's_waitcnt':
            t = c.text.split(';')[0]
            m = re.search(r'vmcnt\((\d+)\)', t)
            if m:
                k = int(m.group(1))
                while len(vm) > k:
                    vm.pop(0)
            m = re.search(r'lgkmcnt\((\d+)\)', t)
            if m:
                k = int(m.group(1))
                if k > 0 and any(x[0] == 'smem' for x in lg):
                    errs.append(f'{name}: counted lgkmcnt with smem outstanding at [{j}]')
                while len(lg) > k:
                    lg.pop(0)
            continue
        touched = c.rd + c.wr
        for q in (lg, vm):
            for kind, w, txt in q:
                if ov(w, touched):
                    errs.append(f'{name}: unwaited load result touched:\n   load {txt.strip()}\n   [{j}] {c.text.strip()}')
        if c.kind == 'ds':
            lg.append(('ds', c.wr, c.text))
            if len(lg) > 15:
                lg.pop(0)
        elif c.kind == 'smem':
            lg.append(('smem', c.wr, c.text))
        elif c.kind == 'vmem':
            vm.append(('vm', c.wr, c.text))
            if len(vm) > 63:
                errs.append(f'{name}: vmcnt overflow at [{j}]')
    return errs

def isize(text):
    i = I(text)
    mn = i.mn
    lit = False
    for o in i.ops:
        if re.fullmatch(r'-?(0x[0-9a-fA-F]+|\d+)', o):
            v = int(o, 0)
            if not (-16 <= v <= 64):
                lit = True
    if i.kind in ('mfma', 'ds', 'vmem', 'smem'):
        return 8
    if i.kind == 'ctl':
        return 4
    if i.kind == 'salu':
        if mn.startswith('s_movk') or mn.startswith('s_addk') or mn.startswith('s_getreg') or mn.startswith('s_cmpk'):
            return 4
        return 8 if lit else 4
    if i.kind == 'valu':
        if mn.endswith('_e32'):
            return 8 if lit else 4
        return 8
    raise ValueError(text)

def fix_hazards(prefix, lines, name=''):
    lines = list(lines)
    isins = lambda l: l.strip() and not l.strip().startswith(';') and not l.strip().endswith(':') and not l.strip().startswith('.')
    npre = len([l for l in prefix if isins(l)])
    for _ in range(2000):
        errs = check_hazards(prefix + lines, name)
        errs = [e for e in errs if int(re.findall(r'\[(\d+)\]', e)[1]) >= npre]
        if not errs:
            return lines
        e = errs[0]
        need, have = map(int, re.search(r'need (\d+) have (\d+)', e).groups())
        j = int(re.findall(r'\[(\d+)\]', e)[1]) - npre
        pos = [k for k, l in enumerate(lines) if isins(l)][j]
        lines.insert(pos, f'    s_nop {need - have - 1}')
    raise RuntimeError('fix_hazards did not converge')
```

```python
import sys, struct, math
from asmlib import *

NAME = 'standalone__kv_cache_quant_int4_int2_kv_with_per_channel_or_per_token_scales__prompt'
OPT = dict(go=1, bsplit=8, zpos=1, bsleep=4, pull=6, wb=1, nb1=11, barfirst=1, nql=0, nqb=0, nqa=0, touch=1, upg=8, pol='nt', stamp=0, d=8, st=7, dma0=6, dmastep=10, spin=20000, opol='sc0_sc1', rp=0, pairbar=0)
for a in sys.argv[2:]:
    k, v = a.split('=', 1)
    OPT[k] = eval(v)

def f32bits(x):
    return struct.unpack('<I', struct.pack('<f', x))[0]

CSCALE = f32bits(128 ** -0.5 * math.log2(math.e))
V_OFF = 4 << 20
FLAG_OFF = 9 << 20
MF = 'v_mfma_f32_16x16x32_bf16'
D, RP = OPT['d'], OPT['rp']
def flags(x): return (' ' + x.replace('_', ' ')) if x else ''
POL, OPOL, SC1 = flags(OPT['pol']), flags(OPT['opol']), ' sc1'

class Out:
    def __init__(self):
        self.l = []
    def __call__(self, s):
        for x in s.strip('\n').split('\n'):
            if x.strip():
                self.l.append(x.strip() if x.strip().endswith(':') or x.startswith('.') else '    ' + x.strip())

def rng(p, b, n): return f'{p}[{b}:{b+n-1}]'
def aO(qb, db): return rng('a', (qb*8+db)*4, 4)
def aOr(qb, db, r): return f'a{(qb*8+db)*4 + r}'
def aQ(qb, ks): return rng('a', 128 + (qb*4+ks)*4, 4)
def aF(k): return rng('a', 192 + (k % 16)*4, 4)
S0, P0, C0, T0 = 16, 80, 144, 144
def vS(kb, qb): return rng('v', S0 + (kb*4+qb)*4, 4)
def vSr(kb, qb, r): return f'v{S0 + (kb*4+qb)*4 + r}'
def vP(buf, t, qb): return rng('v', P0 + buf*32 + (t*4+qb)*4, 4)
def vPr(buf, t, qb, i): return f'v{P0 + buf*32 + (t*4+qb)*4 + i}'
def vC(qb): return rng('v', C0 + qb*4, 4)
RS = OPT.get('rs', 0)
vL = [f'v{224 + 4*q}' for q in range(4)] if RS else ['v8', 'v9', 'v10', 'v11']
vRd, vD1, vD2 = 'v4', 'v5', 'v6'
LDS_RING = 131072
LDS_SCR = LDS_RING
LDS_QX = LDS_RING + 4096
LDS_TOTAL = LDS_QX + 16384

def frag_off(k):
    if k < 16:
        return k * 1024
    db, t = (k - 16) // 2, (k - 16) % 2
    return 16384 + t * 8192 + db * 1024

def sm_elem(buf, kb, qb, r):
    s = vSr(kb, qb, r)
    ops = [(0, 0, f'v_exp_f32_e32 {s}, {s}')]
    if not RS:
        ops.append((1, 1, f'v_add_f32_e32 {vL[qb]}, {vL[qb]}, {s}'))
    if r & 1:
        d = vPr(buf, kb//2, qb, (kb%2)*2 + r//2)
        pk = f'v_perm_b32 {d}, {s}, {vSr(kb, qb, r-1)}, s3' if OPT.get('trunc') else f'v_cvt_pk_bf16_f32 {d}, {vSr(kb, qb, r-1)}, {s}'
        ops.append((3 if RS else 1, 2, pk))
    if RS and r == 3:
        p = P0 + buf*32 + ((kb//2)*4 + qb)*4 + (kb%2)*2
        l = rng('v', 224 + 4*qb, 4)
        ops.append((OPT.get('rsd', 6), 30, f'v_mfma_f32_4x4x4_16b_bf16 {l}, v[8:9], {rng("v", p, 2)}, {l}'))
    return ops

def l_init():
    if not RS: return [f'v_mov_b32_e32 {vL[q]}, 0' for q in range(4)]
    return [f'v_mov_b32_e32 v{224 + k}, 0' for k in range(16)] + ['v_mov_b32_e32 v8, 0x3f803f80', 'v_mov_b32_e32 v9, 0x3f803f80']

def sm_ops(buf, order=None):
    order = order or [(e // 4, e % 4) for e in range(16)]
    return [(2*e + dg, pr, tx) for e in range(64) for dg, pr, tx in sm_elem(buf, order[e // 4][0], order[e // 4][1], e % 4)]

def qk_mfma(kb, qb, ks, cinit=False):
    c = (vC(qb) if cinit else '0') if ks == 0 else vS(kb, qb)
    return f'{MF} {vS(kb, qb)}, {aF(kb*4+ks)}, {aQ(qb, ks)}, {c}'

def pv_mfma(db, qb, t, buf):
    return f'{MF} {aO(qb, db)}, {vP(buf, t, qb)}, {aF(16 + db*2 + t)}, {aO(qb, db)}'

def dma(grp, i, srd='s[4:7]', so='s17'):
    v = vD1 if grp == 0 else vD2
    return f'buffer_load_dwordx4 {v}, {srd}, {so} offen offset:{1024*i}{SC1} lds'

class Block:
    def __init__(self, G, carry):
        self.G = G
        self.mf = [None] * G
        self.mem = [[] for _ in range(G)]
        self.val = [[] for _ in range(G + 140)]
        for g, lst in carry.items():
            self.val[g] += lst
        self.reads = [(4*f + RP - 4*D, (0, f)) for f in range(D)]
        self.waits = []
    def read(self, g, ident, f, off):
        self.mem[g].append(f'ds_read_b128 {aF(f)}, {vRd} offset:{off}')
        self.reads.append((g, ident))
    def finish(self):
        self.reads.sort(key=lambda r: r[0])
        ids = [r[1] for r in self.reads]
        for gw, need in self.waits:
            if gw == 0: continue
            p = max(ids.index(x) for x in need)
            assert self.reads[p][0] < gw - 1, (gw, need)
            w = len([1 for r in self.reads[p+1:] if r[0] < gw - 1])
            self.mem[gw - 1].insert(0, f's_waitcnt lgkmcnt({w})')
        return {g - self.G: self.val[g] for g in range(self.G, len(self.val)) if self.val[g]}
    def stage(self, k, par, nxt=True):
        g0 = 128 * k
        for i in range(64):
            self.mf[g0 + i] = qk_mfma(i // 16, (i // 4) % 4, i % 4)
            self.mf[g0 + 64 + i] = pv_mfma(i // 8, (i // 2) % 4, i % 2, par)
        for rg, pr, tx in sm_ops(par ^ 1):
            self.val[g0 + OPT['st'] + rg].append((pr, tx))
        for f in range(D, 32 + (D if nxt else 0)):
            g = g0 + 4*f + RP - 4*D
            if f in (30, 31): g -= OPT['pull']
            if f < 32: self.read(g, (k, f), f, par*32768 + frag_off(f))
            else: self.read(g, (k + 1, f - 32), f, (par ^ 1)*32768 + frag_off(f - 32))
        for m in range(8):
            self.waits.append((g0 + 16*m, [(k, 4*m + j) for j in range(4)]))
    def gap_lines(self, g):
        v = [t for _, t in sorted(self.val[g], key=lambda z: z[0])]
        m = self.mem[g]
        if OPT.get('no_exp'): v = [t for t in v if not t.startswith('v_exp')]
        if OPT.get('no_add'): v = [t for t in v if not t.startswith('v_add')]
        if OPT.get('no_cvt'): v = [t for t in v if not t.startswith('v_cvt')]
        if OPT.get('no_lds'): m = [t for t in m if not t.startswith('ds_read')]
        if OPT.get('no_dma'): m = [t for t in m if not t.startswith('buffer_load')]
        if any(t.endswith(':') for t in m):
            return m, v
        sc = [t for t in m if t.startswith('s_')]
        return sc, [t for t in m if not t.startswith('s_')] + v
    def emit(self, o, upto=None):
        for g in range(upto if upto is not None else self.G):
            o(self.mf[g])
            sc, ve = self.gap_lines(g)
            for x in sc + ve: o(x)

def stampdq(o, k):
    if OPT.get('stampdq'):
        o(f's_memtime s[{64+2*k}:{65+2*k}]')

def stampp(o, k):
    if OPT.get('stampp'):
        o(f's_memtime s[{64+2*k}:{65+2*k}]')

def stamp(o, k):
    if OPT.get('stampp') and k in (4, 5, 7):
        return
    if OPT.get('stampdq') and k in (3, 4, 5, 7):
        return
    if OPT['stamp']:
        o(f's_memtime s[{64+2*k}:{65+2*k}]')

NINIT = 0
def init_work(o):
    global NINIT
    NINIT += 1
    o(f's_cmp_lg_u32 s52, 0\ns_cbranch_scc1 L_noinit{NINIT}')
    for r in range(128):
        o(f'v_accvgpr_write_b32 a{r}, 0')
    o(f'L_noinit{NINIT}:')

def qdma(o, idx):
    idx = list(idx)
    for i in idx:
        if i % 4 == 0 or i == idx[0]:
            o(f's_add_u32 m0, s100, {(i // 4)*4096}')
            o('s_nop 0')
        so = 's22' if i < 4 else f's{60 + i // 4}'
        o(f'buffer_load_dwordx4 v{126 + i % 4}, s[8:11], {so} offen offset:{1024*(i % 4)}{POL} lds')
    return len(idx)

def qreads(o, qbs):
    for qb in qbs:
        for ks in range(4):
            o(f'ds_read_b128 {aQ(qb, ks)}, v{130 + ks} offset:{4096*qb}')

POLL = 'buffer_load_dwordx2 v[114:115], v118, s[96:99], 0 offen sc1'

def gen_dequant(o):
    T = T0
    NT = 4 if OPT.get('touch') else 0
    NB1 = OPT['nb1']
    def dload(x):
        gs, j = x // 8, x % 8
        so = 's53' if j < 4 else 's54'
        o(f'buffer_load_dwordx4 {rng("v", T + gs*32 + j*4, 4)}, v12, s[32:35], {so} offen offset:{512*(4*gs + j%4)}{POL}')
    def dwait(x, young):
        issued = min(16, NB1 + x)
        extra = young if x < NB1 else young - NT
        o(f's_waitcnt vmcnt({issued - x - 1 + extra})')
        if NB1 + x < 16: dload(NB1 + x)
    def data_loads():
        for x in range(NB1): dload(x)
        if OPT.get('touch'):
            o(f'''
            buffer_load_dword v122, v1, s[4:7], s55 offen sc1
            buffer_load_dword v123, v1, s[96:99], 0 offen sc1
            buffer_load_dword v124, v1, s[12:15], s22 offen sc1
            buffer_load_dword v125, v1, s[8:11], s22 offen''')
        stampdq(o, 4)
        init_work(o)
        stampdq(o, 5)
    def mid(gs, j):
        if gs == 0 and j == 0: stampdq(o, 7)
        if gs == 1 and j == 0:
            o('buffer_load_dwordx2 v[112:113], v1, s[44:47], s23 offen sc1')
            return 1
        return 0
    o(f'''
L_dq:
    s_lshl_b32 s53, s51, 15
    s_add_u32 s53, s53, s48
    s_add_u32 s54, s53, 8192
    s_lshl_b32 s55, s51, 14
    v_lshrrev_b32_e32 v13, 5, v2              ; h
    v_and_b32_e32 v120, 31, v2                 ; m
    v_lshlrev_b32_e32 v12, 12, v13
    v_lshl_add_u32 v12, v120, 4, v12           ; h*8*512 + m*16
    s_cmp_ge_u32 s16, 2
    s_cbranch_scc1 L_dq_v
    s_lshr_b32 s56, s51, 1
    s_lshl_b32 s56, s56, 8
    s_add_u32 s56, s56, s49
    v_lshlrev_b32_e32 v121, 3, v120             ; m*8
    buffer_load_dwordx2 v[208:209], v121, s[36:39], s56 offen
    buffer_load_dwordx2 v[210:211], v121, s[40:43], s56 offen''')
    data_loads()
    o(f'''
    v_lshrrev_b32_e32 v119, 1, v120
    v_lshlrev_b32_e32 v119, 8, v119
    v_and_b32_e32 v120, 1, v120
    v_lshl_add_u32 v119, v120, 3, v119
    v_lshl_add_u32 v119, v13, 7, v119
    v_add_u32_e32 v119, s92, v119               ; LDS: (m/2)*256 + (m%2)*8 + h*128
    s_waitcnt vmcnt({NB1 + NT})
    v_lshlrev_b32_e32 v212, 16, v208
    v_and_b32_e32 v213, s60, v208
    v_lshlrev_b32_e32 v214, 16, v209
    v_and_b32_e32 v215, s60, v209
    v_lshlrev_b32_e32 v216, 16, v210
    v_and_b32_e32 v217, s60, v210
    v_lshlrev_b32_e32 v218, 16, v211
    v_and_b32_e32 v219, s60, v211
    v_pk_mul_f32 v[212:213], v[212:213], s[58:59]
    v_pk_mul_f32 v[214:215], v[214:215], s[58:59]
    v_pk_mul_f32 v[216:217], v[216:217], v[212:213] neg_lo:[1,0] neg_hi:[1,0]
    v_pk_mul_f32 v[218:219], v[218:219], v[214:215] neg_lo:[1,0] neg_hi:[1,0]''')
    young = NT
    for gs in range(2):
        for j in range(8):
            dwait(gs*8 + j, young)
            young += mid(gs, j)
            b = T + gs*32 + j*4
            for c in range(4): o(f'v_cvt_f32_i32_e32 v{b+c}, v{b+c}')
            o(f'v_pk_fma_f32 {rng("v", b, 2)}, {rng("v", b, 2)}, v[212:213], v[216:217]')
            o(f'v_pk_fma_f32 {rng("v", b+2, 2)}, {rng("v", b+2, 2)}, v[214:215], v[218:219]')
            o(f'v_cvt_pk_bf16_f32 v{b}, v{b}, v{b+1}')
            o(f'v_cvt_pk_bf16_f32 v{b+1}, v{b+2}, v{b+3}')
            o(f'ds_write_b64 v119, {rng("v", b, 2)} offset:{(j // 4)*4096 + (4*gs + j % 4)*16}')
    o('s_branch L_dq_out')
    o(f'''
L_dq_v:
    s_lshl_b32 s56, s51, 7
    s_add_u32 s56, s56, s49
    v_lshlrev_b32_e32 v121, 4, v13             ; h*16
    buffer_load_dwordx4 v[208:211], v121, s[36:39], s56 offen
    buffer_load_dwordx4 v[212:215], v121, s[36:39], s56 offen offset:32
    buffer_load_dwordx4 v[216:219], v121, s[40:43], s56 offen
    buffer_load_dwordx4 v[220:223], v121, s[40:43], s56 offen offset:32''')
    data_loads()
    o(f'''
    v_and_b32_e32 v119, 1, v120
    v_lshlrev_b32_e32 v119, 12, v119
    v_lshl_add_u32 v119, v13, 9, v119
    v_lshrrev_b32_e32 v120, 1, v120
    v_lshl_add_u32 v119, v120, 4, v119
    v_add_u32_e32 v119, s92, v119               ; LDS: (m%2)*4096 + h*512 + (m/2)*16
    s_waitcnt vmcnt({NB1 + NT})''')
    SCU, ZRU = 224, 240
    for p in range(8):
        o(f'v_lshlrev_b32_e32 v{SCU+2*p}, 16, v{208+p}')
        o(f'v_and_b32_e32 v{SCU+2*p+1}, s60, v{208+p}')
        o(f'v_lshlrev_b32_e32 v{ZRU+2*p}, 16, v{216+p}')
        o(f'v_and_b32_e32 v{ZRU+2*p+1}, s60, v{216+p}')
        o(f'v_pk_mul_f32 {rng("v", ZRU+2*p, 2)}, {rng("v", ZRU+2*p, 2)}, {rng("v", SCU+2*p, 2)} neg_lo:[1,0] neg_hi:[1,0]')
    young = NT
    for gs in range(2):
        ob = 208 if gs == 0 else T
        for j in range(8):
            dwait(gs*8 + j, young)
            young += mid(gs, j)
            b = T + gs*32 + j*4
            ix = (j // 4)*8 + 4*gs + j % 4
            zr, sc, sel = ZRU + (ix & ~1), SCU + (ix & ~1), ix & 1
            bc = f'op_sel:[0,{sel},{sel}] op_sel_hi:[1,{sel},{sel}]'
            for c in range(4): o(f'v_cvt_f32_i32_e32 v{b+c}, v{b+c}')
            for p in range(2):
                o(f'v_pk_fma_f32 {rng("v", b+2*p, 2)}, {rng("v", b+2*p, 2)}, {rng("v", sc, 2)}, {rng("v", zr, 2)} {bc}')
            if j & 1:
                for c in range(4):
                    o(f'v_cvt_pk_bf16_f32 v{ob + 4*c + j//2}, v{b - 4 + c}, v{b + c}')
        for c in range(4):
            o(f'ds_write_b128 v119, {rng("v", ob + 4*c, 4)} offset:{1024*c + 256*gs}')
    o('L_dq_out:')
    o('s_waitcnt lgkmcnt(0)')
    for f in range(8):
        o(f'ds_read_b128 {rng("v", T + 32 + 4*f, 4)}, v14 offset:{1024*f}')
    for f in range(8):
        o(f's_waitcnt lgkmcnt({7 - f})')
        vv = vD1 if f < 4 else vD2
        o(f'buffer_store_dwordx4 {rng("v", T + 32 + 4*f, 4)}, {vv}, s[4:7], s55 offen offset:{1024*(f%4)}')
    o('L_dq_done:')

def lane_reduce(op, tmp):
    r = []
    for sw in ('v_permlane16_swap_b32', 'v_permlane32_swap_b32'):
        r += [f'v_mov_b32_e32 v{tmp+q}, {vL[q]}' for q in range(4)]
        r += [f'{sw} {vL[q]}, v{tmp+q}' for q in range(4)]
        r += [f'{op} {vL[q]}, {vL[q]}, v{tmp+q}' for q in range(4)]
    return r

FA = 144
def out_group(qb, r, b, packed):
    f = FA + 4*qb + r
    ops = []
    if packed:
        fp, sel = f & ~1, f & 1
        ops += [f'v_pk_mul_f32 {rng("v", b+2*p, 2)}, {rng("v", b+2*p, 2)}, {rng("v", fp, 2)} op_sel:[0,{sel}] op_sel_hi:[1,{sel}]' for p in range(4)]
    else:
        ops += [f'v_mul_f32_e32 v{b+p}, v{b+p}, v{f}' for p in range(8)]
    ops += [f'v_cvt_pk_bf16_f32 v{b+p}, v{b+2*p}, v{b+2*p+1}' for p in range(4)]
    so = 's22' if qb == 0 else f's{60+qb}'
    ops.append(f'buffer_store_dwordx4 {rng("v", b, 4)}, v14, s[12:15], {so} offen offset:{256*r}{OPOL}')
    return ops

def factor_ops():
    return ([f'v_rcp_f32_e32 {vL[q]}, {vL[q]}' for q in range(4)],
            [f'ds_write_b32 v12, {vL[q]} offset:{64*q}' for q in range(4)],
            [f'ds_read_b128 {rng("v", FA+4*q, 4)}, v13 offset:{64*q}' for q in range(4)])

EPI_ADDR = f'''
    s_lshl_b32 s53, s16, 8
    s_add_u32 s53, s53, {LDS_SCR}
    v_lshl_add_u32 v12, v7, 2, s53
    v_lshl_add_u32 v13, v3, 4, s53
    v_lshlrev_b32_e32 v14, 10, v3
    v_lshl_add_u32 v14, v7, 4, v14'''

def gen_core(o, errs, pre_lines):
    st = OPT['st']
    carry = {}
    for rg, pr, tx in sm_ops(0):
        if st + rg >= 128: carry.setdefault(st + rg - 128, []).append((pr, tx))
    late = set(tx for l in carry.values() for _, tx in l)
    def check(c, tag):
        c(f'''
L_chk{tag}:
        v_cmp_eq_u64_e32 vcc, v[116:117], v[114:115]
        s_mov_b32 s95, {tag}
        s_andn2_b32 s56, s101, vcc_lo
        s_cbranch_scc1 L_pollslow
L_ok{tag}:''')
    def part_dma(c, slot):
        for grp in range(2):
            c(f's_add_u32 m0, s19, {slot*32768 + grp*4096}\ns_nop 0')
            for i in range(4): c(dma(grp, i))
        c('s_add_u32 s17, s17, 16384\ns_and_b32 s17, s17, 0x7ffff')
    def k0_reads(c):
        c(f'v_add_u32_e32 v12, {3*32768}, {vD1}')
        for f in range(16):
            if f == 12: c('s_waitcnt lgkmcnt(8)')
            c(f'ds_read_b128 {aF(f)}, v12 offset:{frag_off(f)}')
    def qk0(c, qb):
        c('s_waitcnt lgkmcnt(0)')
        ex = [(kb, r) for kb in range(4) for r in range(4)]
        pend = []
        for i in range(16):
            c(qk_mfma(i // 4, qb, i % 4))
            if pend:
                for x in pend: c(x)
                pend = []
            elif ex and 4*ex[0][0] + 3 + 4 <= i:
                kb, r = ex.pop(0)
                ops = [tx for _, _, tx in sm_elem(0, kb, qb, r)]
                c(ops[0]); pend = ops[1:]
        for kb, r in ex:
            ops = [tx for _, _, tx in sm_elem(0, kb, qb, r) if tx not in late]
            if ops and ops[0].startswith('v_exp'):
                c(ops[0]); ops = ops[1:]
            for x in pend: c(x)
            pend = ops
        for x in pend: c(x)
    def first_reads(c):
        for f in range(D):
            c(f'ds_read_b128 {aF(f)}, {vRd} offset:{frag_off(f)}')
    def enter(c):
        c(EPI_ADDR)
        stamp(c, 5)
        c(f's_waitcnt lgkmcnt({0 if OPT["stamp"] else D - 4})')
        c('s_branch L_loop_in')
    com = Out()
    for x in l_init(): com(x)
    if OPT.get('trunc'): com('s_mov_b32 s3, 0x07060302')
    com(f'''
    s_add_u32 s17, s21, 1
    s_and_b32 s17, s17, 31
    s_mov_b32 s101, -1
    s_lshl_b32 s17, s17, 14
    s_lshl_b32 s19, s16, 13
    s_mov_b32 s57, {OPT['spin']}
    v_mov_b32_e32 {vRd}, {vD1}
    s_and_b32 s50, s21, 31
    s_or_b32 s50, s50, s16
    s_cselect_b32 s50, 99, 12
    s_mov_b32 s18, 15
    s_cmp_ge_u32 s16, 2
    s_cbranch_scc1 L_startB''')
    c = Out()
    qdma(c, range(0, 8))
    c(POLL)
    qdma(c, range(8, 16 - OPT['nql']))
    if OPT['go'] == 0: c('v_mov_b32_e32 v12, 1\nds_write_b32 v134, v12 offset:16')
    k0_reads(c)
    c(f's_waitcnt vmcnt({13 - OPT["nql"]})')
    stamp(c, 3)
    c(f's_waitcnt lgkmcnt({0 if OPT["stamp"] else 8})')
    qreads(c, [0])
    if OPT['go'] == 1: c('v_mov_b32_e32 v12, 1\nds_write_b32 v134, v12 offset:16')
    qdma(c, range(16 - OPT['nql'], 16))
    qk0(c, 0)
    c('s_waitcnt vmcnt(8)')
    qreads(c, [1])
    check(c, 1)
    stamp(c, 4)
    part_dma(c, 0)
    if OPT['go'] == 2: c('v_mov_b32_e32 v12, 1\nds_write_b32 v134, v12 offset:16')
    qk0(c, 1)
    c('s_waitcnt vmcnt(12)')
    qreads(c, [2])
    qk0(c, 2)
    c('s_waitcnt vmcnt(8)')
    qreads(c, [3])
    qk0(c, 3)
    stamp(c, 7)
    c('s_waitcnt vmcnt(0)')
    c(f'''
    v_mov_b32_e32 v12, 1
    ds_write_b32 v134, v12
    v_xor_b32_e32 v134, 4, v134
L_hs:
    ds_read_b32 v12, v134
    s_waitcnt lgkmcnt(0)
    v_cmp_ne_u32_e32 vcc, 1, v12
    s_cbranch_vccnz L_hs''')
    first_reads(c)
    part_dma(c, 1)
    c('s_add_u32 s32, s19, 0x18000\ns_add_u32 s19, s19, 0x10000')
    enter(c)
    c.l = fix_hazards(pre_lines + com.l, c.l, 'startA')
    cb = Out()
    cb('L_startB:')
    k0_reads(cb)
    cb(f'''
    v_mov_b32_e32 v134, {LDS_SCR + 2048 + 16}
L_go:
    ds_read_b64 v[12:13], v134
    s_waitcnt lgkmcnt(0)
    v_and_b32_e32 v12, v12, v13
    v_cmp_ne_u32_e32 vcc, 1, v12
    s_cbranch_vccnz L_go''')
    stamp(cb, 4)
    nb = OPT['bsplit']
    qdma(cb, range(0, 16 - nb))
    if not nb: cb(POLL)
    for qb in range(4):
        cb(f's_waitcnt vmcnt({(12 - nb if nb else 13) if qb == 0 else 13 - 4*qb if qb < 3 else 0})')
        if qb == 0:
            stamp(cb, 3)
            cb('s_waitcnt lgkmcnt(0)')
        qreads(cb, [qb])
        if qb == 0 and nb:
            qdma(cb, range(16 - nb, 16))
            cb(POLL)
        if qb == 3:
            check(cb, 3)
            part_dma(cb, 1)
        qk0(cb, qb)
    cb('s_waitcnt vmcnt(0)')
    stamp(cb, 7)
    cb('s_barrier')
    first_reads(cb)
    part_dma(cb, 2)
    cb('s_mov_b32 s32, s19\ns_add_u32 s19, s19, 0x18000')
    enter(cb)
    cb.l = fix_hazards(pre_lines + com.l, cb.l, 'startB')
    errs += check_hazards(pre_lines + com.l + cb.l, 'startB') + check_waits(pre_lines + com.l + cb.l, 'startB')
    c.l = com.l + c.l
    B = Block(256, carry)
    B.stage(0, 0); B.stage(1, 1)
    B.waits.append((256, [(2, j) for j in range(4)]))
    bars = [(256, 0)] if OPT['pairbar'] else [(128, 8), (256, 8)]
    for ge, vm in bars:
        gb = ge + RP - 4*D - 1
        B.mem[gb] += [f's_waitcnt vmcnt({vm})' + (' lgkmcnt(0)' if OPT['pull'] else ''), 's_barrier']
    B.val[256 + RP - 4*D - 1].append((5, f'v_xor_b32_e32 {vRd}, 0x10000, {vRd}'))
    for j in range(16):
        g = OPT['dma0'] + OPT['dmastep'] * j if OPT['pairbar'] else 128*(j // 8) + OPT['dma0'] + 12*(j % 8)
        if j % 4 == 0:
            B.mem[g - 1].append(f's_add_u32 m0, {"s19" if j < 8 else "s32"}, {((j // 4) % 2)*4096}')
        B.mem[g].append(dma((j // 4) % 2, j % 4))
        if j % 8 == 7:
            B.mem[g + 1].append('s_add_u32 s17, s17, 16384')
            B.mem[g + 2].append('s_and_b32 s17, s17, 0x7ffff')
        if j == 15:
            B.mem[g + 3].append('s_xor_b32 s19, s19, 0x10000')
            B.mem[g + 4].append('s_xor_b32 s32, s32, 0x10000')
    if OPT['stamp'] >= 2:
        B.mem[1].append('s_memtime s[84:85]')
        B.mem[2].append('s_memrealtime s[86:87]')
        B.mem[14].insert(0, 's_waitcnt lgkmcnt(0)')
        B.val[18].append((9, f'v_cmp_eq_u32_e32 vcc, s18, v2'))
        for k in range(4):
            B.val[20 + 2*k].append((9, f'v_mov_b32_e32 v244, s{84+k}'))
            B.val[21 + 2*k].append((9, f'v_cndmask_b32_e32 v{240+k}, v{240+k}, v244, vcc'))
    if OPT.get('wb'):
        g = OPT['dma0'] + 12*7 + 3
        assert not B.mem[g]
        B.mem[g] += ['s_cmp_eq_u32 s18, s50', 's_cbranch_scc1 L_dowb', 'L_nowb:']
    B.mem[253].append('s_sub_u32 s18, s18, 1')
    B.mem[254].append('s_cmp_lg_u32 s18, 0')
    assert B.finish() == carry
    loop = Out()
    B.emit(loop, 255)
    loop(B.mf[255])
    sc, head = B.gap_lines(255)
    for x in sc: loop(x)
    loop('s_cbranch_scc1 L_loop')
    E = Block(192, carry)
    E.stage(0, 0, nxt=False)
    for j in range(16):
        E.read(max(96 + 2*j, 72 + 4*j) + RP, (1, 16 + j), 16 + j, 32768 + frag_off(16 + j))
    if not OPT['pairbar']:
        E.mem[95 + RP] += ['s_cmp_ge_u32 s16, 2', 's_cbranch_scc1 L_nobar', 's_waitcnt vmcnt(0)', 's_barrier', 'L_nobar:']
    for i in range(64):
        E.mf[128 + i] = pv_mfma((i % 16) // 2, i // 16, i % 2, 1)
    for m in range(4):
        E.waits.append((128 + 4*m, [(1, 16 + 4*m + j) for j in range(4)]))
    if OPT['stamp'] >= 2:
        E.mem[1].append('s_memtime s[84:85]')
        E.mem[2].append('s_memrealtime s[86:87]')
        E.mem[14].insert(0, 's_waitcnt lgkmcnt(0)')
        for k in range(4):
            E.val[20 + k].append((9, f'v_writelane_b32 v{240+k}, s{84+k}, 0'))
    assert not E.finish()
    rc, dw, dr = factor_ops()
    seq = [(0, x) for x in lane_reduce('v_add_f32_e32', 32)]
    seq += [(0, x) for x in [
        f'v_min_f32_e32 v36, {vL[0]}, {vL[1]}', f'v_max_f32_e32 v37, {vL[0]}, {vL[1]}', f'v_add_f32_e32 v38, {vL[0]}, {vL[1]}',
        f'v_min3_f32 v36, v36, {vL[2]}, {vL[3]}', f'v_max3_f32 v37, v37, {vL[2]}, {vL[3]}', f'v_add_f32_e32 v39, {vL[2]}, {vL[3]}']]
    seq += [(0, x) for x in rc]
    seq += [(0, 'v_cmp_nle_f32_e64 s[56:57], s54, v36'), (0, 'v_cmp_nge_f32_e64 s[58:59], s55, v37'), (0, 'v_cmp_u_f32_e32 vcc, v38, v39')]
    seq += [(0, x) for x in dw] + [(0, 's_or_b64 s[56:57], s[56:57], s[58:59]'), (0, 's_waitcnt lgkmcnt(0)')] + [(0, x) for x in dr]
    seq += [(0, 's_or_b64 s[56:57], s[56:57], vcc'), (0, f's_cbranch_scc{1 if not OPT.get("nofb") else 0} L_fallback' if not OPT.get('nofb') else 's_nop 0')]
    E.mem[128].append(f's_mov_b32 s54, 0x{f32bits(2.0**-60):08x}')
    E.mem[129].append(f's_mov_b32 s55, 0x{f32bits(2.0**60):08x}')
    groups = []
    for qb in range(4):
        for r in range(4):
            b = 160 + ((qb*4 + r) % 8) * 8
            groups.append((qb, r, b))
    after = []
    g = 128 + st + (9 if RS else 2)
    def place(ops):
        nonlocal g
        used = 0
        for k, (eg, x) in enumerate(ops):
            if x.startswith('s_'):
                if used:
                    g += 1; used = 0
                if g >= 192: return ops[k:]
                E.mem[g].append(x); g += 1
                continue
            cost = 2 if (x.startswith('v_rcp') or x.startswith('buffer_')) else 1
            if used + cost > 2 or (used and not x.startswith('v_')):
                g += 1; used = 0
            if eg > g:
                g = eg; used = 0
            if g >= 192: return ops[k:]
            E.val[g].append((20 + k, x)); used += cost
        if used: g += 1
        return []
    left = place(seq)
    assert not left
    first = True
    for qb, r, b in groups:
        rd = [(128 + 16*qb + 20, f'v_accvgpr_read_b32 v{b+db}, {aOr(qb, db, r)}') for db in range(8)]
        if left or g >= 190:
            left += rd + [(0, x) for x in out_group(qb, r, b, True)]
            continue
        ops = rd + ([(0, 's_waitcnt lgkmcnt(0)')] if first else []) + [(0, x) for x in out_group(qb, r, b, False)]
        first = False
        left = place(ops)
    tail = Out()
    for x in head: tail(x)
    E.emit(tail)
    stamp(tail, 6)
    tail('s_nop 7')
    for _, x in left: tail(x)
    lin = pre_lines + c.l + loop.l + ['    ' + x for x in head] + loop.l + tail.l
    errs += check_hazards(lin, 'core') + check_waits(lin, 'core')
    o.l += c.l + cb.l
    o('.p2align 6')
    o('L_loop:')
    for x in head: o(x)
    o('L_loop_in:')
    o.l += loop.l + tail.l

def gen_main():
    errs = []
    o = Out()
    o('s_cmp_ge_u32 s2, 256\ns_cbranch_scc1 L_end')
    stamp(o, 0)
    if OPT['stamp']: o('s_memrealtime s[80:81]')
    o(f'''
    s_load_dwordx4 s[8:11], s[0:1], 0         ; q, qk
    s_load_dwordx4 s[32:35], s[0:1], 16
    s_load_dwordx4 s[36:39], s[0:1], 32       ; k_zeros, v_scales
    s_load_dwordx4 s[12:15], s[0:1], 48       ; v_zeros, out
    s_load_dwordx4 s[24:27], s[0:1], 64
    s_memrealtime s[94:95]
    v_lshrrev_b32_e32 v1, 6, v0
    v_and_b32_e32 v2, 63, v0                  ; lane
    v_readfirstlane_b32 s16, v1               ; wave
    v_lshrrev_b32_e32 v3, 4, v2               ; g
    v_and_b32_e32 v7, 15, v2                  ; n
    v_lshlrev_b32_e32 {vD1}, 4, v2
    v_add_u32_e32 {vD2}, 0x1000, {vD1}
    s_and_b32 s20, s2, 7
    s_lshr_b32 s21, s2, 3
    s_lshl_b32 s22, s20, 5
    s_add_u32 s22, s22, s21
    s_lshl_b32 s22, s22, 16
    s_lshl_b32 s23, s16, 14
    s_add_u32 s22, s22, s23
    s_add_u32 s61, s22, 4096
    s_add_u32 s62, s22, 8192
    s_add_u32 s63, s22, 12288
    v_lshlrev_b32_e32 v118, 7, v2
    v_xor_b32_e32 v126, v7, v3
    v_lshlrev_b32_e32 v126, 4, v126
    v_lshl_add_u32 v130, v7, 8, v126
    v_lshl_add_u32 v126, v3, 8, v126            ; Q staging source: (lane/16)*256 + ((lane%16)^(lane/16))*16
    v_xor_b32_e32 v127, 64, v126
    v_xor_b32_e32 v128, 0x80, v126
    v_xor_b32_e32 v129, 0xc0, v126
    s_lshl_b32 s100, s16, 14
    s_add_u32 s100, s100, {2*32768}
    s_cmp_eq_u32 s16, 2
    s_cselect_b32 s100, {3*32768 + 16384}, s100
    s_cmp_eq_u32 s16, 3
    s_cselect_b32 s100, {LDS_QX}, s100
    v_add_u32_e32 v130, s100, v130
    v_xor_b32_e32 v131, 64, v130
    v_xor_b32_e32 v132, 0x80, v130
    v_xor_b32_e32 v133, 0xc0, v130
    s_and_b32 s23, s16, 1
    s_lshl_b32 s48, s20, 20
    s_lshl_b32 s53, s23, 14
    s_add_u32 s48, s48, s53
    s_lshl_b32 s49, s20, 12                   ; head*4096
    s_lshl_b32 s54, s20, 19                   ; head*512KB
    s_lshl_b32 s55, s23, 13
    s_add_u32 s55, s55, s54
    s_mov_b32 s60, 0xffff0000
    s_mov_b32 s93, 0
    s_getreg_b32 s3, hwreg(HW_REG_XCC_ID, 0, 4)
    v_mov_b32_e32 v1, 0
    s_mov_b32 s58, 0x{CSCALE:08x}
    s_mov_b32 s59, 0x{CSCALE:08x}
    s_mov_b32 s51, s21
    s_mov_b32 s52, 0
    s_lshl_b32 s92, s16, 13
    s_mov_b32 s6, {512 << 10}
    s_mov_b32 s7, 0x20000
    s_mov_b32 s30, {V_OFF + (512 << 10)}
    s_mov_b32 s31, 0x20000
    s_mov_b32 s42, 32768
    s_mov_b32 s43, 0x20000
    s_mov_b32 s46, 256
    s_mov_b32 s47, 0x20000
    s_mov_b32 s98, 8192
    s_mov_b32 s99, 0x20000
    s_lshl_b32 s56, s20, 2
    s_add_u32 s56, s56, s16
    s_lshl_b32 s56, s56, 13
    s_add_u32 s56, s56, {FLAG_OFF}
    s_cmp_ge_u32 s16, 2
    s_waitcnt lgkmcnt(0)
    s_cbranch_scc1 L_setv
    s_mov_b32 s40, s36
    s_mov_b32 s41, s37
    s_mov_b32 s36, s34
    s_mov_b32 s37, s35
    s_mov_b32 s32, s10
    s_mov_b32 s33, s11
    s_add_u32 s92, s92, {3*32768}             ; own K goes to slot 3
    s_branch L_setdone
L_setv:
    s_mov_b32 s40, s12                        ; v_zeros
    s_mov_b32 s41, s13
    s_mov_b32 s36, s38                        ; v_scales
    s_mov_b32 s37, s39
    s_add_u32 s55, s55, {V_OFF}
    s_lshl_b32 s23, s23, 6
    s_add_u32 s49, s49, s23
L_setdone:
    s_mov_b32 s34, {8 << 20}
    s_mov_b32 s35, 0x20000
    s_mov_b32 s38, 32768
    s_mov_b32 s39, 0x20000
    s_mov_b32 s10, {16 << 20}
    s_mov_b32 s11, 0x20000
    s_mov_b32 s12, s14
    s_mov_b32 s13, s15
    s_mov_b32 s14, {16 << 20}
    s_mov_b32 s15, 0x20000
    s_add_u32 s4, s26, s55
    s_addc_u32 s5, s27, 0
    s_add_u32 s28, s26, s54
    s_addc_u32 s29, s27, 0
    s_mov_b32 s44, s24
    s_mov_b32 s45, s25
    s_add_u32 s96, s26, s56
    s_addc_u32 s97, s27, 0
    s_lshl_b32 s23, s20, 5
    s_or_b32 s54, s21, s16
    s_cbranch_scc1 L_notag
    s_lshl_b64 s[94:95], s[94:95], 8
    s_or_b32 s94, s94, 0x80
    v_mov_b32_e32 v112, s94
    v_mov_b32_e32 v113, s95
    s_mov_b64 exec, 1
    buffer_store_dwordx2 v[112:113], v1, s[44:47], s23 offen sc1
    s_mov_b64 exec, -1
L_notag:
    v_add_u32_e32 v14, s92, {vD1}''')
    if OPT.get('pf'):
        o(f'''
    s_cmp_lg_u32 s16, 3
    s_cbranch_scc1 L_nopf
    s_getpc_b64 s[88:89]
    s_lshl_b32 s54, s21, 10
    v_add_u32_e32 v134, s54, {vD1}
    global_load_dwordx4 v[136:139], v134, s[88:89]
L_nopf:''')
    stampdq(o, 3)
    dq = Out()
    gen_dequant(dq)
    head = list(o.l)
    o.l += dq.l
    pre = Out()
    pre('s_cmp_lg_u32 s52, 0\ns_cbranch_scc1 L_help_next')
    nq1 = 0
    stamp(pre, 1)
    pre(f'''
    v_cmp_gt_u32_e32 vcc, 32, v2
    v_mov_b32_e32 v116, s3
    s_lshl_b32 s53, s21, 7
    s_mov_b32 s57, {OPT['spin']}
    s_mov_b32 s94, 0
    v_cndmask_b32_e32 v116, 16, v116, vcc
    s_lshl_b32 s56, s16, 2
    s_add_u32 s56, s56, {LDS_SCR + 2048}
    v_mov_b32_e32 v134, s56
    ds_write2_b32 v134, v1, v1 offset1:4
    s_waitcnt vmcnt({nq1})
L_tag:
    v_cmp_eq_u64_e32 vcc, 0, v[112:113]
    s_cbranch_vccnz L_tagslow
    v_add_u32_e32 v116, v116, v112
    v_mov_b32_e32 v117, v113
    s_mov_b64 exec, 1
    buffer_store_dwordx2 v[116:117], v1, s[96:99], s53 offen
    s_mov_b64 exec, -1
L_nopub:''')
    pre('s_waitcnt lgkmcnt(0)\ns_barrier')
    stamp(pre, 2)
    if OPT['stamp']: pre('s_waitcnt lgkmcnt(0)')
    o.l += pre.l
    ik, iv = dq.l.index('L_dq_v:'), dq.l.index('L_dq_out:')
    for path, nm in ((dq.l[:ik] + dq.l[iv:], 'dqk'), (dq.l[:11] + dq.l[ik:], 'dqv')):
        errs += check_hazards(head + path + pre.l, nm) + check_waits(head + path + pre.l, nm)
    gen_core(o, errs, pre.l)
    o('L_fin:')
    if OPT['stamp']:
        o(f'''
    s_memtime s[86:87]
    s_waitcnt vmcnt(0)
    s_memtime s[84:85]
    s_memrealtime s[82:83]
    s_waitcnt lgkmcnt(0)
    s_mov_b32 s88, s26
    s_mov_b32 s89, s27
    s_mov_b32 s90, 0x10000000
    s_mov_b32 s91, 0x20000
    s_lshl_b32 s101, s2, 2
    s_add_u32 s101, s101, s16
    s_lshl_b32 s92, s101, 7
    s_add_u32 s92, s92, {16 << 20}
    s_lshl_b32 s101, s101, 10
    s_add_u32 s101, s101, {17 << 20}''')
        if OPT.get('dbg'):
            o(f'''
    s_cmp_lg_u32 s16, 0
    s_cbranch_scc1 L_nodbg
    s_mov_b32 s53, 8
    s_cmp_eq_u32 s2, 9
    s_cbranch_scc1 L_dodbg
    s_mov_b32 s53, 40
    s_cmp_eq_u32 s2, 254
    s_cbranch_scc0 L_nodbg
L_dodbg:
    s_sub_u32 s54, s74, s64
    s_sub_u32 s55, s76, s64
    s_sub_u32 s56, s84, s64
    s_sub_u32 s57, s82, s80
    v_mov_b32_e32 v16, s54
    v_mov_b32_e32 v17, s55
    v_mov_b32_e32 v18, s56
    v_mov_b32_e32 v19, s57
    v_mov_b32_e32 v20, s80
    v_mov_b32_e32 v21, s82
    s_mov_b64 exec, 1
    buffer_store_dwordx4 v[16:19], v1, s[44:47], s53 offen
    buffer_store_dwordx2 v[20:21], v1, s[44:47], s53 offen offset:16
    s_mov_b64 exec, -1
    s_nop 1
L_nodbg:''')
        for k in range(24):
            o(f'v_mov_b32_e32 v{16+k}, s{64+k}')
        o('v_mov_b32_e32 v40, 0')
        for k in range(6):
            o(f'buffer_store_dwordx4 {rng("v", 16+4*k, 4)}, v40, s[88:91], s92 offen offset:{16*k}')
        if OPT['stamp'] >= 2:
            o(f'buffer_store_dwordx4 v[240:243], {vD1}, s[88:91], s101 offen')
    o('L_end:\ns_endpgm')
    if OPT.get('wb'): o('L_dowb:\nbuffer_wbl2 sc1\ns_branch L_nowb')
    o(f'''
L_tagslow:
    s_sub_u32 s57, s57, 1
    s_cselect_b32 s93, 1, 0
    s_cbranch_scc1 L_nopub
    s_sleep 1
    buffer_load_dwordx2 v[112:113], v1, s[44:47], s23 offen sc1
    s_waitcnt vmcnt(0)
    s_branch L_tag
L_pollslow:
    s_cmp_eq_u32 s93, 2
    s_cbranch_scc1 L_polldone
    s_cmp_eq_u32 s93, 1
    s_cbranch_scc1 L_help_nopub
    s_or_b32 s54, vcc_lo, vcc_hi
    s_andn2_b32 s54, s101, s54
    s_cselect_b32 s55, 0, 1
    s_sub_u32 s57, s57, 1
    s_cselect_b32 s56, 1, 0
    s_cmp_lt_u32 s57, {OPT['spin'] - OPT['upg'] if OPT['spin'] > OPT['upg'] else 0}
    s_cselect_b32 s55, 1, s55
    s_or_b32 s55, s55, s56
    s_cmp_gt_u32 s55, s94
    s_cbranch_scc0 L_noupg
    s_mov_b32 s94, 1
    s_add_u32 s55, s53, 4096
    buffer_wbl2 sc1
    s_waitcnt vmcnt(0)
    s_mov_b32 exec_lo, 0
    s_mov_b32 exec_hi, 1
    buffer_store_dwordx2 v[116:117], v1, s[96:99], s55 offen sc1
    s_mov_b64 exec, -1
L_noupg:
    s_cmp_lg_u32 s56, 0
    s_cbranch_scc1 L_help_nopub
    s_cmp_eq_u32 s54, 0
    s_cbranch_scc1 L_polldone
    buffer_load_dwordx2 v[114:115], v118, s[96:99], 0 offen sc1
    s_waitcnt vmcnt(0)
    s_cmp_eq_u32 s95, 1
    s_cbranch_scc1 L_chk1
    s_branch L_chk3
L_polldone:
    s_cmp_eq_u32 s95, 1
    s_cbranch_scc1 L_ok1
    s_branch L_ok3
L_help_nopub:
    s_waitcnt lgkmcnt(0)
    s_nop 7
    v_mov_b32_e32 v136, {vL[0]}
    v_mov_b32_e32 v137, {vL[1]}
    v_mov_b32_e32 v138, {vL[2]}
    v_mov_b32_e32 v139, {vL[3]}
    s_mov_b32 s92, s100
    v_add_u32_e32 v14, s92, {vD1}
    s_mov_b32 s52, 31
    s_branch L_help_go
L_help_next:
    s_sub_u32 s52, s52, 1
    s_cmp_eq_u32 s52, 0
    s_cbranch_scc1 L_help_done
L_help_go:
    s_waitcnt vmcnt(0)
    s_add_u32 s51, s21, s52
    s_and_b32 s51, s51, 31
    s_branch L_dq
L_help_done:
    s_waitcnt vmcnt(0) lgkmcnt(0)
    s_mov_b32 s93, 2
    {chr(10).join(f'v_mov_b32_e32 v{224 + k}, v{136 + k // 4}' for k in range(16)) if RS else ''}
    s_nop 1
    s_branch L_polldone''')
    fb = Out()
    def kloads(off):
        for f in range(16):
            if f % 8 == 0: fb(f's_add_u32 s53, s17, {off + (f // 8)*8192}')
            v = vD1 if f % 8 < 4 else vD2
            k = f if off == 0 else 16 + 2*(f % 8) + f // 8
            fb(f'buffer_load_dwordx4 {aF(k)}, {v}, s[28:31], s53 offen offset:{1024*(f%4)} sc1')
        fb('s_waitcnt vmcnt(0)')
    fb('L_fallback:\ns_waitcnt vmcnt(0) lgkmcnt(0)\ns_nop 7\ns_nop 7')
    for q in range(4): fb(f'v_mov_b32_e32 {vL[q]}, 0xff800000')
    fb('s_mov_b32 s17, 0\nL_maxloop:')
    kloads(0)
    for i in range(64): fb(qk_mfma(i // 16, (i // 4) % 4, i % 4))
    fb('s_nop 7')
    for kb in range(4):
        for qb in range(4):
            for r in (0, 2):
                fb(f'v_max3_f32 {vL[qb]}, {vL[qb]}, {vSr(kb, qb, r)}, {vSr(kb, qb, r+1)}')
    fb(f's_add_u32 s17, s17, 16384\ns_cmp_lt_u32 s17, {512 << 10}\ns_cbranch_scc1 L_maxloop')
    for x in lane_reduce('v_max_f32_e32', 16): fb(x)
    for q in range(4):
        for r in range(4): fb(f'v_sub_f32_e32 v{C0 + 4*q + r}, 0, {vL[q]}')
    for r in range(128): fb(f'v_accvgpr_write_b32 a{r}, 0')
    for x in l_init(): fb(x)
    fb('s_mov_b32 s17, 0\nL_p2loop:')
    kloads(0)
    for i in range(64): fb(qk_mfma(i // 16, (i // 4) % 4, i % 4, True))
    kloads(V_OFF)
    for kb in range(4):
        for qb in range(4):
            el = [sm_elem(0, kb, qb, r) for r in range(4)]
            for r in range(4): fb(el[r][0][2])
            for r in range(4):
                for _, _, tx in el[r][1:]: fb(tx)
    fb('s_nop 1')
    for i in range(64): fb(pv_mfma(i // 8, (i // 2) % 4, i % 2, 0))
    fb(f's_add_u32 s17, s17, 16384\ns_cmp_lt_u32 s17, {512 << 10}\ns_cbranch_scc1 L_p2loop')
    for x in lane_reduce('v_add_f32_e32', 16): fb(x)
    rc, dw, dr = factor_ops()
    for x in rc + ['s_nop 0'] + dw + ['s_waitcnt lgkmcnt(0)'] + dr + ['s_waitcnt lgkmcnt(0)']: fb(x)
    for qb in range(4):
        for r in range(4):
            b = 160 + ((qb*4 + r) % 8) * 8
            for db in range(8): fb(f'v_accvgpr_read_b32 v{b+db}, {aOr(qb, db, r)}')
            for x in out_group(qb, r, b, True): fb(x)
    fb('s_branch L_fin')
    i1, i2 = fb.l.index('L_maxloop:'), fb.l.index('L_p2loop:')
    fb.l = fix_hazards([], fb.l, 'fb')
    i2 = fb.l.index('L_p2loop:')
    errs += check_hazards(fb.l, 'fb') + check_waits(fb.l, 'fb')
    p2 = fb.l[i2:[k for k, x in enumerate(fb.l) if 'L_p2loop' in x][-1] + 1]
    errs += check_hazards(p2 + p2, 'fb2')
    o.l += fb.l
    return o.l, errs

HEADER = open('cdna_kernels/' + NAME + '.s.ref').read().split('; @launch')[0]

def main():
    mn, errs = gen_main()
    for e in errs:
        print(e, file=sys.stderr)
    if errs and not OPT.get('nofb'):
        sys.exit(1)
    nm = NAME + '_kernel'
    txt = HEADER + f'; @launch grid=(256,1,1) block=(256,1,1) lds={LDS_TOTAL}\n'
    txt += '.amdgcn_target "amdgcn-amd-amdhsa--gfx950"\n.text\n'
    txt += f'.globl {nm}\n.p2align 8\n.type {nm},@function\n{nm}:\n' + '\n'.join(mn) + '\n'
    txt += f'''.section .rodata,"a"
.p2align 6
.amdhsa_kernel {nm}
  .amdhsa_next_free_vgpr 512
  .amdhsa_next_free_sgpr 102
  .amdhsa_accum_offset 256
  .amdhsa_group_segment_fixed_size 0
  .amdhsa_kernarg_size 80
  .amdhsa_user_sgpr_count 2
  .amdhsa_user_sgpr_kernarg_segment_ptr 1
  .amdhsa_system_sgpr_workgroup_id_x 1
  .amdhsa_float_denorm_mode_32 3
.end_amdhsa_kernel
'''
    open(sys.argv[1], 'w').write(txt)

main()
```

```python
import sys, struct, math
from asmlib import *

NAME = 'standalone__kv_cache_quant_int4_int2_kv_with_per_channel_or_per_token_scales__prompt'
OPT = dict(nwt=16, opol2='nt', cap=3, g0=2, go=1, bsplit=8, zpos=1, bsleep=4, pull=6, wb=1, nb1=11, barfirst=1, nql=0, nqb=0, nqa=0, touch=1, upg=8, pol='nt', stamp=0, d=8, st=7, dma0=6, dmastep=10, spin=20000, opol='sc0_sc1', rp=0, pairbar=0)
for a in sys.argv[2:]:
    k, v = a.split('=', 1)
    OPT[k] = eval(v)

def f32bits(x):
    return struct.unpack('<I', struct.pack('<f', x))[0]

CSCALE = f32bits(128 ** -0.5 * math.log2(math.e))
V_OFF = 4 << 20
FLAG_OFF = 9 << 20
MF = 'v_mfma_f32_16x16x32_bf16'
D, RP = OPT['d'], OPT['rp']
def flags(x): return (' ' + x.replace('_', ' ')) if x else ''
POL, OPOL, SC1 = flags(OPT['pol']), flags(OPT['opol']), ' sc1'

class Out:
    def __init__(self):
        self.l = []
    def __call__(self, s):
        for x in s.strip('\n').split('\n'):
            if x.strip():
                self.l.append(x.strip() if x.strip().endswith(':') or x.startswith('.') else '    ' + x.strip())

def rng(p, b, n): return f'{p}[{b}:{b+n-1}]'
O0 = 128
def vO(qb, db): return rng('v', O0 + (qb*8+db)*4, 4)
def vOr(qb, db, r): return O0 + (qb*8+db)*4 + r
def aQ(qb, ks): return rng('a', (qb*4+ks)*4, 4)
def aF(k): return rng('a', 64 + (k % 16)*4, 4)
def aX(j): return rng('a', 128 + j*4, 4)
BY, BE, C0, T0 = 16, (48, 80), 112, 128
def sbase(par, kb, qb): return (BY if kb & 1 else BE[par]) + ((kb//2)*4 + qb)*4
def vS(par, kb, qb): return rng('v', sbase(par, kb, qb), 4)
def vSr(par, kb, qb, r): return f'v{sbase(par, kb, qb) + r}'
def vP(par, t, qb): return rng('v', BE[par] + (t*4+qb)*4, 4)
def vPr(par, t, qb, i): return f'v{BE[par] + (t*4+qb)*4 + i}'
def vC(qb): return rng('v', C0 + qb*4, 4)
RS = 0
vL = ['v8', 'v9', 'v10', 'v11']
vRd, vD1, vD2 = 'v4', 'v5', 'v6'
LDS_RING = 131072
LDS_SCR = LDS_RING
LDS_QX = LDS_RING + 4096
LDS_TOTAL = LDS_QX + 16384

def frag_off(k):
    if k < 16:
        return k * 1024
    db, t = (k - 16) // 2, (k - 16) % 2
    return 16384 + t * 8192 + db * 1024

def sm_elem(buf, kb, qb, r):
    s = vSr(buf, kb, qb, r)
    ops = [(0, 0, f'v_exp_f32_e32 {s}, {s}'), (1, 1, f'v_add_f32_e32 {vL[qb]}, {vL[qb]}, {s}')]
    if r & 1:
        ops.append((1, 2, f'v_cvt_pk_bf16_f32 {vPr(buf, kb//2, qb, (kb%2)*2 + r//2)}, {vSr(buf, kb, qb, r-1)}, {s}'))
    return ops

def acc_init():
    return [f'v_mov_b32_e32 {vL[q]}, 0' for q in range(4)] + [f'v_mov_b32_e32 v{O0 + k}, 0' for k in range(128)]

def sm_ops(buf, order=None):
    order = order or [(e // 4, e % 4) for e in range(16)]
    return [(2*e + dg, pr, tx) for e in range(64) for dg, pr, tx in sm_elem(buf, order[e // 4][0], order[e // 4][1], e % 4)]

def qk_mfma(par, kb, qb, ks, cinit=False):
    c = (vC(qb) if cinit else '0') if ks == 0 else vS(par, kb, qb)
    return f'{MF} {vS(par, kb, qb)}, {aF(kb*4+ks)}, {aQ(qb, ks)}, {c}'

def pv_mfma(db, qb, t, buf, fr=None):
    return f'{MF} {vO(qb, db)}, {vP(buf, t, qb)}, {fr or aF(16 + db*2 + t)}, {vO(qb, db)}'

def dma(grp, i, srd='s[4:7]', so='s17'):
    v = vD1 if grp == 0 else vD2
    return f'buffer_load_dwordx4 {v}, {srd}, {so} offen offset:{1024*i}{SC1} lds'

class Block:
    def __init__(self, G, carry):
        self.G = G
        self.mf = [None] * G
        self.mem = [[] for _ in range(G)]
        self.val = [[] for _ in range(G + 140)]
        for g, lst in carry.items():
            self.val[g] += lst
        self.reads = [(4*f + RP - 4*D, (0, f)) for f in range(D)]
        self.waits = []
    def read(self, g, ident, f, off):
        self.mem[g].append(f'ds_read_b128 {aF(f)}, {vRd} offset:{off}')
        self.reads.append((g, ident))
    def finish(self):
        self.reads.sort(key=lambda r: r[0])
        ids = [r[1] for r in self.reads]
        for gw, need in self.waits:
            if gw == 0: continue
            p = max(ids.index(x) for x in need)
            assert self.reads[p][0] < gw - 1, (gw, need)
            w = len([1 for r in self.reads[p+1:] if r[0] < gw - 1])
            self.mem[gw - 1].insert(0, f's_waitcnt lgkmcnt({w})')
        return {g - self.G: self.val[g] for g in range(self.G, len(self.val)) if self.val[g]}
    def stage(self, k, par, nxt=True):
        g0 = 128 * k
        for i in range(64):
            self.mf[g0 + i] = qk_mfma(par ^ 1, i // 16, (i // 4) % 4, i % 4)
            self.mf[g0 + 64 + i] = pv_mfma(i // 8, (i // 2) % 4, i % 2, par)
        for rg, pr, tx in sm_ops(par ^ 1):
            self.val[g0 + OPT['st'] + rg].append((pr, tx))
        for f in range(D, 32 + (D if nxt else 0)):
            g = g0 + 4*f + RP - 4*D
            if f in (30, 31): g -= OPT['pull']
            if f < 32: self.read(g, (k, f), f, par*32768 + frag_off(f))
            else: self.read(g, (k + 1, f - 32), f, (par ^ 1)*32768 + frag_off(f - 32))
        for m in range(8):
            self.waits.append((g0 + 16*m, [(k, 4*m + j) for j in range(4)]))
    def gap_lines(self, g):
        v = [t for _, t in sorted(self.val[g], key=lambda z: z[0])]
        m = self.mem[g]
        if OPT.get('no_exp'): v = [t for t in v if not t.startswith('v_exp')]
        if OPT.get('no_add'): v = [t for t in v if not t.startswith('v_add')]
        if OPT.get('no_cvt'): v = [t for t in v if not t.startswith('v_cvt')]
        if OPT.get('no_lds'): m = [t for t in m if not t.startswith('ds_read')]
        if OPT.get('no_dma'): m = [t for t in m if not t.startswith('buffer_load')]
        if any(t.endswith(':') for t in m):
            return m, v
        sc = [t for t in m if t.startswith('s_')]
        return sc, [t for t in m if not t.startswith('s_')] + v
    def emit(self, o, upto=None):
        for g in range(upto if upto is not None else self.G):
            o(self.mf[g])
            sc, ve = self.gap_lines(g)
            for x in sc + ve: o(x)

def stampdq(o, k):
    if OPT.get('stampdq'):
        o(f's_memtime s[{64+2*k}:{65+2*k}]')

def stampp(o, k):
    if OPT.get('stampp'):
        o(f's_memtime s[{64+2*k}:{65+2*k}]')

def stamp(o, k):
    if OPT.get('stampp') and k in (4, 5, 7):
        return
    if OPT.get('stampdq') and k in (3, 4, 5, 7):
        return
    if OPT['stamp']:
        o(f's_memtime s[{64+2*k}:{65+2*k}]')

def qdma(o, idx):
    idx = list(idx)
    for i in idx:
        if i % 4 == 0 or i == idx[0]:
            o(f's_add_u32 m0, s100, {(i // 4)*4096}')
            o('s_nop 0')
        so = 's22' if i < 4 else f's{60 + i // 4}'
        o(f'buffer_load_dwordx4 v{94 + i % 4}, s[8:11], {so} offen offset:{1024*(i % 4)}{POL} lds')
    return len(idx)

def qreads(o, qbs):
    for qb in qbs:
        for ks in range(4):
            o(f'ds_read_b128 {aQ(qb, ks)}, v{98 + ks} offset:{4096*qb}')

POLL = 'buffer_load_dwordx2 v[82:83], v86, s[96:99], 0 offen sc1'

def gen_dequant(o):
    T = T0
    NT = 4 if OPT.get('touch') else 0
    NB1 = OPT['nb1']
    def dload(x):
        gs, j = x // 8, x % 8
        so = 's53' if j < 4 else 's54'
        o(f'buffer_load_dwordx4 {rng("v", T + gs*32 + j*4, 4)}, v12, s[32:35], {so} offen offset:{512*(4*gs + j%4)}{POL}')
    def dwait(x, young):
        issued = min(16, NB1 + x)
        extra = young if x < NB1 else young - NT
        o(f's_waitcnt vmcnt({issued - x - 1 + extra})')
        if NB1 + x < 16: dload(NB1 + x)
    def data_loads():
        for x in range(NB1): dload(x)
        if OPT.get('touch'):
            o(f'''
            buffer_load_dword v90, v1, s[4:7], s55 offen sc1
            buffer_load_dword v91, v1, s[96:99], 0 offen sc1
            buffer_load_dword v92, v1, s[12:15], s22 offen sc1
            buffer_load_dword v93, v1, s[8:11], s22 offen''')
        stampdq(o, 4)
        stampdq(o, 5)
    def mid(gs, j):
        if gs == 0 and j == 0: stampdq(o, 7)
        if gs == 1 and j == 0:
            o('buffer_load_dwordx2 v[80:81], v1, s[44:47], s23 offen sc1')
            return 1
        return 0
    o(f'''
L_dq:
    s_lshl_b32 s53, s51, 15
    s_add_u32 s53, s53, s48
    s_add_u32 s54, s53, 8192
    s_lshl_b32 s55, s51, 14
    v_lshrrev_b32_e32 v13, 5, v2              ; h
    v_and_b32_e32 v88, 31, v2                 ; m
    v_lshlrev_b32_e32 v12, 12, v13
    v_lshl_add_u32 v12, v88, 4, v12           ; h*8*512 + m*16
    s_cmp_ge_u32 s16, 2
    s_cbranch_scc1 L_dq_v
    s_lshr_b32 s56, s51, 1
    s_lshl_b32 s56, s56, 8
    s_add_u32 s56, s56, s49
    v_lshlrev_b32_e32 v89, 3, v88             ; m*8
    buffer_load_dwordx2 v[192:193], v89, s[36:39], s56 offen
    buffer_load_dwordx2 v[194:195], v89, s[40:43], s56 offen''')
    data_loads()
    o(f'''
    v_lshrrev_b32_e32 v87, 1, v88
    v_lshlrev_b32_e32 v87, 8, v87
    v_and_b32_e32 v88, 1, v88
    v_lshl_add_u32 v87, v88, 3, v87
    v_lshl_add_u32 v87, v13, 7, v87
    v_add_u32_e32 v87, s92, v87               ; LDS: (m/2)*256 + (m%2)*8 + h*128
    s_waitcnt vmcnt({NB1 + NT})
    v_lshlrev_b32_e32 v196, 16, v192
    v_and_b32_e32 v197, s60, v192
    v_lshlrev_b32_e32 v198, 16, v193
    v_and_b32_e32 v199, s60, v193
    v_lshlrev_b32_e32 v200, 16, v194
    v_and_b32_e32 v201, s60, v194
    v_lshlrev_b32_e32 v202, 16, v195
    v_and_b32_e32 v203, s60, v195
    v_pk_mul_f32 v[196:197], v[196:197], s[58:59]
    v_pk_mul_f32 v[198:199], v[198:199], s[58:59]
    v_pk_mul_f32 v[200:201], v[200:201], v[196:197] neg_lo:[1,0] neg_hi:[1,0]
    v_pk_mul_f32 v[202:203], v[202:203], v[198:199] neg_lo:[1,0] neg_hi:[1,0]''')
    young = NT
    for gs in range(2):
        for j in range(8):
            dwait(gs*8 + j, young)
            young += mid(gs, j)
            b = T + gs*32 + j*4
            for c in range(4): o(f'v_cvt_f32_i32_e32 v{b+c}, v{b+c}')
            o(f'v_pk_fma_f32 {rng("v", b, 2)}, {rng("v", b, 2)}, v[196:197], v[200:201]')
            o(f'v_pk_fma_f32 {rng("v", b+2, 2)}, {rng("v", b+2, 2)}, v[198:199], v[202:203]')
            o(f'v_cvt_pk_bf16_f32 v{b}, v{b}, v{b+1}')
            o(f'v_cvt_pk_bf16_f32 v{b+1}, v{b+2}, v{b+3}')
            o(f'ds_write_b64 v87, {rng("v", b, 2)} offset:{(j // 4)*4096 + (4*gs + j % 4)*16}')
    o('s_branch L_dq_out')
    o(f'''
L_dq_v:
    s_lshl_b32 s56, s51, 7
    s_add_u32 s56, s56, s49
    v_lshlrev_b32_e32 v89, 4, v13             ; h*16
    buffer_load_dwordx4 v[192:195], v89, s[36:39], s56 offen
    buffer_load_dwordx4 v[196:199], v89, s[36:39], s56 offen offset:32
    buffer_load_dwordx4 v[200:203], v89, s[40:43], s56 offen
    buffer_load_dwordx4 v[204:207], v89, s[40:43], s56 offen offset:32''')
    data_loads()
    o(f'''
    v_and_b32_e32 v87, 1, v88
    v_lshlrev_b32_e32 v87, 12, v87
    v_lshl_add_u32 v87, v13, 9, v87
    v_lshrrev_b32_e32 v88, 1, v88
    v_lshl_add_u32 v87, v88, 4, v87
    v_add_u32_e32 v87, s92, v87               ; LDS: (m%2)*4096 + h*512 + (m/2)*16
    s_waitcnt vmcnt({NB1 + NT})''')
    SCU, ZRU = 208, 224
    for p in range(8):
        o(f'v_lshlrev_b32_e32 v{SCU+2*p}, 16, v{192+p}')
        o(f'v_and_b32_e32 v{SCU+2*p+1}, s60, v{192+p}')
        o(f'v_lshlrev_b32_e32 v{ZRU+2*p}, 16, v{200+p}')
        o(f'v_and_b32_e32 v{ZRU+2*p+1}, s60, v{200+p}')
        o(f'v_pk_mul_f32 {rng("v", ZRU+2*p, 2)}, {rng("v", ZRU+2*p, 2)}, {rng("v", SCU+2*p, 2)} neg_lo:[1,0] neg_hi:[1,0]')
    young = NT
    for gs in range(2):
        ob = 192 if gs == 0 else T
        for j in range(8):
            dwait(gs*8 + j, young)
            young += mid(gs, j)
            b = T + gs*32 + j*4
            ix = (j // 4)*8 + 4*gs + j % 4
            zr, sc, sel = ZRU + (ix & ~1), SCU + (ix & ~1), ix & 1
            bc = f'op_sel:[0,{sel},{sel}] op_sel_hi:[1,{sel},{sel}]'
            for c in range(4): o(f'v_cvt_f32_i32_e32 v{b+c}, v{b+c}')
            for p in range(2):
                o(f'v_pk_fma_f32 {rng("v", b+2*p, 2)}, {rng("v", b+2*p, 2)}, {rng("v", sc, 2)}, {rng("v", zr, 2)} {bc}')
            if j & 1:
                for c in range(4):
                    o(f'v_cvt_pk_bf16_f32 v{ob + 4*c + j//2}, v{b - 4 + c}, v{b + c}')
        for c in range(4):
            o(f'ds_write_b128 v87, {rng("v", ob + 4*c, 4)} offset:{1024*c + 256*gs}')
    o('L_dq_out:')
    o('s_waitcnt lgkmcnt(0)')
    for f in range(8):
        o(f'ds_read_b128 {rng("v", T + 32 + 4*f, 4)}, v14 offset:{1024*f}')
    for f in range(8):
        o(f's_waitcnt lgkmcnt({7 - f})')
        vv = vD1 if f < 4 else vD2
        o(f'buffer_store_dwordx4 {rng("v", T + 32 + 4*f, 4)}, {vv}, s[4:7], s55 offen offset:{1024*(f%4)}')
    o('L_dq_done:')

def lane_reduce(op, tmp, qs=range(4)):
    r = []
    for sw in ('v_permlane16_swap_b32', 'v_permlane32_swap_b32'):
        r += [f'v_mov_b32_e32 v{tmp+q}, {vL[q]}' for q in qs]
        r += [f'{sw} {vL[q]}, v{tmp+q}' for q in qs]
        r += [f'{op} {vL[q]}, {vL[q]}, v{tmp+q}' for q in qs]
    return r

FA = 112
def out_store(qb, r):
    b = sbase(0, 1 + 2*(r & 1), qb)
    so = 's22' if qb == 0 else f's{60+qb}'
    return ([f'v_cvt_pk_bf16_f32 v{b+p}, v{vOr(qb, 2*p, r)}, v{vOr(qb, 2*p+1, r)}' for p in range(4)] +
            [f'buffer_store_dwordx4 {rng("v", b, 4)}, v14, s[12:15], {so} offen offset:{256*r}{OPOL if qb*4 + r < OPT["nwt"] else flags(OPT["opol2"])}'])
def out_group(qb, r):
    return [f'v_mul_f32_e32 v{vOr(qb, db, r)}, v{vOr(qb, db, r)}, v{FA + 4*qb + r}' for db in range(8)] + out_store(qb, r)
def out_pair(qb, r):
    return ([f'v_pk_mul_f32 {rng("v", vOr(qb, db, r), 2)}, {rng("v", vOr(qb, db, r), 2)}, {rng("v", FA + 4*qb + r, 2)}' for db in range(8)]
            + out_store(qb, r) + out_store(qb, r + 1))

def factor_ops(qs=range(4)):
    return ([f'v_rcp_f32_e32 {vL[q]}, {vL[q]}' for q in qs],
            [f'ds_write_b32 v12, {vL[q]} offset:{64*q}' for q in qs],
            [f'ds_read_b128 {rng("v", FA+4*q, 4)}, v13 offset:{64*q}' for q in qs])

EPI_ADDR = f'''
    s_lshl_b32 s53, s16, 8
    s_add_u32 s53, s53, {LDS_SCR}
    v_lshl_add_u32 v12, v7, 2, s53
    v_lshl_add_u32 v13, v3, 4, s53
    v_lshlrev_b32_e32 v14, 10, v3
    v_lshl_add_u32 v14, v7, 4, v14'''

def gen_core(o, errs, pre_lines):
    st = OPT['st']
    carry = {}
    for rg, pr, tx in sm_ops(0):
        if st + rg >= 128: carry.setdefault(st + rg - 128, []).append((pr, tx))
    late = set(tx for l in carry.values() for _, tx in l)
    def check(c, tag):
        c(f'''
L_chk{tag}:
        v_cmp_eq_u64_e32 vcc, v[84:85], v[82:83]
        s_mov_b32 s95, {tag}
        s_andn2_b32 s56, s101, vcc_lo
        s_cbranch_scc1 L_pollslow
L_ok{tag}:''')
    def part_dma(c, slot):
        for grp in range(2):
            c(f's_add_u32 m0, s19, {slot*32768 + grp*4096}\ns_nop 0')
            for i in range(4): c(dma(grp, i))
        c('s_add_u32 s17, s17, 16384\ns_and_b32 s17, s17, 0x7ffff')
    def k0_reads(c):
        c(f'v_add_u32_e32 v12, {3*32768}, {vD1}')
        for f in range(16):
            if f == 12: c('s_waitcnt lgkmcnt(8)')
            c(f'ds_read_b128 {aF(f)}, v12 offset:{frag_off(f)}')
    def qk0(c, qb):
        c('s_waitcnt lgkmcnt(0)')
        ex = [(kb, r) for kb in range(4) for r in range(4)]
        pend = []
        for i in range(16):
            c(qk_mfma(0, i // 4, qb, i % 4))
            if pend:
                for x in pend: c(x)
                pend = []
            elif ex and 4*ex[0][0] + 3 + 4 <= i:
                kb, r = ex.pop(0)
                ops = [tx for _, _, tx in sm_elem(0, kb, qb, r)]
                c(ops[0]); pend = ops[1:]
        for kb, r in ex:
            ops = [tx for _, _, tx in sm_elem(0, kb, qb, r) if tx not in late]
            if ops and ops[0].startswith('v_exp'):
                c(ops[0]); ops = ops[1:]
            for x in pend: c(x)
            pend = ops
        for x in pend: c(x)
    def first_reads(c):
        for f in range(D):
            c(f'ds_read_b128 {aF(f)}, {vRd} offset:{frag_off(f)}')
    def enter(c):
        c(EPI_ADDR)
        stamp(c, 5)
        c(f's_waitcnt lgkmcnt({0 if OPT["stamp"] else D - 4})')
        c('s_branch L_loop_in')
    com = Out()
    com(f'''
    s_add_u32 s17, s21, 1
    s_and_b32 s17, s17, 31
    s_mov_b32 s101, -1
    s_lshl_b32 s17, s17, 14
    s_lshl_b32 s19, s16, 13
    s_mov_b32 s57, {OPT['spin']}
    v_mov_b32_e32 {vRd}, {vD1}
    s_and_b32 s50, s21, 31
    s_or_b32 s50, s50, s16
    s_cselect_b32 s50, 99, 12
    s_mov_b32 s18, 15
    s_cmp_ge_u32 s16, 2
    s_cbranch_scc1 L_startB''')
    c = Out()
    qdma(c, range(0, 8))
    c(POLL)
    qdma(c, range(8, 16 - OPT['nql']))
    if OPT['go'] == 0: c('v_mov_b32_e32 v12, 1\nds_write_b32 v102, v12 offset:16')
    k0_reads(c)
    for x in acc_init(): c(x)
    c(f's_waitcnt vmcnt({13 - OPT["nql"]})')
    stamp(c, 3)
    c(f's_waitcnt lgkmcnt({0 if OPT["stamp"] else 8})')
    qreads(c, [0])
    if OPT['go'] == 1: c('v_mov_b32_e32 v12, 1\nds_write_b32 v102, v12 offset:16')
    qdma(c, range(16 - OPT['nql'], 16))
    qk0(c, 0)
    c('s_waitcnt vmcnt(8)')
    qreads(c, [1])
    check(c, 1)
    stamp(c, 4)
    part_dma(c, 0)
    if OPT['go'] == 2: c('v_mov_b32_e32 v12, 1\nds_write_b32 v102, v12 offset:16')
    qk0(c, 1)
    c('s_waitcnt vmcnt(12)')
    qreads(c, [2])
    qk0(c, 2)
    c('s_waitcnt vmcnt(8)')
    qreads(c, [3])
    qk0(c, 3)
    stamp(c, 7)
    c('s_waitcnt vmcnt(0)')
    c(f'''
    v_mov_b32_e32 v12, 1
    ds_write_b32 v102, v12
    v_xor_b32_e32 v102, 4, v102
L_hs:
    ds_read_b32 v12, v102
    s_waitcnt lgkmcnt(0)
    v_cmp_ne_u32_e32 vcc, 1, v12
    s_cbranch_vccnz L_hs''')
    first_reads(c)
    part_dma(c, 1)
    c('s_add_u32 s32, s19, 0x18000\ns_add_u32 s19, s19, 0x10000')
    enter(c)
    c.l = fix_hazards(pre_lines + com.l, c.l, 'startA')
    cb = Out()
    cb('L_startB:')
    k0_reads(cb)
    for x in acc_init(): cb(x)
    cb(f'''
    v_mov_b32_e32 v102, {LDS_SCR + 2048 + 16}
L_go:
    ds_read_b64 v[12:13], v102
    s_waitcnt lgkmcnt(0)
    v_and_b32_e32 v12, v12, v13
    v_cmp_ne_u32_e32 vcc, 1, v12
    s_cbranch_vccnz L_go''')
    stamp(cb, 4)
    nb = OPT['bsplit']
    qdma(cb, range(0, 16 - nb))
    if not nb: cb(POLL)
    for qb in range(4):
        cb(f's_waitcnt vmcnt({(12 - nb if nb else 13) if qb == 0 else 13 - 4*qb if qb < 3 else 0})')
        if qb == 0:
            stamp(cb, 3)
            cb('s_waitcnt lgkmcnt(0)')
        qreads(cb, [qb])
        if qb == 0 and nb:
            qdma(cb, range(16 - nb, 16))
            cb(POLL)
        if qb == 3:
            check(cb, 3)
            part_dma(cb, 1)
        qk0(cb, qb)
    cb('s_waitcnt vmcnt(0)')
    stamp(cb, 7)
    cb('s_barrier')
    first_reads(cb)
    part_dma(cb, 2)
    cb('s_mov_b32 s32, s19\ns_add_u32 s19, s19, 0x18000')
    enter(cb)
    cb.l = fix_hazards(pre_lines + com.l, cb.l, 'startB')
    errs += check_hazards(pre_lines + com.l + cb.l, 'startB') + check_waits(pre_lines + com.l + cb.l, 'startB')
    c.l = com.l + c.l
    B = Block(256, carry)
    B.stage(0, 0); B.stage(1, 1)
    B.waits.append((256, [(2, j) for j in range(4)]))
    bars = [(256, 0)] if OPT['pairbar'] else [(128, 8), (256, 8)]
    for ge, vm in bars:
        gb = ge + RP - 4*D - 1
        B.mem[gb] += [f's_waitcnt vmcnt({vm})' + (' lgkmcnt(0)' if OPT['pull'] else ''), 's_barrier']
    B.val[256 + RP - 4*D - 1].append((5, f'v_xor_b32_e32 {vRd}, 0x10000, {vRd}'))
    for j in range(16):
        g = OPT['dma0'] + OPT['dmastep'] * j if OPT['pairbar'] else 128*(j // 8) + OPT['dma0'] + 12*(j % 8)
        if j % 4 == 0:
            B.mem[g - 1].append(f's_add_u32 m0, {"s19" if j < 8 else "s32"}, {((j // 4) % 2)*4096}')
        B.mem[g].append(dma((j // 4) % 2, j % 4))
        if j % 8 == 7:
            B.mem[g + 1].append('s_add_u32 s17, s17, 16384')
            B.mem[g + 2].append('s_and_b32 s17, s17, 0x7ffff')
        if j == 15:
            B.mem[g + 3].append('s_xor_b32 s19, s19, 0x10000')
            B.mem[g + 4].append('s_xor_b32 s32, s32, 0x10000')
    if OPT['stamp'] >= 2:
        B.mem[1].append('s_memtime s[84:85]')
        B.mem[2].append('s_memrealtime s[86:87]')
        B.mem[14].insert(0, 's_waitcnt lgkmcnt(0)')
        B.val[18].append((9, f'v_cmp_eq_u32_e32 vcc, s18, v2'))
        for k in range(4):
            B.val[20 + 2*k].append((9, f'v_mov_b32_e32 v124, s{84+k}'))
            B.val[21 + 2*k].append((9, f'v_cndmask_b32_e32 v{120+k}, v{120+k}, v124, vcc'))
    if OPT.get('wb'):
        g = OPT['dma0'] + 12*7 + 3
        assert not B.mem[g]
        B.mem[g] += ['s_cmp_eq_u32 s18, s50', 's_cbranch_scc1 L_dowb', 'L_nowb:']
    B.mem[253].append('s_sub_u32 s18, s18, 1')
    B.mem[254].append('s_cmp_lg_u32 s18, 0')
    assert B.finish() == carry
    loop = Out()
    B.emit(loop, 255)
    loop(B.mf[255])
    sc, head = B.gap_lines(255)
    for x in sc: loop(x)
    loop('s_cbranch_scc1 L_loop')
    E = Block(192, carry)
    for i in range(64):
        E.mf[i] = qk_mfma(1, (i % 16) // 4, i // 16, i % 4)
    for i in range(128):
        qb, db, u = i // 32, (i % 32) // 4, i % 4
        E.mf[64 + i] = pv_mfma(db, qb, u % 2, u // 2, aX(2*db + u) if u < 2 else None)
    for rg, pr, tx in sm_ops(1, [(kb, qb) for qb in range(4) for kb in range(4)]):
        E.val[st + rg].append((pr, tx))
    used = [sum(2 if t.startswith('v_exp') else 1 for _, t in E.val[g]) for g in range(192)]
    def rd(g, ident, reg, off):
        E.mem[g].append(f'ds_read_b128 {reg}, {vRd} offset:{off}'); E.reads.append((g, ident)); used[g] += 1
    for f in range(D, 16): rd(f - D, (0, f), aF(f), frag_off(f))
    for j in range(16): rd(8 + 2*j, (0, 16 + j), aX(j), frag_off(16 + j))
    E.mem[47] += ['s_cmp_ge_u32 s16, 2', 's_cbranch_scc1 L_nobar', 's_waitcnt vmcnt(0)', 's_barrier', 'L_nobar:']
    for j in range(16): rd(50 + j, (1, 16 + j), aF(16 + j), 32768 + frag_off(16 + j))
    for m in range(1, 4): E.waits.append((4*m, [(0, 4*m + j) for j in range(4)]))
    E.waits.append((64, [(0, 31), (1, 19)]))
    for m in range(1, 4): E.waits.append((64 + 8*m, [(1, 16 + 4*m + 3)]))
    if OPT['stamp'] >= 2:
        E.mem[20].append('s_memtime s[84:85]')
        E.mem[21].append('s_memrealtime s[86:87]')
        E.mem[44].insert(0, 's_waitcnt lgkmcnt(0)')
        for k in range(4):
            E.val[45].append((9, f'v_writelane_b32 v{120+k}, s{84+k}, 0'))
            E.val[46].append((9, f'v_accvgpr_write_b32 a{192+k}, v{120+k}'))
    E.finish()
    E.mem[1].append(f's_mov_b32 s54, 0x{f32bits(2.0**-60):08x}')
    E.mem[2].append(f's_mov_b32 s55, 0x{f32bits(2.0**60):08x}')
    order = [100]
    def place(ops, g, cap=2):
        for k, (eg, x) in enumerate(ops):
            if x.startswith('s_'):
                g += 1
                if g >= 192: return g, ops[k:]
                E.mem[g].append(x)
                continue
            cost = 2 if x.startswith(('v_rcp', 'v_exp', 'buffer_')) else 1
            g = max(g, eg)
            memop = not x.startswith('v_')
            if memop: g += 1
            while g < 192 and (used[g] + cost > cap or (memop and any(not t.startswith('s_') for t in E.mem[g]))): g += 1
            if g >= 192: return g, ops[k:]
            order[0] += 1
            if memop: E.mem[g].append(x)
            else: E.val[g].append((order[0], x))
            used[g] += cost
            if x.startswith(('v_exp', 'v_rcp')): g += 1
        return g, []
    def sm(qb, g, cap=2):
        ops = [(16*qb + 4*kb + 3 + 4, tx) for kb in range(4) for r in range(4) for _, _, tx in sm_elem(1, kb, qb, r)]
        g, left = place(ops, g, cap); assert not left
        return g
    def chain(qs, g, lab):
        q0, q1 = qs
        rc, dw, dr = factor_ops(qs)
        t = FA + 4*q1
        ops = lane_reduce('v_add_f32_e32', t - q0, qs)
        ops += [f'v_min_f32_e32 v{t+2}, {vL[q0]}, {vL[q1]}', f'v_max_f32_e32 v{t+3}, {vL[q0]}, {vL[q1]}',
                f'v_cmp_u_f32_e32 vcc, {vL[q0]}, {vL[q1]}'] + rc
        ops += [f'v_cmp_nle_f32_e64 s[56:57], s54, v{t+2}', f'v_cmp_nge_f32_e64 s[58:59], s55, v{t+3}'] + dw
        ops += ['s_or_b64 s[56:57], s[56:57], s[58:59]', 's_waitcnt lgkmcnt(0)'] + dr
        ops += ['s_or_b64 s[56:57], s[56:57], vcc', 's_cbranch_scc1 L_fallback' if not OPT.get('nofb') else 's_nop 0']
        g, left = place([(0, x) for x in ops], g, CAP); assert not left
        return g
    CAP = OPT['cap']
    ends = [st + 32*(qb + 1) for qb in range(4)]
    g = chain((0, 1), ends[1] + 1, 0)
    E.mem[g + 4].append('s_waitcnt lgkmcnt(0)')
    f01 = g + 5
    done = lambda qb: 64 + 32*(qb + 1) + 3
    left = []
    def groups(lst, g, fr):
        for qb, r in lst:
            if left or g >= 188:
                left.append((qb, r)); continue
            g, l2 = place([(max(done(qb), fr), x) for x in out_group(qb, r)], g, CAP)
            rest.extend(x for _, x in l2)
        return g
    rest = []
    g = groups([(0, r) for r in range(OPT['g0'])], g, f01)
    g = chain((2, 3), max(g, ends[3] + 1), 1)
    E.mem[g + 4].append('s_waitcnt lgkmcnt(0)')
    f23 = g + 5
    g = groups([(0, r) for r in range(OPT['g0'], 4)] + [(1, r) for r in range(4)], g, f01)
    g = groups([(qb, r) for qb in (2, 3) for r in range(4)], g, f23)
    print('tail: sm ends', ends, 'factors', f01, f23, 'left', left, file=sys.stderr)
    while left:
        qb, r = left.pop(0)
        if r % 2 == 0:
            rest += out_pair(qb, r); left.pop(0)
        else:
            rest += out_group(qb, r)
    left = [(0, x) for x in rest]
    tail = Out()
    for x in head: tail(x)
    E.emit(tail)
    stamp(tail, 6)
    for _, x in left: tail(x)
    tail.l = fix_hazards(loop.l, tail.l, 'tail')
    lin = pre_lines + c.l + loop.l + ['    ' + x for x in head] + loop.l + tail.l
    errs += check_hazards(lin, 'core') + check_waits(lin, 'core')
    o.l += c.l + cb.l
    o('.p2align 6')
    o('L_loop:')
    for x in head: o(x)
    o('L_loop_in:')
    o.l += loop.l + tail.l

def gen_main():
    errs = []
    o = Out()
    o('s_cmp_ge_u32 s2, 256\ns_cbranch_scc1 L_end')
    stamp(o, 0)
    if OPT['stamp']: o('s_memrealtime s[80:81]')
    o(f'''
    s_load_dwordx4 s[8:11], s[0:1], 0         ; q, qk
    s_load_dwordx4 s[32:35], s[0:1], 16
    s_load_dwordx4 s[36:39], s[0:1], 32       ; k_zeros, v_scales
    s_load_dwordx4 s[12:15], s[0:1], 48       ; v_zeros, out
    s_load_dwordx4 s[24:27], s[0:1], 64
    s_memrealtime s[94:95]
    v_lshrrev_b32_e32 v1, 6, v0
    v_and_b32_e32 v2, 63, v0                  ; lane
    v_readfirstlane_b32 s16, v1               ; wave
    v_lshrrev_b32_e32 v3, 4, v2               ; g
    v_and_b32_e32 v7, 15, v2                  ; n
    v_lshlrev_b32_e32 {vD1}, 4, v2
    v_add_u32_e32 {vD2}, 0x1000, {vD1}
    s_and_b32 s20, s2, 7
    s_lshr_b32 s21, s2, 3
    s_lshl_b32 s22, s20, 5
    s_add_u32 s22, s22, s21
    s_lshl_b32 s22, s22, 16
    s_lshl_b32 s23, s16, 14
    s_add_u32 s22, s22, s23
    s_add_u32 s61, s22, 4096
    s_add_u32 s62, s22, 8192
    s_add_u32 s63, s22, 12288
    v_lshlrev_b32_e32 v86, 7, v2
    v_xor_b32_e32 v94, v7, v3
    v_lshlrev_b32_e32 v94, 4, v94
    v_lshl_add_u32 v98, v7, 8, v94
    v_lshl_add_u32 v94, v3, 8, v94            ; Q staging source: (lane/16)*256 + ((lane%16)^(lane/16))*16
    v_xor_b32_e32 v95, 64, v94
    v_xor_b32_e32 v96, 0x80, v94
    v_xor_b32_e32 v97, 0xc0, v94
    s_lshl_b32 s100, s16, 14
    s_add_u32 s100, s100, {2*32768}
    s_cmp_eq_u32 s16, 2
    s_cselect_b32 s100, {3*32768 + 16384}, s100
    s_cmp_eq_u32 s16, 3
    s_cselect_b32 s100, {LDS_QX}, s100
    v_add_u32_e32 v98, s100, v98
    v_xor_b32_e32 v99, 64, v98
    v_xor_b32_e32 v100, 0x80, v98
    v_xor_b32_e32 v101, 0xc0, v98
    s_and_b32 s23, s16, 1
    s_lshl_b32 s48, s20, 20
    s_lshl_b32 s53, s23, 14
    s_add_u32 s48, s48, s53
    s_lshl_b32 s49, s20, 12                   ; head*4096
    s_lshl_b32 s54, s20, 19                   ; head*512KB
    s_lshl_b32 s55, s23, 13
    s_add_u32 s55, s55, s54
    s_mov_b32 s60, 0xffff0000
    s_mov_b32 s93, 0
    s_getreg_b32 s3, hwreg(HW_REG_XCC_ID, 0, 4)
    v_mov_b32_e32 v1, 0
    s_mov_b32 s58, 0x{CSCALE:08x}
    s_mov_b32 s59, 0x{CSCALE:08x}
    s_mov_b32 s51, s21
    s_mov_b32 s52, 0
    s_lshl_b32 s92, s16, 13
    s_mov_b32 s6, {512 << 10}
    s_mov_b32 s7, 0x20000
    s_mov_b32 s30, {V_OFF + (512 << 10)}
    s_mov_b32 s31, 0x20000
    s_mov_b32 s42, 32768
    s_mov_b32 s43, 0x20000
    s_mov_b32 s46, 256
    s_mov_b32 s47, 0x20000
    s_mov_b32 s98, 8192
    s_mov_b32 s99, 0x20000
    s_lshl_b32 s56, s20, 2
    s_add_u32 s56, s56, s16
    s_lshl_b32 s56, s56, 13
    s_add_u32 s56, s56, {FLAG_OFF}
    s_cmp_ge_u32 s16, 2
    s_waitcnt lgkmcnt(0)
    s_cbranch_scc1 L_setv
    s_mov_b32 s40, s36
    s_mov_b32 s41, s37
    s_mov_b32 s36, s34
    s_mov_b32 s37, s35
    s_mov_b32 s32, s10
    s_mov_b32 s33, s11
    s_add_u32 s92, s92, {3*32768}             ; own K goes to slot 3
    s_branch L_setdone
L_setv:
    s_mov_b32 s40, s12                        ; v_zeros
    s_mov_b32 s41, s13
    s_mov_b32 s36, s38                        ; v_scales
    s_mov_b32 s37, s39
    s_add_u32 s55, s55, {V_OFF}
    s_lshl_b32 s23, s23, 6
    s_add_u32 s49, s49, s23
L_setdone:
    s_mov_b32 s34, {8 << 20}
    s_mov_b32 s35, 0x20000
    s_mov_b32 s38, 32768
    s_mov_b32 s39, 0x20000
    s_mov_b32 s10, {16 << 20}
    s_mov_b32 s11, 0x20000
    s_mov_b32 s12, s14
    s_mov_b32 s13, s15
    s_mov_b32 s14, {16 << 20}
    s_mov_b32 s15, 0x20000
    s_add_u32 s4, s26, s55
    s_addc_u32 s5, s27, 0
    s_add_u32 s28, s26, s54
    s_addc_u32 s29, s27, 0
    s_mov_b32 s44, s24
    s_mov_b32 s45, s25
    s_add_u32 s96, s26, s56
    s_addc_u32 s97, s27, 0
    s_lshl_b32 s23, s20, 5
    s_or_b32 s54, s21, s16
    s_cbranch_scc1 L_notag
    s_lshl_b64 s[94:95], s[94:95], 8
    s_or_b32 s94, s94, 0x80
    v_mov_b32_e32 v80, s94
    v_mov_b32_e32 v81, s95
    s_mov_b64 exec, 1
    buffer_store_dwordx2 v[80:81], v1, s[44:47], s23 offen sc1
    s_mov_b64 exec, -1
L_notag:
    v_add_u32_e32 v14, s92, {vD1}''')
    if OPT.get('pf'):
        o(f'''
    s_cmp_lg_u32 s16, 3
    s_cbranch_scc1 L_nopf
    s_getpc_b64 s[88:89]
    s_lshl_b32 s54, s21, 10
    v_add_u32_e32 v102, s54, {vD1}
    global_load_dwordx4 v[104:107], v102, s[88:89]
L_nopf:''')
    stampdq(o, 3)
    dq = Out()
    gen_dequant(dq)
    head = list(o.l)
    o.l += dq.l
    pre = Out()
    pre('s_cmp_lg_u32 s52, 0\ns_cbranch_scc1 L_help_next')
    nq1 = 0
    stamp(pre, 1)
    pre(f'''
    v_cmp_gt_u32_e32 vcc, 32, v2
    v_mov_b32_e32 v84, s3
    s_lshl_b32 s53, s21, 7
    s_mov_b32 s57, {OPT['spin']}
    s_mov_b32 s94, 0
    v_cndmask_b32_e32 v84, 16, v84, vcc
    s_lshl_b32 s56, s16, 2
    s_add_u32 s56, s56, {LDS_SCR + 2048}
    v_mov_b32_e32 v102, s56
    ds_write2_b32 v102, v1, v1 offset1:4
    s_waitcnt vmcnt({nq1})
L_tag:
    v_cmp_eq_u64_e32 vcc, 0, v[80:81]
    s_cbranch_vccnz L_tagslow
    v_add_u32_e32 v84, v84, v80
    v_mov_b32_e32 v85, v81
    s_mov_b64 exec, 1
    buffer_store_dwordx2 v[84:85], v1, s[96:99], s53 offen
    s_mov_b64 exec, -1
L_nopub:''')
    pre('s_waitcnt lgkmcnt(0)\ns_barrier')
    stamp(pre, 2)
    if OPT['stamp']: pre('s_waitcnt lgkmcnt(0)')
    o.l += pre.l
    ik, iv = dq.l.index('L_dq_v:'), dq.l.index('L_dq_out:')
    for path, nm in ((dq.l[:ik] + dq.l[iv:], 'dqk'), (dq.l[:11] + dq.l[ik:], 'dqv')):
        errs += check_hazards(head + path + pre.l, nm) + check_waits(head + path + pre.l, nm)
    gen_core(o, errs, pre.l)
    o('L_fin:')
    if OPT['stamp']:
        o(f'''
    s_memtime s[86:87]
    s_waitcnt vmcnt(0)
    s_memtime s[84:85]
    s_memrealtime s[82:83]
    s_waitcnt lgkmcnt(0)
    s_mov_b32 s88, s26
    s_mov_b32 s89, s27
    s_mov_b32 s90, 0x10000000
    s_mov_b32 s91, 0x20000
    s_lshl_b32 s101, s2, 2
    s_add_u32 s101, s101, s16
    s_lshl_b32 s92, s101, 7
    s_add_u32 s92, s92, {16 << 20}
    s_lshl_b32 s101, s101, 10
    s_add_u32 s101, s101, {17 << 20}''')
        if OPT.get('dbg'):
            o(f'''
    s_cmp_lg_u32 s16, 0
    s_cbranch_scc1 L_nodbg
    s_mov_b32 s53, 8
    s_cmp_eq_u32 s2, 9
    s_cbranch_scc1 L_dodbg
    s_mov_b32 s53, 40
    s_cmp_eq_u32 s2, 254
    s_cbranch_scc0 L_nodbg
L_dodbg:
    s_sub_u32 s54, s74, s64
    s_sub_u32 s55, s76, s64
    s_sub_u32 s56, s84, s64
    s_sub_u32 s57, s82, s80
    v_mov_b32_e32 v16, s54
    v_mov_b32_e32 v17, s55
    v_mov_b32_e32 v18, s56
    v_mov_b32_e32 v19, s57
    v_mov_b32_e32 v20, s80
    v_mov_b32_e32 v21, s82
    s_mov_b64 exec, 1
    buffer_store_dwordx4 v[16:19], v1, s[44:47], s53 offen
    buffer_store_dwordx2 v[20:21], v1, s[44:47], s53 offen offset:16
    s_mov_b64 exec, -1
    s_nop 1
L_nodbg:''')
        for k in range(24):
            o(f'v_mov_b32_e32 v{16+k}, s{64+k}')
        o('v_mov_b32_e32 v40, 0')
        for k in range(6):
            o(f'buffer_store_dwordx4 {rng("v", 16+4*k, 4)}, v40, s[88:91], s92 offen offset:{16*k}')
        if OPT['stamp'] >= 2:
            o(f'buffer_store_dwordx4 a[192:195], {vD1}, s[88:91], s101 offen')
    o('L_end:\ns_endpgm')
    if OPT.get('wb'): o('L_dowb:\nbuffer_wbl2 sc1\ns_branch L_nowb')
    o(f'''
L_tagslow:
    s_sub_u32 s57, s57, 1
    s_cselect_b32 s93, 1, 0
    s_cbranch_scc1 L_nopub
    s_sleep 1
    buffer_load_dwordx2 v[80:81], v1, s[44:47], s23 offen sc1
    s_waitcnt vmcnt(0)
    s_branch L_tag
L_pollslow:
    s_cmp_eq_u32 s93, 2
    s_cbranch_scc1 L_polldone
    s_cmp_eq_u32 s93, 1
    s_cbranch_scc1 L_help_nopub
    s_or_b32 s54, vcc_lo, vcc_hi
    s_andn2_b32 s54, s101, s54
    s_cselect_b32 s55, 0, 1
    s_sub_u32 s57, s57, 1
    s_cselect_b32 s56, 1, 0
    s_cmp_lt_u32 s57, {OPT['spin'] - OPT['upg'] if OPT['spin'] > OPT['upg'] else 0}
    s_cselect_b32 s55, 1, s55
    s_or_b32 s55, s55, s56
    s_cmp_gt_u32 s55, s94
    s_cbranch_scc0 L_noupg
    s_mov_b32 s94, 1
    s_add_u32 s55, s53, 4096
    buffer_wbl2 sc1
    s_waitcnt vmcnt(0)
    s_mov_b32 exec_lo, 0
    s_mov_b32 exec_hi, 1
    buffer_store_dwordx2 v[84:85], v1, s[96:99], s55 offen sc1
    s_mov_b64 exec, -1
L_noupg:
    s_cmp_lg_u32 s56, 0
    s_cbranch_scc1 L_help_nopub
    s_cmp_eq_u32 s54, 0
    s_cbranch_scc1 L_polldone
    buffer_load_dwordx2 v[82:83], v86, s[96:99], 0 offen sc1
    s_waitcnt vmcnt(0)
    s_cmp_eq_u32 s95, 1
    s_cbranch_scc1 L_chk1
    s_branch L_chk3
L_polldone:
    s_cmp_eq_u32 s95, 1
    s_cbranch_scc1 L_ok1
    s_branch L_ok3
L_help_nopub:
    s_waitcnt lgkmcnt(0)
    s_mov_b32 s92, s100
    v_add_u32_e32 v14, s92, {vD1}
    s_mov_b32 s52, 31
    s_branch L_help_go
L_help_next:
    s_sub_u32 s52, s52, 1
    s_cmp_eq_u32 s52, 0
    s_cbranch_scc1 L_help_done
L_help_go:
    s_waitcnt vmcnt(0)
    s_add_u32 s51, s21, s52
    s_and_b32 s51, s51, 31
    s_branch L_dq
L_help_done:
    s_waitcnt vmcnt(0) lgkmcnt(0)
    s_mov_b32 s93, 2
    {chr(10).join(acc_init()[4:])}
    s_branch L_polldone''')
    fb = Out()
    def kloads(off):
        for f in range(16):
            if f % 8 == 0: fb(f's_add_u32 s53, s17, {off + (f // 8)*8192}')
            v = vD1 if f % 8 < 4 else vD2
            k = f if off == 0 else 16 + 2*(f % 8) + f // 8
            fb(f'buffer_load_dwordx4 {aF(k)}, {v}, s[28:31], s53 offen offset:{1024*(f%4)} sc1')
        fb('s_waitcnt vmcnt(0)')
    fb('L_fallback:\ns_waitcnt vmcnt(0) lgkmcnt(0)\ns_nop 7\ns_nop 7')
    for q in range(4): fb(f'v_mov_b32_e32 {vL[q]}, 0xff800000')
    fb('s_mov_b32 s17, 0\nL_maxloop:')
    kloads(0)
    for i in range(64): fb(qk_mfma(0, i // 16, (i // 4) % 4, i % 4))
    fb('s_nop 7')
    for kb in range(4):
        for qb in range(4):
            for r in (0, 2):
                fb(f'v_max3_f32 {vL[qb]}, {vL[qb]}, {vSr(0, kb, qb, r)}, {vSr(0, kb, qb, r+1)}')
    fb(f's_add_u32 s17, s17, 16384\ns_cmp_lt_u32 s17, {512 << 10}\ns_cbranch_scc1 L_maxloop')
    for x in lane_reduce('v_max_f32_e32', 16): fb(x)
    for q in range(4):
        for r in range(4): fb(f'v_sub_f32_e32 v{C0 + 4*q + r}, 0, {vL[q]}')
    for x in acc_init(): fb(x)
    fb('s_mov_b32 s17, 0\nL_p2loop:')
    kloads(0)
    for i in range(64): fb(qk_mfma(0, i // 16, (i // 4) % 4, i % 4, True))
    kloads(V_OFF)
    for kb in range(4):
        for qb in range(4):
            el = [sm_elem(0, kb, qb, r) for r in range(4)]
            for r in range(4): fb(el[r][0][2])
            for r in range(4):
                for _, _, tx in el[r][1:]: fb(tx)
    fb('s_nop 1')
    for i in range(64): fb(pv_mfma(i // 8, (i // 2) % 4, i % 2, 0))
    fb(f's_add_u32 s17, s17, 16384\ns_cmp_lt_u32 s17, {512 << 10}\ns_cbranch_scc1 L_p2loop')
    for x in lane_reduce('v_add_f32_e32', 16): fb(x)
    rc, dw, dr = factor_ops()
    for x in rc + ['s_nop 0'] + dw + ['s_waitcnt lgkmcnt(0)'] + dr + ['s_waitcnt lgkmcnt(0)']: fb(x)
    for qb in range(4):
        for r in (0, 2):
            for x in out_pair(qb, r): fb(x)
    fb('s_branch L_fin')
    i1, i2 = fb.l.index('L_maxloop:'), fb.l.index('L_p2loop:')
    fb.l = fix_hazards([], fb.l, 'fb')
    i2 = fb.l.index('L_p2loop:')
    errs += check_hazards(fb.l, 'fb') + check_waits(fb.l, 'fb')
    p2 = fb.l[i2:[k for k, x in enumerate(fb.l) if 'L_p2loop' in x][-1] + 1]
    errs += check_hazards(p2 + p2, 'fb2')
    o.l += fb.l
    return o.l, errs

HEADER = open('cdna_kernels/' + NAME + '.s.ref').read().split('; @launch')[0]

def main():
    mn, errs = gen_main()
    for e in errs:
        print(e, file=sys.stderr)
    if errs and not OPT.get('nofb'):
        sys.exit(1)
    nm = NAME + '_kernel'
    txt = HEADER + f'; @launch grid=(256,1,1) block=(256,1,1) lds={LDS_TOTAL}\n'
    txt += '.amdgcn_target "amdgcn-amd-amdhsa--gfx950"\n.text\n'
    txt += f'.globl {nm}\n.p2align 8\n.type {nm},@function\n{nm}:\n' + '\n'.join(mn) + '\n'
    txt += f'''.section .rodata,"a"
.p2align 6
.amdhsa_kernel {nm}
  .amdhsa_next_free_vgpr 456
  .amdhsa_next_free_sgpr 102
  .amdhsa_accum_offset 256
  .amdhsa_group_segment_fixed_size 0
  .amdhsa_kernarg_size 80
  .amdhsa_user_sgpr_count 2
  .amdhsa_user_sgpr_kernarg_segment_ptr 1
  .amdhsa_system_sgpr_workgroup_id_x 1
  .amdhsa_float_denorm_mode_32 3
.end_amdhsa_kernel
'''
    open(sys.argv[1], 'w').write(txt)

main()
```

```python
import sys, struct, math
from asmlib import *

NAME = 'standalone__kv_cache_quant_int4_int2_kv_with_per_channel_or_per_token_scales__prompt'
OPT = dict(go=1, bsplit=8, zpos=1, bsleep=4, pull=6, wb=1, nb1=11, barfirst=1, nql=0, nqb=0, nqa=0, touch=1, upg=8, pol='nt', stamp=0, d=8, st=7, dma0=6, dmastep=10, spin=20000, opol='sc0_sc1', rp=0, pairbar=0)
for a in sys.argv[2:]:
    k, v = a.split('=', 1)
    OPT[k] = eval(v)

def f32bits(x):
    return struct.unpack('<I', struct.pack('<f', x))[0]

CSCALE = f32bits(128 ** -0.5 * math.log2(math.e))
V_OFF = 4 << 20
FLAG_OFF = 9 << 20
MF = 'v_mfma_f32_16x16x32_bf16'
D, RP = OPT['d'], OPT['rp']
def flags(x): return (' ' + x.replace('_', ' ')) if x else ''
POL, OPOL, SC1 = flags(OPT['pol']), flags(OPT['opol']), ' sc1'

class Out:
    def __init__(self):
        self.l = []
    def __call__(self, s):
        for x in s.strip('\n').split('\n'):
            if x.strip():
                self.l.append(x.strip() if x.strip().endswith(':') or x.startswith('.') else '    ' + x.strip())

def rng(p, b, n): return f'{p}[{b}:{b+n-1}]'
def aO(qb, db): return rng('a', (qb*8+db)*4, 4)
def aOr(qb, db, r): return f'a{(qb*8+db)*4 + r}'
def aQ(qb, ks): return rng('a', 128 + (qb*4+ks)*4, 4)
def aF(k): return rng('a', 192 + (k % 16)*4, 4)
S0, P0, C0, T0 = 16, 80, 144, 144
def vS(kb, qb): return rng('v', S0 + (kb*4+qb)*4, 4)
def vSr(kb, qb, r): return f'v{S0 + (kb*4+qb)*4 + r}'
def vP(buf, t, qb): return rng('v', P0 + buf*32 + (t*4+qb)*4, 4)
def vPr(buf, t, qb, i): return f'v{P0 + buf*32 + (t*4+qb)*4 + i}'
def vC(qb): return rng('v', C0 + qb*4, 4)
RS = OPT.get('rs', 0)
vL = [f'v{224 + 4*q}' for q in range(4)] if RS else ['v8', 'v9', 'v10', 'v11']
vRd, vD1, vD2 = 'v4', 'v5', 'v6'
LDS_RING = 131072
LDS_SCR = LDS_RING
LDS_QX = LDS_RING + 4096
LDS_TOTAL = LDS_QX + 16384

def frag_off(k):
    if k < 16:
        return k * 1024
    db, t = (k - 16) // 2, (k - 16) % 2
    return 16384 + t * 8192 + db * 1024

def sm_elem(buf, kb, qb, r):
    s = vSr(kb, qb, r)
    ops = [(0, 0, f'v_exp_f32_e32 {s}, {s}')]
    if not RS:
        ops.append((1, 1, f'v_add_f32_e32 {vL[qb]}, {vL[qb]}, {s}'))
    if r & 1:
        d = vPr(buf, kb//2, qb, (kb%2)*2 + r//2)
        pk = f'v_perm_b32 {d}, {s}, {vSr(kb, qb, r-1)}, s3' if OPT.get('trunc') else f'v_cvt_pk_bf16_f32 {d}, {vSr(kb, qb, r-1)}, {s}'
        ops.append((3 if RS else 1, 2, pk))
    if RS and r == 3:
        p = P0 + buf*32 + ((kb//2)*4 + qb)*4 + (kb%2)*2
        l = rng('v', 224 + 4*qb, 4)
        ops.append((OPT.get('rsd', 6), 30, f'v_mfma_f32_4x4x4_16b_bf16 {l}, v[8:9], {rng("v", p, 2)}, {l}'))
    return ops

def l_init():
    if not RS: return [f'v_mov_b32_e32 {vL[q]}, 0' for q in range(4)]
    return [f'v_mov_b32_e32 v{224 + k}, 0' for k in range(16)] + ['v_mov_b32_e32 v8, 0x3f803f80', 'v_mov_b32_e32 v9, 0x3f803f80']

def sm_ops(buf, order=None):
    order = order or [(e // 4, e % 4) for e in range(16)]
    return [(2*e + dg, pr, tx) for e in range(64) for dg, pr, tx in sm_elem(buf, order[e // 4][0], order[e // 4][1], e % 4)]

def qk_mfma(kb, qb, ks, cinit=False):
    c = (vC(qb) if cinit else '0') if ks == 0 else vS(kb, qb)
    return f'{MF} {vS(kb, qb)}, {aF(kb*4+ks)}, {aQ(qb, ks)}, {c}'

def pv_mfma(db, qb, t, buf):
    return f'{MF} {aO(qb, db)}, {vP(buf, t, qb)}, {aF(16 + db*2 + t)}, {aO(qb, db)}'

def dma(grp, i, srd='s[4:7]', so='s17'):
    v = vD1 if grp == 0 else vD2
    return f'buffer_load_dwordx4 {v}, {srd}, {so} offen offset:{1024*i}{SC1} lds'

class Block:
    def __init__(self, G, carry):
        self.G = G
        self.mf = [None] * G
        self.mem = [[] for _ in range(G)]
        self.val = [[] for _ in range(G + 140)]
        for g, lst in carry.items():
            self.val[g] += lst
        self.reads = [(4*f + RP - 4*D, (0, f)) for f in range(D)]
        self.waits = []
    def read(self, g, ident, f, off):
        self.mem[g].append(f'ds_read_b128 {aF(f)}, {vRd} offset:{off}')
        self.reads.append((g, ident))
    def finish(self):
        self.reads.sort(key=lambda r: r[0])
        ids = [r[1] for r in self.reads]
        for gw, need in self.waits:
            if gw == 0: continue
            p = max(ids.index(x) for x in need)
            assert self.reads[p][0] < gw - 1, (gw, need)
            w = len([1 for r in self.reads[p+1:] if r[0] < gw - 1])
            self.mem[gw - 1].insert(0, f's_waitcnt lgkmcnt({w})')
        return {g - self.G: self.val[g] for g in range(self.G, len(self.val)) if self.val[g]}
    def stage(self, k, par, nxt=True):
        g0 = 128 * k
        for i in range(64):
            self.mf[g0 + i] = qk_mfma(i // 16, (i // 4) % 4, i % 4)
            self.mf[g0 + 64 + i] = pv_mfma(i // 8, (i // 2) % 4, i % 2, par)
        for rg, pr, tx in sm_ops(par ^ 1):
            self.val[g0 + OPT['st'] + rg].append((pr, tx))
        for f in range(D, 32 + (D if nxt else 0)):
            g = g0 + 4*f + RP - 4*D
            if f in (30, 31): g -= OPT['pull']
            if f < 32: self.read(g, (k, f), f, par*32768 + frag_off(f))
            else: self.read(g, (k + 1, f - 32), f, (par ^ 1)*32768 + frag_off(f - 32))
        for m in range(8):
            self.waits.append((g0 + 16*m, [(k, 4*m + j) for j in range(4)]))
    def gap_lines(self, g):
        v = [t for _, t in sorted(self.val[g], key=lambda z: z[0])]
        m = self.mem[g]
        if OPT.get('no_exp'): v = [t for t in v if not t.startswith('v_exp')]
        if OPT.get('no_add'): v = [t for t in v if not t.startswith('v_add')]
        if OPT.get('no_cvt'): v = [t for t in v if not t.startswith('v_cvt')]
        if OPT.get('no_lds'): m = [t for t in m if not t.startswith('ds_read')]
        if OPT.get('no_dma'): m = [t for t in m if not t.startswith('buffer_load')]
        if any(t.endswith(':') for t in m):
            return m, v
        sc = [t for t in m if t.startswith('s_')]
        return sc, [t for t in m if not t.startswith('s_')] + v
    def emit(self, o, upto=None):
        for g in range(upto if upto is not None else self.G):
            o(self.mf[g])
            sc, ve = self.gap_lines(g)
            for x in sc + ve: o(x)

def stampdq(o, k):
    if OPT.get('stampdq'):
        o(f's_memtime s[{64+2*k}:{65+2*k}]')

def stampp(o, k):
    if OPT.get('stampp'):
        o(f's_memtime s[{64+2*k}:{65+2*k}]')

def stamp(o, k):
    if OPT.get('stampp') and k in (4, 5, 7):
        return
    if OPT.get('stampdq') and k in (3, 4, 5, 7):
        return
    if OPT['stamp']:
        o(f's_memtime s[{64+2*k}:{65+2*k}]')

NINIT = 0
NH = 0
def init_work(o):
    global NINIT
    NINIT += 1
    o(f's_cmp_lg_u32 s52, 0\ns_cbranch_scc1 L_noinit{NINIT}')
    for r in range(128):
        o(f'v_accvgpr_write_b32 a{r}, 0')
    o(f'L_noinit{NINIT}:')

def qdma(o, idx):
    idx = list(idx)
    for i in idx:
        if i % 4 == 0 or i == idx[0]:
            o(f's_add_u32 m0, s100, {(i // 4)*4096}')
            o('s_nop 0')
        so = 's22' if i < 4 else f's{60 + i // 4}'
        o(f'buffer_load_dwordx4 v{126 + i % 4}, s[8:11], {so} offen offset:{1024*(i % 4)}{POL} lds')
    return len(idx)

def qreads(o, qbs):
    for qb in qbs:
        for ks in range(4):
            o(f'ds_read_b128 {aQ(qb, ks)}, v{130 + ks} offset:{4096*qb}')

POLL = 'buffer_load_dwordx2 v[114:115], v118, s[96:99], 0 offen sc1'

def gen_dequant(o):
    T = T0
    NT = 4 if OPT.get('touch') else 0
    NB1 = OPT['nb1']
    def dload(x):
        gs, j = x // 8, x % 8
        so = 's53' if j < 4 else 's54'
        o(f'buffer_load_dwordx4 {rng("v", T + gs*32 + j*4, 4)}, v12, s[32:35], {so} offen offset:{512*(4*gs + j%4)}{POL}')
    def dwait(x, young):
        issued = min(16, NB1 + x)
        extra = young if x < NB1 else young - NT
        o(f's_waitcnt vmcnt({issued - x - 1 + extra})')
        if NB1 + x < 16: dload(NB1 + x)
    def data_loads():
        for x in range(NB1): dload(x)
        if OPT.get('touch'):
            o(f'''
            buffer_load_dword v122, v1, s[4:7], s55 offen sc1
            buffer_load_dword v123, v1, s[96:99], 0 offen sc1
            buffer_load_dword v124, v1, s[12:15], s22 offen sc1
            buffer_load_dword v125, v1, s[8:11], s22 offen''')
        stampdq(o, 4)
        init_work(o)
        stampdq(o, 5)
    def mid(gs, j):
        if gs == 0 and j == 0: stampdq(o, 7)
        if gs == 1 and j == 0:
            o('buffer_load_dwordx2 v[112:113], v1, s[44:47], s23 offen sc1')
            return 1
        return 0
    o(f'''
L_dq:
    s_lshl_b32 s53, s51, 15
    s_add_u32 s53, s53, s48
    s_add_u32 s54, s53, 8192
    s_lshl_b32 s55, s51, 14
    v_lshrrev_b32_e32 v13, 5, v2              ; h
    v_and_b32_e32 v120, 31, v2                 ; m
    v_lshlrev_b32_e32 v12, 12, v13
    v_lshl_add_u32 v12, v120, 4, v12           ; h*8*512 + m*16
    s_cmp_ge_u32 s16, 2
    s_cbranch_scc1 L_dq_v
    s_lshr_b32 s56, s51, 1
    s_lshl_b32 s56, s56, 8
    s_add_u32 s56, s56, s49
    v_lshlrev_b32_e32 v121, 3, v120             ; m*8
    buffer_load_dwordx2 v[208:209], v121, s[36:39], s56 offen
    buffer_load_dwordx2 v[210:211], v121, s[40:43], s56 offen''')
    data_loads()
    o(f'''
    v_lshrrev_b32_e32 v119, 1, v120
    v_lshlrev_b32_e32 v119, 8, v119
    v_and_b32_e32 v120, 1, v120
    v_lshl_add_u32 v119, v120, 3, v119
    v_lshl_add_u32 v119, v13, 7, v119
    v_add_u32_e32 v119, s92, v119               ; LDS: (m/2)*256 + (m%2)*8 + h*128
    s_waitcnt vmcnt({NB1 + NT})
    v_lshlrev_b32_e32 v212, 16, v208
    v_and_b32_e32 v213, s60, v208
    v_lshlrev_b32_e32 v214, 16, v209
    v_and_b32_e32 v215, s60, v209
    v_lshlrev_b32_e32 v216, 16, v210
    v_and_b32_e32 v217, s60, v210
    v_lshlrev_b32_e32 v218, 16, v211
    v_and_b32_e32 v219, s60, v211
    v_pk_mul_f32 v[212:213], v[212:213], s[58:59]
    v_pk_mul_f32 v[214:215], v[214:215], s[58:59]
    v_pk_mul_f32 v[216:217], v[216:217], v[212:213] neg_lo:[1,0] neg_hi:[1,0]
    v_pk_mul_f32 v[218:219], v[218:219], v[214:215] neg_lo:[1,0] neg_hi:[1,0]''')
    young = NT
    for gs in range(2):
        for j in range(8):
            dwait(gs*8 + j, young)
            young += mid(gs, j)
            b = T + gs*32 + j*4
            for c in range(4): o(f'v_cvt_f32_i32_e32 v{b+c}, v{b+c}')
            o(f'v_pk_fma_f32 {rng("v", b, 2)}, {rng("v", b, 2)}, v[212:213], v[216:217]')
            o(f'v_pk_fma_f32 {rng("v", b+2, 2)}, {rng("v", b+2, 2)}, v[214:215], v[218:219]')
            o(f'v_cvt_pk_bf16_f32 v{b}, v{b}, v{b+1}')
            o(f'v_cvt_pk_bf16_f32 v{b+1}, v{b+2}, v{b+3}')
            o(f'ds_write_b64 v119, {rng("v", b, 2)} offset:{(j // 4)*4096 + (4*gs + j % 4)*16}')
    o('s_branch L_dq_out')
    o(f'''
L_dq_v:
    s_lshl_b32 s56, s51, 7
    s_add_u32 s56, s56, s49
    v_lshlrev_b32_e32 v121, 4, v13             ; h*16
    buffer_load_dwordx4 v[208:211], v121, s[36:39], s56 offen
    buffer_load_dwordx4 v[212:215], v121, s[36:39], s56 offen offset:32
    buffer_load_dwordx4 v[216:219], v121, s[40:43], s56 offen
    buffer_load_dwordx4 v[220:223], v121, s[40:43], s56 offen offset:32''')
    data_loads()
    o(f'''
    v_and_b32_e32 v119, 1, v120
    v_lshlrev_b32_e32 v119, 12, v119
    v_lshl_add_u32 v119, v13, 9, v119
    v_lshrrev_b32_e32 v120, 1, v120
    v_lshl_add_u32 v119, v120, 4, v119
    v_add_u32_e32 v119, s92, v119               ; LDS: (m%2)*4096 + h*512 + (m/2)*16
    s_waitcnt vmcnt({NB1 + NT})''')
    SCU, ZRU = 224, 240
    for p in range(8):
        o(f'v_lshlrev_b32_e32 v{SCU+2*p}, 16, v{208+p}')
        o(f'v_and_b32_e32 v{SCU+2*p+1}, s60, v{208+p}')
        o(f'v_lshlrev_b32_e32 v{ZRU+2*p}, 16, v{216+p}')
        o(f'v_and_b32_e32 v{ZRU+2*p+1}, s60, v{216+p}')
        o(f'v_pk_mul_f32 {rng("v", ZRU+2*p, 2)}, {rng("v", ZRU+2*p, 2)}, {rng("v", SCU+2*p, 2)} neg_lo:[1,0] neg_hi:[1,0]')
    young = NT
    for gs in range(2):
        ob = 208 if gs == 0 else T
        for j in range(8):
            dwait(gs*8 + j, young)
            young += mid(gs, j)
            b = T + gs*32 + j*4
            ix = (j // 4)*8 + 4*gs + j % 4
            zr, sc, sel = ZRU + (ix & ~1), SCU + (ix & ~1), ix & 1
            bc = f'op_sel:[0,{sel},{sel}] op_sel_hi:[1,{sel},{sel}]'
            for c in range(4): o(f'v_cvt_f32_i32_e32 v{b+c}, v{b+c}')
            for p in range(2):
                o(f'v_pk_fma_f32 {rng("v", b+2*p, 2)}, {rng("v", b+2*p, 2)}, {rng("v", sc, 2)}, {rng("v", zr, 2)} {bc}')
            if j & 1:
                for c in range(4):
                    o(f'v_cvt_pk_bf16_f32 v{ob + 4*c + j//2}, v{b - 4 + c}, v{b + c}')
        for c in range(4):
            o(f'ds_write_b128 v119, {rng("v", ob + 4*c, 4)} offset:{1024*c + 256*gs}')
    o('L_dq_out:')
    o('s_waitcnt lgkmcnt(0)')
    for f in range(8):
        o(f'ds_read_b128 {rng("v", T + 32 + 4*f, 4)}, v14 offset:{1024*f}')
    for f in range(8):
        o(f's_waitcnt lgkmcnt({7 - f})')
        vv = vD1 if f < 4 else vD2
        o(f'buffer_store_dwordx4 {rng("v", T + 32 + 4*f, 4)}, {vv}, s[4:7], s55 offen offset:{1024*(f%4)}')
    o('L_dq_done:')

def lane_reduce(op, tmp):
    r = []
    for sw in ('v_permlane16_swap_b32', 'v_permlane32_swap_b32'):
        r += [f'v_mov_b32_e32 v{tmp+q}, {vL[q]}' for q in range(4)]
        r += [f'{sw} {vL[q]}, v{tmp+q}' for q in range(4)]
        r += [f'{op} {vL[q]}, {vL[q]}, v{tmp+q}' for q in range(4)]
    return r

FA = 144
def out_group(qb, r, b, packed):
    f = FA + 4*qb + r
    ops = []
    if packed:
        fp, sel = f & ~1, f & 1
        ops += [f'v_pk_mul_f32 {rng("v", b+2*p, 2)}, {rng("v", b+2*p, 2)}, {rng("v", fp, 2)} op_sel:[0,{sel}] op_sel_hi:[1,{sel}]' for p in range(4)]
    else:
        ops += [f'v_mul_f32_e32 v{b+p}, v{b+p}, v{f}' for p in range(8)]
    ops += [f'v_cvt_pk_bf16_f32 v{b+p}, v{b+2*p}, v{b+2*p+1}' for p in range(4)]
    so = 's22' if qb == 0 else f's{60+qb}'
    ops.append(f'buffer_store_dwordx4 {rng("v", b, 4)}, v14, s[12:15], {so} offen offset:{256*r}{OPOL}')
    return ops

def factor_ops():
    return ([f'v_rcp_f32_e32 {vL[q]}, {vL[q]}' for q in range(4)],
            [f'ds_write_b32 v12, {vL[q]} offset:{64*q}' for q in range(4)],
            [f'ds_read_b128 {rng("v", FA+4*q, 4)}, v13 offset:{64*q}' for q in range(4)])

EPI_ADDR = f'''
    s_lshl_b32 s53, s16, 8
    s_add_u32 s53, s53, {LDS_SCR}
    v_lshl_add_u32 v12, v7, 2, s53
    v_lshl_add_u32 v13, v3, 4, s53
    v_lshlrev_b32_e32 v14, 10, v3
    v_lshl_add_u32 v14, v7, 4, v14'''

def gen_core(o, errs, pre_lines):
    st = OPT['st']
    carry = {}
    for rg, pr, tx in sm_ops(0):
        if st + rg >= 128: carry.setdefault(st + rg - 128, []).append((pr, tx))
    late = set(tx for l in carry.values() for _, tx in l)
    def check(c, tag):
        c(f'''
L_chk{tag}:
        v_cmp_eq_u64_e32 vcc, v[116:117], v[114:115]
        s_mov_b32 s95, {tag}
        s_andn2_b32 s56, s101, vcc_lo
        s_cbranch_scc1 L_pollslow
L_ok{tag}:''')
    def part_dma(c, slot):
        for grp in range(2):
            c(f's_add_u32 m0, s19, {slot*32768 + grp*4096}\ns_nop 0')
            for i in range(4): c(dma(grp, i))
        c('s_add_u32 s17, s17, 16384\ns_and_b32 s17, s17, 0x7ffff')
    def k0_reads(c):
        c(f'v_add_u32_e32 v12, {3*32768}, {vD1}')
        for f in range(16):
            if f == 12: c('s_waitcnt lgkmcnt(8)')
            c(f'ds_read_b128 {aF(f)}, v12 offset:{frag_off(f)}')
    def qk0(c, qb):
        c('s_waitcnt lgkmcnt(0)')
        ex = [(kb, r) for kb in range(4) for r in range(4)]
        pend = []
        for i in range(16):
            c(qk_mfma(i // 4, qb, i % 4))
            if pend:
                for x in pend: c(x)
                pend = []
            elif ex and 4*ex[0][0] + 3 + 4 <= i:
                kb, r = ex.pop(0)
                ops = [tx for _, _, tx in sm_elem(0, kb, qb, r)]
                c(ops[0]); pend = ops[1:]
        for kb, r in ex:
            ops = [tx for _, _, tx in sm_elem(0, kb, qb, r) if tx not in late]
            if ops and ops[0].startswith('v_exp'):
                c(ops[0]); ops = ops[1:]
            for x in pend: c(x)
            pend = ops
        for x in pend: c(x)
    def first_reads(c):
        for f in range(D):
            c(f'ds_read_b128 {aF(f)}, {vRd} offset:{frag_off(f)}')
    def enter(c):
        if OPT.get('holdb'):
            global NH
            NH += 1
            c(f'''
L_holdb{NH}:
    s_memrealtime s[82:83]
    s_waitcnt lgkmcnt(0)
    s_sub_u32 s82, s82, s80
    s_cmp_lt_u32 s82, {OPT['holdb']}
    s_cbranch_scc1 L_holdb{NH}''')
        if OPT.get('retry'): c('s_waitcnt lgkmcnt(0)\ns_sub_u32 s70, 20000, s57\ns_add_u32 s70, s70, s64\ns_addc_u32 s71, s65, 0\ns_add_u32 s72, s64, s94\ns_addc_u32 s73, s65, 0')
        c(EPI_ADDR)
        stamp(c, 5)
        c(f's_waitcnt lgkmcnt({0 if OPT["stamp"] else D - 4})')
        c('s_branch L_loop_in')
    com = Out()
    for x in l_init(): com(x)
    if OPT.get('trunc'): com('s_mov_b32 s3, 0x07060302')
    com(f'''
    s_add_u32 s17, s21, 1
    s_and_b32 s17, s17, 31
    s_mov_b32 s101, -1
    s_lshl_b32 s17, s17, 14
    s_lshl_b32 s19, s16, 13
    s_mov_b32 s57, {OPT['spin']}
    v_mov_b32_e32 {vRd}, {vD1}
    s_and_b32 s50, s21, 31
    s_or_b32 s50, s50, s16
    s_cselect_b32 s50, 99, 12
    s_mov_b32 s18, 15
    s_cmp_ge_u32 s16, 2
    s_cbranch_scc1 L_startB''')
    c = Out()
    qdma(c, range(0, 8))
    c(POLL)
    qdma(c, range(8, 16 - OPT['nql']))
    if OPT['go'] == 0: c('v_mov_b32_e32 v12, 1\nds_write_b32 v134, v12 offset:16')
    k0_reads(c)
    c(f's_waitcnt vmcnt({13 - OPT["nql"]})')
    stamp(c, 3)
    c(f's_waitcnt lgkmcnt({0 if OPT["stamp"] else 8})')
    qreads(c, [0])
    if OPT['go'] == 1: c('v_mov_b32_e32 v12, 1\nds_write_b32 v134, v12 offset:16')
    qdma(c, range(16 - OPT['nql'], 16))
    qk0(c, 0)
    c('s_waitcnt vmcnt(8)')
    qreads(c, [1])
    check(c, 1)
    stamp(c, 4)
    part_dma(c, 0)
    if OPT['go'] == 2: c('v_mov_b32_e32 v12, 1\nds_write_b32 v134, v12 offset:16')
    qk0(c, 1)
    c('s_waitcnt vmcnt(12)')
    qreads(c, [2])
    qk0(c, 2)
    c('s_waitcnt vmcnt(8)')
    qreads(c, [3])
    qk0(c, 3)
    stamp(c, 7)
    c('s_waitcnt vmcnt(0)')
    c(f'''
    v_mov_b32_e32 v12, 1
    ds_write_b32 v134, v12
    v_xor_b32_e32 v134, 4, v134
L_hs:
    ds_read_b32 v12, v134
    s_waitcnt lgkmcnt(0)
    v_cmp_ne_u32_e32 vcc, 1, v12
    s_cbranch_vccnz L_hs''')
    first_reads(c)
    part_dma(c, 1)
    c('s_add_u32 s32, s19, 0x18000\ns_add_u32 s19, s19, 0x10000')
    enter(c)
    c.l = fix_hazards(pre_lines + com.l, c.l, 'startA')
    cb = Out()
    cb('L_startB:')
    k0_reads(cb)
    cb(f'''
    v_mov_b32_e32 v134, {LDS_SCR + 2048 + 16}
L_go:
    ds_read_b64 v[12:13], v134
    s_waitcnt lgkmcnt(0)
    v_and_b32_e32 v12, v12, v13
    v_cmp_ne_u32_e32 vcc, 1, v12
    s_cbranch_vccnz L_go''')
    stamp(cb, 4)
    nb = OPT['bsplit']
    qdma(cb, range(0, 16 - nb))
    if not nb: cb(POLL)
    for qb in range(4):
        cb(f's_waitcnt vmcnt({(12 - nb if nb else 13) if qb == 0 else 13 - 4*qb if qb < 3 else 0})')
        if qb == 0:
            stamp(cb, 3)
            cb('s_waitcnt lgkmcnt(0)')
        qreads(cb, [qb])
        if qb == 0 and nb:
            qdma(cb, range(16 - nb, 16))
            cb(POLL)
        if qb == 3:
            check(cb, 3)
            part_dma(cb, 1)
        qk0(cb, qb)
    cb('s_waitcnt vmcnt(0)')
    stamp(cb, 7)
    cb('s_barrier')
    first_reads(cb)
    part_dma(cb, 2)
    cb('s_mov_b32 s32, s19\ns_add_u32 s19, s19, 0x18000')
    enter(cb)
    cb.l = fix_hazards(pre_lines + com.l, cb.l, 'startB')
    errs += check_hazards(pre_lines + com.l + cb.l, 'startB') + check_waits(pre_lines + com.l + cb.l, 'startB')
    c.l = com.l + c.l
    B = Block(256, carry)
    B.stage(0, 0); B.stage(1, 1)
    B.waits.append((256, [(2, j) for j in range(4)]))
    bars = [(256, 0)] if OPT['pairbar'] else [(128, 8), (256, 8)]
    for ge, vm in bars:
        gb = ge + RP - 4*D - 1
        B.mem[gb] += [f's_waitcnt vmcnt({vm})' + (' lgkmcnt(0)' if OPT['pull'] else ''), 's_barrier']
    B.val[256 + RP - 4*D - 1].append((5, f'v_xor_b32_e32 {vRd}, 0x10000, {vRd}'))
    for j in range(16):
        g = OPT['dma0'] + OPT['dmastep'] * j if OPT['pairbar'] else 128*(j // 8) + OPT['dma0'] + 12*(j % 8)
        if j % 4 == 0:
            B.mem[g - 1].append(f's_add_u32 m0, {"s19" if j < 8 else "s32"}, {((j // 4) % 2)*4096}')
        B.mem[g].append(dma((j // 4) % 2, j % 4))
        if j % 8 == 7:
            B.mem[g + 1].append('s_add_u32 s17, s17, 16384')
            B.mem[g + 2].append('s_and_b32 s17, s17, 0x7ffff')
        if j == 15:
            B.mem[g + 3].append('s_xor_b32 s19, s19, 0x10000')
            B.mem[g + 4].append('s_xor_b32 s32, s32, 0x10000')
    if OPT['stamp'] >= 2:
        B.mem[1].append('s_memtime s[84:85]')
        B.mem[2].append('s_memrealtime s[86:87]')
        B.mem[14].insert(0, 's_waitcnt lgkmcnt(0)')
        B.val[18].append((9, f'v_cmp_eq_u32_e32 vcc, s18, v2'))
        for k in range(4):
            B.val[20 + 2*k].append((9, f'v_mov_b32_e32 v244, s{84+k}'))
            B.val[21 + 2*k].append((9, f'v_cndmask_b32_e32 v{240+k}, v{240+k}, v244, vcc'))
    if OPT.get('wb'):
        g = OPT['dma0'] + 12*7 + 3
        assert not B.mem[g]
        B.mem[g] += ['s_cmp_eq_u32 s18, s50', 's_cbranch_scc1 L_dowb', 'L_nowb:']
    B.mem[253].append('s_sub_u32 s18, s18, 1')
    B.mem[254].append('s_cmp_lg_u32 s18, 0')
    assert B.finish() == carry
    loop = Out()
    B.emit(loop, 255)
    loop(B.mf[255])
    sc, head = B.gap_lines(255)
    for x in sc: loop(x)
    loop('s_cbranch_scc1 L_loop')
    E = Block(192, carry)
    E.stage(0, 0, nxt=False)
    for j in range(16):
        E.read(max(96 + 2*j, 72 + 4*j) + RP, (1, 16 + j), 16 + j, 32768 + frag_off(16 + j))
    if not OPT['pairbar']:
        E.mem[95 + RP] += ['s_cmp_ge_u32 s16, 2', 's_cbranch_scc1 L_nobar', 's_waitcnt vmcnt(0)', 's_barrier', 'L_nobar:']
    for i in range(64):
        E.mf[128 + i] = pv_mfma((i % 16) // 2, i // 16, i % 2, 1)
    for m in range(4):
        E.waits.append((128 + 4*m, [(1, 16 + 4*m + j) for j in range(4)]))
    if OPT['stamp'] >= 2:
        E.mem[1].append('s_memtime s[84:85]')
        E.mem[2].append('s_memrealtime s[86:87]')
        E.mem[14].insert(0, 's_waitcnt lgkmcnt(0)')
        for k in range(4):
            E.val[20 + k].append((9, f'v_writelane_b32 v{240+k}, s{84+k}, 0'))
    assert not E.finish()
    rc, dw, dr = factor_ops()
    seq = [(0, x) for x in lane_reduce('v_add_f32_e32', 32)]
    seq += [(0, x) for x in [
        f'v_min_f32_e32 v36, {vL[0]}, {vL[1]}', f'v_max_f32_e32 v37, {vL[0]}, {vL[1]}', f'v_add_f32_e32 v38, {vL[0]}, {vL[1]}',
        f'v_min3_f32 v36, v36, {vL[2]}, {vL[3]}', f'v_max3_f32 v37, v37, {vL[2]}, {vL[3]}', f'v_add_f32_e32 v39, {vL[2]}, {vL[3]}']]
    seq += [(0, x) for x in rc]
    seq += [(0, 'v_cmp_nle_f32_e64 s[56:57], s54, v36'), (0, 'v_cmp_nge_f32_e64 s[58:59], s55, v37'), (0, 'v_cmp_u_f32_e32 vcc, v38, v39')]
    seq += [(0, x) for x in dw] + [(0, 's_or_b64 s[56:57], s[56:57], s[58:59]'), (0, 's_waitcnt lgkmcnt(0)')] + [(0, x) for x in dr]
    seq += [(0, 's_or_b64 s[56:57], s[56:57], vcc'), (0, f's_cbranch_scc{1 if not OPT.get("nofb") else 0} L_fallback' if not OPT.get('nofb') else 's_nop 0')]
    E.mem[128].append(f's_mov_b32 s54, 0x{f32bits(2.0**-60):08x}')
    E.mem[129].append(f's_mov_b32 s55, 0x{f32bits(2.0**60):08x}')
    groups = []
    for qb in range(4):
        for r in range(4):
            b = 160 + ((qb*4 + r) % 8) * 8
            groups.append((qb, r, b))
    after = []
    g = 128 + st + (9 if RS else 2)
    def place(ops):
        nonlocal g
        used = 0
        for k, (eg, x) in enumerate(ops):
            if x.startswith('s_'):
                if used:
                    g += 1; used = 0
                if g >= 192: return ops[k:]
                E.mem[g].append(x); g += 1
                continue
            cost = 2 if (x.startswith('v_rcp') or x.startswith('buffer_')) else 1
            if used + cost > 2 or (used and not x.startswith('v_')):
                g += 1; used = 0
            if eg > g:
                g = eg; used = 0
            if g >= 192: return ops[k:]
            E.val[g].append((20 + k, x)); used += cost
        if used: g += 1
        return []
    left = place(seq)
    assert not left
    first = True
    for qb, r, b in groups:
        rd = [(128 + 16*qb + 20, f'v_accvgpr_read_b32 v{b+db}, {aOr(qb, db, r)}') for db in range(8)]
        if left or g >= 190:
            left += rd + [(0, x) for x in out_group(qb, r, b, True)]
            continue
        ops = rd + ([(0, 's_waitcnt lgkmcnt(0)')] if first else []) + [(0, x) for x in out_group(qb, r, b, False)]
        first = False
        left = place(ops)
    tail = Out()
    for x in head: tail(x)
    E.emit(tail)
    stamp(tail, 6)
    tail('s_nop 7')
    if OPT.get('apol'):
        restA = [x.replace(OPOL, flags(OPT['apol'])) if x.startswith('buffer_store') else x for _, x in left]
        tail('s_cmp_lt_u32 s16, 2\ns_cbranch_scc1 L_restA')
        global REST_A
        REST_A = restA
    for _, x in left: tail(x)
    lin = pre_lines + c.l + loop.l + ['    ' + x for x in head] + loop.l + tail.l
    errs += check_hazards(lin, 'core') + check_waits(lin, 'core')
    o.l += c.l + cb.l
    o('.p2align 6')
    o('L_loop:')
    for x in head: o(x)
    o('L_loop_in:')
    o.l += loop.l + tail.l

def gen_main():
    errs = []
    o = Out()
    o('s_cmp_ge_u32 s2, 256\ns_cbranch_scc1 L_end')
    stamp(o, 0)
    if OPT['stamp'] or OPT.get('hold') or OPT.get('holdb'): o('s_memrealtime s[80:81]')
    o(f'''
    s_load_dwordx4 s[8:11], s[0:1], 0         ; q, qk
    s_load_dwordx4 s[32:35], s[0:1], 16
    s_load_dwordx4 s[36:39], s[0:1], 32       ; k_zeros, v_scales
    s_load_dwordx4 s[12:15], s[0:1], 48       ; v_zeros, out
    s_load_dwordx4 s[24:27], s[0:1], 64
    s_memrealtime s[94:95]
    v_lshrrev_b32_e32 v1, 6, v0
    v_and_b32_e32 v2, 63, v0                  ; lane
    v_readfirstlane_b32 s16, v1               ; wave
    v_lshrrev_b32_e32 v3, 4, v2               ; g
    v_and_b32_e32 v7, 15, v2                  ; n
    v_lshlrev_b32_e32 {vD1}, 4, v2
    v_add_u32_e32 {vD2}, 0x1000, {vD1}
    s_and_b32 s20, s2, 7
    s_lshr_b32 s21, s2, 3
    s_lshl_b32 s22, s20, 5
    s_add_u32 s22, s22, s21
    s_lshl_b32 s22, s22, 16
    s_lshl_b32 s23, s16, 14
    s_add_u32 s22, s22, s23
    s_add_u32 s61, s22, 4096
    s_add_u32 s62, s22, 8192
    s_add_u32 s63, s22, 12288
    v_lshlrev_b32_e32 v118, 7, v2
    v_xor_b32_e32 v126, v7, v3
    v_lshlrev_b32_e32 v126, 4, v126
    v_lshl_add_u32 v130, v7, 8, v126
    v_lshl_add_u32 v126, v3, 8, v126            ; Q staging source: (lane/16)*256 + ((lane%16)^(lane/16))*16
    v_xor_b32_e32 v127, 64, v126
    v_xor_b32_e32 v128, 0x80, v126
    v_xor_b32_e32 v129, 0xc0, v126
    s_lshl_b32 s100, s16, 14
    s_add_u32 s100, s100, {2*32768}
    s_cmp_eq_u32 s16, 2
    s_cselect_b32 s100, {3*32768 + 16384}, s100
    s_cmp_eq_u32 s16, 3
    s_cselect_b32 s100, {LDS_QX}, s100
    v_add_u32_e32 v130, s100, v130
    v_xor_b32_e32 v131, 64, v130
    v_xor_b32_e32 v132, 0x80, v130
    v_xor_b32_e32 v133, 0xc0, v130
    s_and_b32 s23, s16, 1
    s_lshl_b32 s48, s20, 20
    s_lshl_b32 s53, s23, 14
    s_add_u32 s48, s48, s53
    s_lshl_b32 s49, s20, 12                   ; head*4096
    s_lshl_b32 s54, s20, 19                   ; head*512KB
    s_lshl_b32 s55, s23, 13
    s_add_u32 s55, s55, s54
    s_mov_b32 s60, 0xffff0000
    s_mov_b32 s93, 0
    s_getreg_b32 s3, hwreg(HW_REG_XCC_ID, 0, 4)
    v_mov_b32_e32 v1, 0
    s_mov_b32 s58, 0x{CSCALE:08x}
    s_mov_b32 s59, 0x{CSCALE:08x}
    s_mov_b32 s51, s21
    s_mov_b32 s52, 0
    s_lshl_b32 s92, s16, 13
    s_mov_b32 s6, {512 << 10}
    s_mov_b32 s7, 0x20000
    s_mov_b32 s30, {V_OFF + (512 << 10)}
    s_mov_b32 s31, 0x20000
    s_mov_b32 s42, 32768
    s_mov_b32 s43, 0x20000
    s_mov_b32 s46, 256
    s_mov_b32 s47, 0x20000
    s_mov_b32 s98, 8192
    s_mov_b32 s99, 0x20000
    s_lshl_b32 s56, s20, 2
    s_add_u32 s56, s56, s16
    s_lshl_b32 s56, s56, 13
    s_add_u32 s56, s56, {FLAG_OFF}
    s_cmp_ge_u32 s16, 2
    s_waitcnt lgkmcnt(0)
    s_cbranch_scc1 L_setv
    s_mov_b32 s40, s36
    s_mov_b32 s41, s37
    s_mov_b32 s36, s34
    s_mov_b32 s37, s35
    s_mov_b32 s32, s10
    s_mov_b32 s33, s11
    s_add_u32 s92, s92, {3*32768}             ; own K goes to slot 3
    s_branch L_setdone
L_setv:
    s_mov_b32 s40, s12                        ; v_zeros
    s_mov_b32 s41, s13
    s_mov_b32 s36, s38                        ; v_scales
    s_mov_b32 s37, s39
    s_add_u32 s55, s55, {V_OFF}
    s_lshl_b32 s23, s23, 6
    s_add_u32 s49, s49, s23
L_setdone:
    s_mov_b32 s34, {8 << 20}
    s_mov_b32 s35, 0x20000
    s_mov_b32 s38, 32768
    s_mov_b32 s39, 0x20000
    s_mov_b32 s10, {16 << 20}
    s_mov_b32 s11, 0x20000
    s_mov_b32 s12, s14
    s_mov_b32 s13, s15
    s_mov_b32 s14, {16 << 20}
    s_mov_b32 s15, 0x20000
    s_add_u32 s4, s26, s55
    s_addc_u32 s5, s27, 0
    s_add_u32 s28, s26, s54
    s_addc_u32 s29, s27, 0
    s_mov_b32 s44, s24
    s_mov_b32 s45, s25
    s_add_u32 s96, s26, s56
    s_addc_u32 s97, s27, 0
    s_lshl_b32 s23, s20, 5
    s_or_b32 s54, s21, s16
    s_cbranch_scc1 L_notag
    s_lshl_b64 s[94:95], s[94:95], 8
    s_or_b32 s94, s94, 0x80
    v_mov_b32_e32 v112, s94
    v_mov_b32_e32 v113, s95
    s_mov_b64 exec, 1
    buffer_store_dwordx2 v[112:113], v1, s[44:47], s23 offen sc1
    s_mov_b64 exec, -1
L_notag:
    v_add_u32_e32 v14, s92, {vD1}''')
    if OPT.get('pf'):
        o(f'''
    s_cmp_lg_u32 s16, 3
    s_cbranch_scc1 L_nopf
    s_getpc_b64 s[88:89]
    s_lshl_b32 s54, s21, 10
    v_add_u32_e32 v134, s54, {vD1}
    global_load_dwordx4 v[136:139], v134, s[88:89]
L_nopf:''')
    stampdq(o, 3)
    dq = Out()
    gen_dequant(dq)
    head = list(o.l)
    o.l += dq.l
    pre = Out()
    pre('s_cmp_lg_u32 s52, 0\ns_cbranch_scc1 L_help_next')
    nq1 = 0
    stamp(pre, 1)
    pre(f'''
    v_cmp_gt_u32_e32 vcc, 32, v2
    v_mov_b32_e32 v116, s3
    s_lshl_b32 s53, s21, 7
    s_mov_b32 s57, {OPT['spin']}
    s_mov_b32 s94, 0
    v_cndmask_b32_e32 v116, 16, v116, vcc
    s_lshl_b32 s56, s16, 2
    s_add_u32 s56, s56, {LDS_SCR + 2048}
    v_mov_b32_e32 v134, s56
    ds_write2_b32 v134, v1, v1 offset1:4
    s_waitcnt vmcnt({nq1})
L_tag:
    v_cmp_eq_u64_e32 vcc, 0, v[112:113]
    s_cbranch_vccnz L_tagslow
    v_add_u32_e32 v116, v116, v112
    v_mov_b32_e32 v117, v113
    s_mov_b64 exec, 1
    buffer_store_dwordx2 v[116:117], v1, s[96:99], s53 offen
    s_mov_b64 exec, -1
L_nopub:''')
    pre('s_waitcnt lgkmcnt(0)\ns_barrier')
    stamp(pre, 2)
    if OPT['stamp']: pre('s_waitcnt lgkmcnt(0)')
    o.l += pre.l
    ik, iv = dq.l.index('L_dq_v:'), dq.l.index('L_dq_out:')
    for path, nm in ((dq.l[:ik] + dq.l[iv:], 'dqk'), (dq.l[:11] + dq.l[ik:], 'dqv')):
        errs += check_hazards(head + path + pre.l, nm) + check_waits(head + path + pre.l, nm)
    gen_core(o, errs, pre.l)
    o('L_fin:')
    if OPT.get('hold'):
        o(f'''
    s_waitcnt vmcnt(0)
L_hold:
    s_memrealtime s[82:83]
    s_waitcnt lgkmcnt(0)
    s_sub_u32 s82, s82, s80
    s_cmp_lt_u32 s82, {OPT['hold']}
    s_cbranch_scc1 L_hold''')
    if OPT['stamp']:
        o(f'''
    s_memtime s[86:87]
    s_waitcnt vmcnt(0)
    s_memtime s[84:85]
    s_memrealtime s[82:83]
    s_waitcnt lgkmcnt(0)
    s_mov_b32 s88, s26
    s_mov_b32 s89, s27
    s_mov_b32 s90, 0x10000000
    s_mov_b32 s91, 0x20000
    s_lshl_b32 s101, s2, 2
    s_add_u32 s101, s101, s16
    s_lshl_b32 s92, s101, 7
    s_add_u32 s92, s92, {16 << 20}
    s_lshl_b32 s101, s101, 10
    s_add_u32 s101, s101, {17 << 20}''')
        if OPT.get('dbg'):
            o(f'''
    s_cmp_lg_u32 s16, 0
    s_cbranch_scc1 L_nodbg
    s_mov_b32 s53, 8
    s_cmp_eq_u32 s2, 9
    s_cbranch_scc1 L_dodbg
    s_mov_b32 s53, 40
    s_cmp_eq_u32 s2, 254
    s_cbranch_scc0 L_nodbg
L_dodbg:
    s_sub_u32 s54, s74, s64
    s_sub_u32 s55, s76, s64
    s_sub_u32 s56, s84, s64
    s_sub_u32 s57, s82, s80
    v_mov_b32_e32 v16, s54
    v_mov_b32_e32 v17, s55
    v_mov_b32_e32 v18, s56
    v_mov_b32_e32 v19, s57
    v_mov_b32_e32 v20, s80
    v_mov_b32_e32 v21, s82
    s_mov_b64 exec, 1
    buffer_store_dwordx4 v[16:19], v1, s[44:47], s53 offen
    buffer_store_dwordx2 v[20:21], v1, s[44:47], s53 offen offset:16
    s_mov_b64 exec, -1
    s_nop 1
L_nodbg:''')
        for k in range(24):
            o(f'v_mov_b32_e32 v{16+k}, s{64+k}')
        o('v_mov_b32_e32 v40, 0')
        for k in range(6):
            o(f'buffer_store_dwordx4 {rng("v", 16+4*k, 4)}, v40, s[88:91], s92 offen offset:{16*k}')
        if OPT['stamp'] >= 2:
            o(f'buffer_store_dwordx4 v[240:243], {vD1}, s[88:91], s101 offen')
    o('L_end:\ns_endpgm')
    if OPT.get('apol'):
        o('L_restA:')
        for x in REST_A: o(x)
        o('s_branch L_fin')
    if OPT.get('wb'): o('L_dowb:\nbuffer_wbl2 sc1\ns_branch L_nowb')
    o(f'''
L_tagslow:
    s_sub_u32 s57, s57, 1
    s_cselect_b32 s93, 1, 0
    s_cbranch_scc1 L_nopub
    s_sleep 1
    buffer_load_dwordx2 v[112:113], v1, s[44:47], s23 offen sc1
    s_waitcnt vmcnt(0)
    s_branch L_tag
L_pollslow:
    s_cmp_eq_u32 s93, 2
    s_cbranch_scc1 L_polldone
    s_cmp_eq_u32 s93, 1
    s_cbranch_scc1 L_help_nopub
    s_or_b32 s54, vcc_lo, vcc_hi
    s_andn2_b32 s54, s101, s54
    s_cselect_b32 s55, 0, 1
    s_sub_u32 s57, s57, 1
    s_cselect_b32 s56, 1, 0
    s_cmp_lt_u32 s57, {OPT['spin'] - OPT['upg'] if OPT['spin'] > OPT['upg'] else 0}
    s_cselect_b32 s55, 1, s55
    s_or_b32 s55, s55, s56
    s_cmp_gt_u32 s55, s94
    s_cbranch_scc0 L_noupg
    s_mov_b32 s94, 1
    s_add_u32 s55, s53, 4096
    buffer_wbl2 sc1
    s_waitcnt vmcnt(0)
    s_mov_b32 exec_lo, 0
    s_mov_b32 exec_hi, 1
    buffer_store_dwordx2 v[116:117], v1, s[96:99], s55 offen sc1
    s_mov_b64 exec, -1
L_noupg:
    s_cmp_lg_u32 s56, 0
    s_cbranch_scc1 L_help_nopub
    s_cmp_eq_u32 s54, 0
    s_cbranch_scc1 L_polldone
    buffer_load_dwordx2 v[114:115], v118, s[96:99], 0 offen sc1
    s_waitcnt vmcnt(0)
    s_cmp_eq_u32 s95, 1
    s_cbranch_scc1 L_chk1
    s_branch L_chk3
L_polldone:
    s_cmp_eq_u32 s95, 1
    s_cbranch_scc1 L_ok1
    s_branch L_ok3
L_help_nopub:
    s_waitcnt lgkmcnt(0)
    s_nop 7
    v_mov_b32_e32 v136, {vL[0]}
    v_mov_b32_e32 v137, {vL[1]}
    v_mov_b32_e32 v138, {vL[2]}
    v_mov_b32_e32 v139, {vL[3]}
    s_mov_b32 s92, s100
    v_add_u32_e32 v14, s92, {vD1}
    s_mov_b32 s52, 31
    s_branch L_help_go
L_help_next:
    s_sub_u32 s52, s52, 1
    s_cmp_eq_u32 s52, 0
    s_cbranch_scc1 L_help_done
L_help_go:
    s_waitcnt vmcnt(0)
    s_add_u32 s51, s21, s52
    s_and_b32 s51, s51, 31
    s_branch L_dq
L_help_done:
    s_waitcnt vmcnt(0) lgkmcnt(0)
    s_mov_b32 s93, 2
    {chr(10).join(f'v_mov_b32_e32 v{224 + k}, v{136 + k // 4}' for k in range(16)) if RS else ''}
    s_nop 1
    s_branch L_polldone''')
    fb = Out()
    def kloads(off):
        for f in range(16):
            if f % 8 == 0: fb(f's_add_u32 s53, s17, {off + (f // 8)*8192}')
            v = vD1 if f % 8 < 4 else vD2
            k = f if off == 0 else 16 + 2*(f % 8) + f // 8
            fb(f'buffer_load_dwordx4 {aF(k)}, {v}, s[28:31], s53 offen offset:{1024*(f%4)} sc1')
        fb('s_waitcnt vmcnt(0)')
    fb('L_fallback:\ns_waitcnt vmcnt(0) lgkmcnt(0)\ns_nop 7\ns_nop 7')
    for q in range(4): fb(f'v_mov_b32_e32 {vL[q]}, 0xff800000')
    fb('s_mov_b32 s17, 0\nL_maxloop:')
    kloads(0)
    for i in range(64): fb(qk_mfma(i // 16, (i // 4) % 4, i % 4))
    fb('s_nop 7')
    for kb in range(4):
        for qb in range(4):
            for r in (0, 2):
                fb(f'v_max3_f32 {vL[qb]}, {vL[qb]}, {vSr(kb, qb, r)}, {vSr(kb, qb, r+1)}')
    fb(f's_add_u32 s17, s17, 16384\ns_cmp_lt_u32 s17, {512 << 10}\ns_cbranch_scc1 L_maxloop')
    for x in lane_reduce('v_max_f32_e32', 16): fb(x)
    for q in range(4):
        for r in range(4): fb(f'v_sub_f32_e32 v{C0 + 4*q + r}, 0, {vL[q]}')
    for r in range(128): fb(f'v_accvgpr_write_b32 a{r}, 0')
    for x in l_init(): fb(x)
    fb('s_mov_b32 s17, 0\nL_p2loop:')
    kloads(0)
    for i in range(64): fb(qk_mfma(i // 16, (i // 4) % 4, i % 4, True))
    kloads(V_OFF)
    for kb in range(4):
        for qb in range(4):
            el = [sm_elem(0, kb, qb, r) for r in range(4)]
            for r in range(4): fb(el[r][0][2])
            for r in range(4):
                for _, _, tx in el[r][1:]: fb(tx)
    fb('s_nop 1')
    for i in range(64): fb(pv_mfma(i // 8, (i // 2) % 4, i % 2, 0))
    fb(f's_add_u32 s17, s17, 16384\ns_cmp_lt_u32 s17, {512 << 10}\ns_cbranch_scc1 L_p2loop')
    for x in lane_reduce('v_add_f32_e32', 16): fb(x)
    rc, dw, dr = factor_ops()
    for x in rc + ['s_nop 0'] + dw + ['s_waitcnt lgkmcnt(0)'] + dr + ['s_waitcnt lgkmcnt(0)']: fb(x)
    for qb in range(4):
        for r in range(4):
            b = 160 + ((qb*4 + r) % 8) * 8
            for db in range(8): fb(f'v_accvgpr_read_b32 v{b+db}, {aOr(qb, db, r)}')
            for x in out_group(qb, r, b, True): fb(x)
    fb('s_branch L_fin')
    i1, i2 = fb.l.index('L_maxloop:'), fb.l.index('L_p2loop:')
    fb.l = fix_hazards([], fb.l, 'fb')
    i2 = fb.l.index('L_p2loop:')
    errs += check_hazards(fb.l, 'fb') + check_waits(fb.l, 'fb')
    p2 = fb.l[i2:[k for k, x in enumerate(fb.l) if 'L_p2loop' in x][-1] + 1]
    errs += check_hazards(p2 + p2, 'fb2')
    o.l += fb.l
    return o.l, errs

HEADER = open('cdna_kernels/' + NAME + '.s.ref').read().split('; @launch')[0]

def main():
    mn, errs = gen_main()
    for e in errs:
        print(e, file=sys.stderr)
    if errs and not OPT.get('nofb'):
        sys.exit(1)
    nm = NAME + '_kernel'
    txt = HEADER + f'; @launch grid=(256,1,1) block=(256,1,1) lds={LDS_TOTAL}\n'
    txt += '.amdgcn_target "amdgcn-amd-amdhsa--gfx950"\n.text\n'
    txt += f'.globl {nm}\n.p2align 8\n.type {nm},@function\n{nm}:\n' + '\n'.join(mn) + '\n'
    txt += f'''.section .rodata,"a"
.p2align 6
.amdhsa_kernel {nm}
  .amdhsa_next_free_vgpr 512
  .amdhsa_next_free_sgpr 102
  .amdhsa_accum_offset 256
  .amdhsa_group_segment_fixed_size 0
  .amdhsa_kernarg_size 80
  .amdhsa_user_sgpr_count 2
  .amdhsa_user_sgpr_kernarg_segment_ptr 1
  .amdhsa_system_sgpr_workgroup_id_x 1
  .amdhsa_float_denorm_mode_32 3
.end_amdhsa_kernel
'''
    open(sys.argv[1], 'w').write(txt)

main()
```

```python
import re

def regs_of(tok):
    tok = tok.strip()
    neg = tok.lstrip('-')
    if neg.startswith('abs(') and neg.endswith(')'):
        neg = neg[4:-1]
    if neg.startswith('|') and neg.endswith('|'):
        neg = neg[1:-1]
    m = re.fullmatch(r'([vas])(\d+)', neg)
    if m:
        return [(m.group(1), int(m.group(2)))]
    m = re.fullmatch(r'([vas])\[(\d+):(\d+)\]', neg)
    if m:
        return [(m.group(1), i) for i in range(int(m.group(2)), int(m.group(3)) + 1)]
    if neg in ('vcc', 'vcc_lo', 'vcc_hi'):
        return [('vcc', 0)]
    if neg == 'm0':
        return [('m0', 0)]
    if neg in ('exec', 'exec_lo', 'exec_hi'):
        return [('exec', 0)]
    return []

TRANS = ('v_exp_f32', 'v_log_f32', 'v_rcp_f32', 'v_rsq_f32', 'v_sqrt_f32', 'v_sin_f32', 'v_cos_f32')

class I:
    def __init__(self, text):
        self.text = text
        t = text.split(';')[0].strip()
        self.mn = t.split()[0]
        rest = t[len(self.mn):].strip()
        ops, depth, cur = [], 0, ''
        for ch in rest:
            if ch in '[(':
                depth += 1
            if ch in '])':
                depth -= 1
            if ch == ',' and depth == 0:
                ops.append(cur.strip()); cur = ''
            else:
                cur += ch
        if cur.strip():
            ops.append(cur.strip())
        self.mods = []
        if ops:
            parts = ops[-1].split()
            ops[-1] = parts[0]
            self.mods = parts[1:]
        self.ops = ops
        mn = re.sub(r'_(e32|e64|sdwa|dpp)$', '', self.mn)
        self.base = mn
        self.rd, self.wr = [], []
        self.kind = 'other'
        R = lambda k: regs_of(ops[k]) if k < len(ops) else []
        if mn.startswith('v_smfmac'):
            self.kind = 'mfma'
            self.wr = R(0); self.A = R(1); self.B = R(2) + R(3); self.C = R(0)
            self.rd = self.A + self.B + self.C
            self.passes = 8
        elif mn.startswith('v_mfma'):
            self.kind = 'mfma'
            self.wr = R(0); self.A = R(1); self.B = R(2); self.C = R(3)
            self.rd = self.A + self.B + self.C
            self.passes = 8 if '32x32' in mn else 2 if '4x4x4' in mn else 4
        elif mn.startswith('v_cmp'):
            self.kind = 'valu'
            self.wr = R(0); self.rd = R(1) + R(2)
        elif mn in ('v_readfirstlane_b32', 'v_readlane_b32'):
            self.kind = 'valu'
            self.wr = R(0); self.rd = sum((R(k) for k in range(1, len(ops))), [])
        elif mn.startswith('v_permlane') and 'swap' in mn:
            self.kind = 'valu'
            self.wr = R(0) + R(1); self.rd = R(0) + R(1)
        elif mn.startswith('v_'):
            self.kind = 'valu'
            self.wr = R(0)
            start = 1
            if mn in ('v_add_co_u32', 'v_addc_co_u32', 'v_sub_co_u32'):
                self.wr += R(1); start = 2
            self.rd = sum((R(k) for k in range(start, len(ops))), [])
            if mn in ('v_fmac_f32', 'v_dot2c_f32_bf16'):
                self.rd += R(0)
            if mn == 'v_nop':
                self.wr = []
        elif mn.startswith('ds_read') or mn.startswith('ds_bpermute') or mn.startswith('ds_swizzle'):
            self.kind = 'ds'
            self.wr = R(0); self.rd = sum((R(k) for k in range(1, len(ops))), [])
        elif mn.startswith('ds_write') or mn.startswith('ds_'):
            self.kind = 'ds'
            self.rd = sum((R(k) for k in range(0, len(ops))), [])
        elif mn.startswith('buffer_load') or mn.startswith('global_load'):
            self.kind = 'vmem'
            self.lds = ('lds' in self.mods) or ('_lds_' in mn)
            if self.lds:
                self.rd = sum((R(k) for k in range(0, len(ops))), []) + [('m0', 0)]
            else:
                self.wr = R(0); self.rd = sum((R(k) for k in range(1, len(ops))), [])
        elif mn.startswith('buffer_store') or mn.startswith('global_store') or mn.startswith('buffer_atomic') or mn.startswith('global_atomic'):
            self.kind = 'vmem'
            self.store = True
            self.rd = sum((R(k) for k in range(0, len(ops))), [])
            if mn.startswith('buffer_'):
                self.data = R(0)
            else:
                self.data = R(1)
            if 'atomic' in mn and 'sc0' in self.mods:
                self.wr = R(0)
        elif mn in ('buffer_inv', 'buffer_wbl2'):
            self.kind = 'vmem'
        elif mn.startswith('s_load') or mn in ('s_memtime', 's_memrealtime'):
            self.kind = 'smem'
            self.wr = R(0); self.rd = R(1)
        elif mn.startswith('s_cmp') or mn.startswith('s_bitcmp'):
            self.kind = 'salu'
            self.rd = R(0) + R(1)
        elif mn in ('s_waitcnt', 's_barrier', 's_nop', 's_endpgm', 's_setprio', 's_sleep', 's_branch', 's_call_b64', 's_setpc_b64') or mn.startswith('s_cbranch'):
            self.kind = 'ctl'
        elif mn.startswith('s_'):
            self.kind = 'salu'
            self.wr = R(0); self.rd = sum((R(k) for k in range(1, len(ops))), [])
            if mn == 's_bfm_b64': pass
            if 'saveexec' in mn:
                self.wr += [('exec', 0)]
        self.trans = mn in TRANS
        self.states = 1
        if mn == 's_nop':
            self.states = int(ops[0], 0) + 1

def ov(a, b):
    return bool(set(a) & set(b))

def check_hazards(lines, name=''):
    ins = [I(l) for l in lines if l.strip() and not l.strip().startswith(';') and not l.strip().endswith(':') and not l.strip().startswith('.')]
    errs = []
    n = len(ins)
    for j, c in enumerate(ins):
        dist = 0
        for i in range(j - 1, max(-1, j - 40), -1):
            p = ins[i]
            need = 0
            why = ''
            if p.kind == 'mfma':
                big = {8: 12, 4: 8, 2: 5}[p.passes]
                if c.kind == 'mfma':
                    if ov(p.wr, c.A + c.B):
                        need, why = big, 'mfma D -> mfma A/B'
                    if ov(p.wr, c.C):
                        if not (p.wr == c.C and p.passes == c.passes):
                            need, why = max(need, {8: 10, 4: 6, 2: 4}[p.passes]), 'mfma D -> mfma C partial'
                        elif p.passes == 2:
                            need, why = max(need, 2), 'mfma 2-pass chain'
                elif c.kind == 'valu':
                    if ov(p.wr, c.rd + c.wr):
                        need, why = big, 'mfma D -> valu'
                    if ov(p.C, c.wr):
                        w = {8: 7, 4: 3, 2: 1}[p.passes]
                        if w > need:
                            need, why = w, 'mfma C read -> valu write'
                elif c.kind in ('ds', 'vmem'):
                    if ov(p.wr, c.rd + c.wr):
                        need, why = big, 'mfma D -> mem'
            elif p.kind == 'valu':
                vw = [r for r in p.wr if r[0] in 'va']
                sw = [r for r in p.wr if r[0] in ('s', 'vcc')]
                if c.kind == 'mfma' and ov(vw, c.rd):
                    need, why = 2, 'valu -> mfma'
                if c.kind == 'valu':
                    if p.trans and not c.trans and ov(vw, c.rd):
                        need, why = max(need, 1), 'trans -> valu'
                    if c.base.startswith('v_permlane') and ov(vw, c.rd):
                        need, why = max(need, 2), 'valu -> permlane'
                    if c.mn.endswith('_dpp') and ov(vw, c.rd):
                        need, why = max(need, 2), 'valu -> dpp'
                    if c.base in ('v_readfirstlane_b32', 'v_readlane_b32') and ov(vw, c.rd):
                        need, why = max(need, 1), 'valu -> readlane'
                    if ov(sw, c.rd):
                        need, why = max(need, 2), 'valu sgpr -> valu'
                    if (p.mn.endswith('_sdwa')) and ov(vw, c.rd + c.wr):
                        need, why = max(need, 1), 'sdwa -> valu'
                if c.kind == 'vmem' and ov(sw, c.rd):
                    need, why = 5, 'valu sgpr -> vmem'
                if c.kind in ('salu',) and ov(sw, c.rd):
                    need, why = max(need, 1), 'valu sgpr -> salu (pad)'
            elif p.kind == 'salu':
                if ('m0', 0) in p.wr and c.kind == 'vmem' and getattr(c, 'lds', False):
                    need, why = 1, 'm0 -> lds dma'
            elif p.kind == 'vmem' and getattr(p, 'store', False):
                if len(p.data) >= 3 and ov(p.data, c.wr):
                    need, why = (2 if c.kind == 'valu' else 1), 'store data WAR'
            if need > dist:
                errs.append(f'{name}: hazard "{why}" need {need} have {dist}:\n   [{i}] {p.text.strip()}\n   [{j}] {c.text.strip()}')
            dist += p.states
            if dist >= 20:
                break
    return errs

def check_waits(lines, name='', lg_init=None, vm_init=None):
    ins = [I(l) for l in lines if l.strip() and not l.strip().startswith(';') and not l.strip().endswith(':') and not l.strip().startswith('.')]
    lg, vm = list(lg_init or []), list(vm_init or [])
    errs = []
    for j, c in enumerate(ins):
        if c.mn == 's_waitcnt':
            t = c.text.split(';')[0]
            m = re.search(r'vmcnt\((\d+)\)', t)
            if m:
                k = int(m.group(1))
                while len(vm) > k:
                    vm.pop(0)
            m = re.search(r'lgkmcnt\((\d+)\)', t)
            if m:
                k = int(m.group(1))
                if k > 0 and any(x[0] == 'smem' for x in lg):
                    errs.append(f'{name}: counted lgkmcnt with smem outstanding at [{j}]')
                while len(lg) > k:
                    lg.pop(0)
            continue
        touched = c.rd + c.wr
        for q in (lg, vm):
            for kind, w, txt in q:
                if ov(w, touched):
                    errs.append(f'{name}: unwaited load result touched:\n   load {txt.strip()}\n   [{j}] {c.text.strip()}')
        if c.kind == 'ds':
            lg.append(('ds', c.wr, c.text))
            if len(lg) > 15:
                lg.pop(0)
        elif c.kind == 'smem':
            lg.append(('smem', c.wr, c.text))
        elif c.kind == 'vmem':
            vm.append(('vm', c.wr, c.text))
            if len(vm) > 63:
                errs.append(f'{name}: vmcnt overflow at [{j}]')
    return errs

def isize(text):
    i = I(text)
    mn = i.mn
    lit = False
    for o in i.ops:
        if re.fullmatch(r'-?(0x[0-9a-fA-F]+|\d+)', o):
            v = int(o, 0)
            if not (-16 <= v <= 64):
                lit = True
    if i.kind in ('mfma', 'ds', 'vmem', 'smem'):
        return 8
    if i.kind == 'ctl':
        return 4
    if i.kind == 'salu':
        if mn.startswith('s_movk') or mn.startswith('s_addk') or mn.startswith('s_getreg') or mn.startswith('s_cmpk'):
            return 4
        return 8 if lit else 4
    if i.kind == 'valu':
        if mn.endswith('_e32'):
            return 8 if lit else 4
        return 8
    raise ValueError(text)

def fix_hazards(prefix, lines, name=''):
    lines = list(lines)
    isins = lambda l: l.strip() and not l.strip().startswith(';') and not l.strip().endswith(':') and not l.strip().startswith('.')
    npre = len([l for l in prefix if isins(l)])
    for _ in range(2000):
        errs = check_hazards(prefix + lines, name)
        errs = [e for e in errs if int(re.findall(r'\[(\d+)\]', e)[1]) >= npre]
        if not errs:
            return lines
        e = errs[0]
        need, have = map(int, re.search(r'need (\d+) have (\d+)', e).groups())
        j = int(re.findall(r'\[(\d+)\]', e)[1]) - npre
        pos = [k for k, l in enumerate(lines) if isins(l)][j]
        lines.insert(pos, f'    s_nop {need - have - 1}')
    raise RuntimeError('fix_hazards did not converge')
```

```python
import sys, struct, math
from asmlib import *

NAME = 'standalone__kv_cache_quant_int4_int2_kv_with_per_channel_or_per_token_scales__prompt'
OPT = dict(lpos=15, early=4, skew=1, nra=0, nrb=0, go=1, bsplit=8, zpos=1, bsleep=0, pull=6, wb=1, nb1=11, barfirst=1, nql=0, nqb=0, nqa=0, touch=1, upg=8, pol='nt', stamp=0, d=6, st=7, dma0=6, dmastep=10, spin=20000, opol='nt', rp=0, pairbar=0)
for a in sys.argv[2:]:
    k, v = a.split('=', 1)
    OPT[k] = eval(v)

def f32bits(x):
    return struct.unpack('<I', struct.pack('<f', x))[0]

CSCALE = f32bits(128 ** -0.5 * math.log2(math.e))
V_OFF = 4 << 20
FLAG_OFF = 9 << 20
MF = 'v_mfma_f32_16x16x32_bf16'
D, RP = OPT['d'], OPT['rp']
def flags(x): return (' ' + x.replace('_', ' ')) if x else ''
POL, OPOL, SC1 = flags(OPT['pol']), flags(OPT['opol']), ' sc1'

class Out:
    def __init__(self):
        self.l = []
    def __call__(self, s):
        for x in s.strip('\n').split('\n'):
            if x.strip():
                self.l.append(x.strip() if x.strip().endswith(':') or x.startswith('.') else '    ' + x.strip())

def rng(p, b, n): return f'{p}[{b}:{b+n-1}]'
def aO(qb, db): return rng('a', (qb*8+db)*4, 4)
def aOr(qb, db, r): return f'a{(qb*8+db)*4 + r}'
def aQ(qb, ks): return rng('a', 128 + (qb*4+ks)*4, 4)
def aF(k): return rng('a', 192 + (k % 16)*4, 4)
S0, P0, C0, T0 = 16, 80, 144, 144
def vS(kb, qb): return rng('v', S0 + (kb*4+qb)*4, 4)
def vSr(kb, qb, r): return f'v{S0 + (kb*4+qb)*4 + r}'
def vP(buf, t, qb): return rng('v', P0 + buf*32 + (qb*2+t)*4, 4)
def vPr(buf, t, qb, i): return f'v{P0 + buf*32 + (qb*2+t)*4 + i}'
def vC(qb): return rng('v', C0 + qb*4, 4)
vM = ['v8', 'v9', 'v10', 'v11']
IDX = 15
L0, ONES = 224, 240
def vLt(qb): return rng('v', L0 + 4*qb, 4)
vRd, vD1, vD2 = 'v4', 'v5', 'v6'
LDS_RING = 131072
LDS_SCR = LDS_RING
LDS_HS = LDS_RING + 4096
LDS_QX = LDS_HS + 256
LDS_TOTAL = LDS_QX + 16384

def frag_off(k):
    if k < 16:
        return k * 1024
    db, t = (k - 16) // 2, (k - 16) % 2
    return 16384 + t * 8192 + db * 1024

def sm_elem(buf, kb, qb, r):
    s = vSr(kb, qb, r)
    ops = [(0, 0, f'v_exp_f32_e32 {s}, {s}')]
    if r & 1:
        ops.append((3, 2, f'v_cvt_pk_bf16_f32 {vPr(buf, kb//2, qb, (kb%2)*2 + r//2)}, {vSr(kb, qb, r-1)}, {s}'))
    return ops

def l_mfma(buf, qb):
    return [f'v_smfmac_f32_16x16x64_bf16 {vLt(qb)}, {rng("v", ONES, 4)}, {rng("v", P0 + buf*32 + qb*8, 8)}, v{IDX}']

def l_init():
    return ([f'v_mov_b32_e32 v{L0 + k}, 0' for k in range(16)] +
            ['v_cmp_gt_u32_e32 vcc, 2, v7', f'v_mov_b32_e32 v{ONES}, 0x3f803f80', f'v_mov_b32_e32 v{IDX}, 0x44444444'] +
            [f'v_cndmask_b32_e32 v{ONES + k}, v1, v{ONES}, vcc' for k in (3, 2, 1, 0)] +
            ['v_cmp_eq_u32_e32 vcc, 1, v7', 'v_mov_b32_e32 v12, 0xeeeeeeee', 's_nop 0', f'v_cndmask_b32_e32 v{IDX}, v{IDX}, v12, vcc'])

def sm_ops(buf, order=None):
    order = order or [(e // 4, e % 4) for e in range(16)]
    return [(2*e + dg, pr, tx) for e in range(64) for dg, pr, tx in sm_elem(buf, order[e // 4][0], order[e // 4][1], e % 4)]

def qk_mfma(kb, qb, ks, cinit=False):
    c = (vC(qb) if cinit else '0') if ks == 0 else vS(kb, qb)
    return f'{MF} {vS(kb, qb)}, {aF(kb*4+ks)}, {aQ(qb, ks)}, {c}'

def pv_mfma(db, qb, t, buf):
    return f'{MF} {aO(qb, db)}, {vP(buf, t, qb)}, {aF(16 + db*2 + t)}, {aO(qb, db)}'

def dma(grp, i, srd='s[4:7]', so='s17'):
    v = vD1 if grp == 0 else vD2
    return f'buffer_load_dwordx4 {v}, {srd}, {so} offen offset:{1024*i}{SC1} lds'

class Block:
    def __init__(self, G, carry):
        self.G = G
        self.mf = [None] * G
        self.mem = [[] for _ in range(G)]
        self.val = [[] for _ in range(G + 140)]
        for g, lst in carry.items():
            self.val[g] += lst
        self.reads = [(4*f + RP - 4*D, (0, f)) for f in range(D)]
        self.waits = []
    def read(self, g, ident, f, off):
        self.mem[g].append(f'ds_read_b128 {aF(f)}, {vRd} offset:{off}')
        self.reads.append((g, ident))
    def finish(self):
        self.reads.sort(key=lambda r: r[0])
        ids = [r[1] for r in self.reads]
        for gw, need in self.waits:
            if gw == 0: continue
            p = max(ids.index(x) for x in need)
            assert self.reads[p][0] < gw - 1, (gw, need)
            w = len([1 for r in self.reads[p+1:] if r[0] < gw - 1])
            self.mem[gw - 1].insert(0, f's_waitcnt lgkmcnt({w})')
        return {g - self.G: self.val[g] for g in range(self.G, len(self.val)) if self.val[g]}
    def stage(self, k, par, nxt=True):
        g0 = 128 * k
        for i in range(64):
            self.mf[g0 + i] = qk_mfma(i // 16, (i // 4) % 4, i % 4)
            self.mf[g0 + 64 + i] = pv_mfma(i // 8, (i // 2) % 4, i % 2, par)
        for rg, pr, tx in sm_ops(par ^ 1):
            self.val[g0 + OPT['st'] + rg].append((pr, tx))
        for qb in range(4):
            for t, x in enumerate(l_mfma(par, qb)):
                self.val[g0 + 64 + 16*qb + OPT['lpos']].append((30 + t, x))
        for f in range(D, 32 + (D if nxt else 0)):
            g = g0 + 4*f + RP - 4*D
            if f in (30, 31): g -= OPT['pull']
            if f < 32: self.read(g, (k, f), f, par*32768 + frag_off(f))
            else: self.read(g, (k + 1, f - 32), f, (par ^ 1)*32768 + frag_off(f - 32))
        for m in range(8):
            self.waits.append((g0 + 16*m, [(k, 4*m + j) for j in range(4)]))
    def gap_lines(self, g):
        v = [t for _, t in sorted(self.val[g], key=lambda z: z[0])]
        m = self.mem[g]
        if OPT.get('no_exp'): v = [t for t in v if not t.startswith('v_exp')]
        if OPT.get('no_add'): v = [t for t in v if not t.startswith('v_add')]
        if OPT.get('no_cvt'): v = [t for t in v if not t.startswith('v_cvt')]
        if OPT.get('no_lds'): m = [t for t in m if not t.startswith('ds_read')]
        if OPT.get('no_dma'): m = [t for t in m if not t.startswith('buffer_load')]
        if any(t.endswith(':') for t in m):
            return m, v
        sc = [t for t in m if t.startswith('s_')]
        return sc, [t for t in m if not t.startswith('s_')] + v
    def emit(self, o, upto=None):
        for g in range(upto if upto is not None else self.G):
            o(self.mf[g])
            sc, ve = self.gap_lines(g)
            for x in sc + ve: o(x)

def stampdq(o, k):
    if OPT.get('stampdq'):
        o(f's_memtime s[{64+2*k}:{65+2*k}]')

def stampp(o, k):
    if OPT.get('stampp'):
        o(f's_memtime s[{64+2*k}:{65+2*k}]')

def stamp(o, k):
    if OPT.get('stampp') and k in (4, 5, 7):
        return
    if OPT.get('stampdq') and k in (3, 4, 5, 7):
        return
    if OPT['stamp']:
        o(f's_memtime s[{64+2*k}:{65+2*k}]')

NINIT = 0
def init_work(o):
    global NINIT
    NINIT += 1
    o(f's_cmp_lg_u32 s52, 0\ns_cbranch_scc1 L_noinit{NINIT}')
    for r in range(128):
        o(f'v_accvgpr_write_b32 a{r}, 0')
    o(f'L_noinit{NINIT}:')

def qdma(o, idx):
    idx = list(idx)
    for i in idx:
        if i % 4 == 0 or i == idx[0]:
            o(f's_add_u32 m0, s100, {(i // 4)*4096}')
            o('s_nop 0')
        so = 's22' if i < 4 else f's{60 + i // 4}'
        o(f'buffer_load_dwordx4 v{126 + i % 4}, s[8:11], {so} offen offset:{1024*(i % 4)}{POL} lds')
    return len(idx)

def qreads(o, qbs):
    for qb in qbs:
        for ks in range(4):
            o(f'ds_read_b128 {aQ(qb, ks)}, v{130 + ks} offset:{4096*qb}')

POLL = 'buffer_load_dwordx2 v[114:115], v118, s[96:99], 0 offen sc1'

class Seq(Out):
    def __init__(self):
        super().__init__()
        self.vq = []
        self.m0 = None
    def vm(self, text, tag):
        self(text); self.vq.append(tag)
    def after(self, *tags):
        return len(self.vq) - 1 - max(i for i, t in enumerate(self.vq) if t in tags)
    def vwait(self, *tags):
        self(f's_waitcnt vmcnt({self.after(*tags)})')
    def q(self, i):
        if self.m0 != ('q', i // 4):
            self(f's_add_u32 m0, s100, {(i // 4)*4096}\ns_nop 0'); self.m0 = ('q', i // 4)
        so = 's22' if i < 4 else f's{60 + i // 4}'
        self.vm(f'buffer_load_dwordx4 v{126 + i % 4}, s[8:11], {so} offen offset:{1024*(i % 4)}{POL} lds', f'q{i}')

def gen_dequant(o, kind, helper, nroll=0, between=None):
    T = T0
    NB1 = 16 if helper else OPT['nb1']
    todo = [('d', x) for x in range(NB1, 16)] + [('q', i) for i in range(nroll)]
    def dload(x):
        gs, j = x // 8, x % 8
        so = 's53' if j < 4 else 's54'
        o.vm(f'buffer_load_dwordx4 {rng("v", T + gs*32 + j*4, 4)}, v12, s[32:35], {so} offen offset:{512*(4*gs + j%4)}{POL}', f'd{x}')
    def step(x):
        o.vwait(f'd{x}')
        if x == 0 and not helper: stampdq(o, 7)
        if x == 8 and not helper:
            o.vm('buffer_load_dwordx2 v[112:113], v1, s[44:47], s23 offen sc1', 'tag')
        if todo:
            k, i = todo.pop(0)
            dload(i) if k == 'd' else o.q(i)
    if helper:
        o('''
    s_lshl_b32 s53, s51, 15
    s_add_u32 s53, s53, s48''')
    else:
        o.vq += ['d0', 'd1']
    o('''
    s_add_u32 s54, s53, 8192
    s_lshl_b32 s55, s51, 14''')
    if kind == 'k':
        o('s_lshr_b32 s56, s51, 1\ns_lshl_b32 s56, s56, 8\ns_add_u32 s56, s56, s49')
        o.vm('buffer_load_dwordx2 v[208:209], v121, s[36:39], s56 offen', 'sc')
        o.vm('buffer_load_dwordx2 v[210:211], v121, s[40:43], s56 offen', 'sc')
    else:
        o('s_lshl_b32 s56, s51, 7\ns_add_u32 s56, s56, s49')
        o.vm('buffer_load_dwordx4 v[208:211], v121, s[36:39], s56 offen', 'sc')
        o.vm('buffer_load_dwordx4 v[212:215], v121, s[36:39], s56 offen offset:32', 'sc')
        o.vm('buffer_load_dwordx4 v[216:219], v121, s[40:43], s56 offen', 'sc')
        o.vm('buffer_load_dwordx4 v[220:223], v121, s[40:43], s56 offen offset:32', 'sc')
    for x in range(0 if helper else 2, NB1): dload(x)
    if between: between()
    o.vwait('sc')
    if kind == 'k':
        o('''
    v_lshlrev_b32_e32 v212, 16, v208
    v_and_b32_e32 v213, s60, v208
    v_lshlrev_b32_e32 v214, 16, v209
    v_and_b32_e32 v215, s60, v209
    v_lshlrev_b32_e32 v216, 16, v210
    v_and_b32_e32 v217, s60, v210
    v_lshlrev_b32_e32 v218, 16, v211
    v_and_b32_e32 v219, s60, v211
    v_pk_mul_f32 v[212:213], v[212:213], s[58:59]
    v_pk_mul_f32 v[214:215], v[214:215], s[58:59]
    v_pk_mul_f32 v[216:217], v[216:217], v[212:213] neg_lo:[1,0] neg_hi:[1,0]
    v_pk_mul_f32 v[218:219], v[218:219], v[214:215] neg_lo:[1,0] neg_hi:[1,0]''')
        for gs in range(2):
            for j in range(8):
                step(gs*8 + j)
                b = T + gs*32 + j*4
                for c in range(4): o(f'v_cvt_f32_i32_e32 v{b+c}, v{b+c}')
                o(f'v_pk_fma_f32 {rng("v", b, 2)}, {rng("v", b, 2)}, v[212:213], v[216:217]')
                o(f'v_pk_fma_f32 {rng("v", b+2, 2)}, {rng("v", b+2, 2)}, v[214:215], v[218:219]')
                o(f'v_cvt_pk_bf16_f32 v{b}, v{b}, v{b+1}')
                o(f'v_cvt_pk_bf16_f32 v{b+1}, v{b+2}, v{b+3}')
                o(f'ds_write_b64 v119, {rng("v", b, 2)} offset:{(j // 4)*4096 + (4*gs + j % 4)*16}')
    else:
        SCU, ZRU = 224, 240
        for p in range(8):
            o(f'v_lshlrev_b32_e32 v{SCU+2*p}, 16, v{208+p}')
            o(f'v_and_b32_e32 v{SCU+2*p+1}, s60, v{208+p}')
            o(f'v_lshlrev_b32_e32 v{ZRU+2*p}, 16, v{216+p}')
            o(f'v_and_b32_e32 v{ZRU+2*p+1}, s60, v{216+p}')
            o(f'v_pk_mul_f32 {rng("v", ZRU+2*p, 2)}, {rng("v", ZRU+2*p, 2)}, {rng("v", SCU+2*p, 2)} neg_lo:[1,0] neg_hi:[1,0]')
        for gs in range(2):
            ob = 208 if gs == 0 else T
            for j in range(8):
                step(gs*8 + j)
                b = T + gs*32 + j*4
                ix = (j // 4)*8 + 4*gs + j % 4
                zr, sc, sel = ZRU + (ix & ~1), SCU + (ix & ~1), ix & 1
                bc = f'op_sel:[0,{sel},{sel}] op_sel_hi:[1,{sel},{sel}]'
                for c in range(4): o(f'v_cvt_f32_i32_e32 v{b+c}, v{b+c}')
                for p in range(2):
                    o(f'v_pk_fma_f32 {rng("v", b+2*p, 2)}, {rng("v", b+2*p, 2)}, {rng("v", sc, 2)}, {rng("v", zr, 2)} {bc}')
                if j & 1:
                    for c in range(4):
                        o(f'v_cvt_pk_bf16_f32 v{ob + 4*c + j//2}, v{b - 4 + c}, v{b + c}')
            for c in range(4):
                o(f'ds_write_b128 v119, {rng("v", ob + 4*c, 4)} offset:{1024*c + 256*gs}')
    o('s_waitcnt lgkmcnt(0)')
    for f in range(8):
        o(f'ds_read_b128 {rng("v", T + 32 + 4*f, 4)}, v14 offset:{1024*f}')
    for k, i in todo: o.q(i)
    for f in range(8):
        o(f's_waitcnt lgkmcnt({7 - f})')
        vv = vD1 if f < 4 else vD2
        o.vm(f'buffer_store_dwordx4 {rng("v", T + 32 + 4*f, 4)}, {vv}, s[4:7], s55 offen offset:{1024*(f%4)}', 'st')

def lane_reduce(op, tmp):
    r = []
    for sw in ('v_permlane16_swap_b32', 'v_permlane32_swap_b32'):
        r += [f'v_mov_b32_e32 v{tmp+q}, {vM[q]}' for q in range(4)]
        r += [f'{sw} {vM[q]}, v{tmp+q}' for q in range(4)]
        r += [f'{op} {vM[q]}, {vM[q]}, v{tmp+q}' for q in range(4)]
    return r

FA = 144
def out_group(qb, r, b, packed):
    f = FA + 4*qb + r
    ops = []
    if packed:
        fp, sel = f & ~1, f & 1
        ops += [f'v_pk_mul_f32 {rng("v", b+2*p, 2)}, {rng("v", b+2*p, 2)}, {rng("v", fp, 2)} op_sel:[0,{sel}] op_sel_hi:[1,{sel}]' for p in range(4)]
    else:
        ops += [f'v_mul_f32_e32 v{b+p}, v{b+p}, v{f}' for p in range(8)]
    ops += [f'v_cvt_pk_bf16_f32 v{b+p}, v{b+2*p}, v{b+2*p+1}' for p in range(4)]
    so = 's22' if qb == 0 else f's{60+qb}'
    ops.append(f'buffer_store_dwordx4 {rng("v", b, 4)}, v14, s[12:15], {so} offen offset:{256*r}{OPOL}')
    return ops

def factor_ops():
    return ([f'v_add_f32_e32 {vM[q]}, v{L0 + 4*q}, v{L0 + 4*q + 1}' for q in range(4)],
            [f'v_rcp_f32_e32 {vM[q]}, {vM[q]}' for q in range(4)],
            [f'ds_write_b32 v12, {vM[q]} offset:{64*q}' for q in range(4)],
            [f'ds_read_b128 {rng("v", FA+4*q, 4)}, v13 offset:{64*q}' for q in range(4)])

EPI_ADDR = f'''
    s_lshl_b32 s53, s16, 10
    s_add_u32 s53, s53, {LDS_SCR}
    v_lshl_add_u32 v13, v3, 4, s53
    v_lshl_add_u32 v12, v7, 2, s53
    v_lshl_add_u32 v12, v3, 8, v12
    v_lshlrev_b32_e32 v14, 10, v3
    v_lshl_add_u32 v14, v7, 4, v14'''

SETUP_K = '''
    v_lshlrev_b32_e32 v121, 3, v120           ; scales: m*8'''
SETUP_V = '''
    v_lshlrev_b32_e32 v121, 4, v13            ; scales: h*16
    s_lshl_b32 s56, s23, 6
    s_add_u32 s49, s49, s56'''
SETUP_REST = f'''
    v_lshrrev_b32_e32 v3, 4, v2               ; g
    v_and_b32_e32 v7, 15, v2                  ; n
    v_lshlrev_b32_e32 {vD1}, 4, v2
    v_add_u32_e32 {vD2}, 0x1000, {vD1}
    v_mov_b32_e32 {vRd}, {vD1}
    s_lshl_b32 s22, s20, 5
    s_add_u32 s22, s22, s21
    s_lshl_b32 s22, s22, 16
    s_lshl_b32 s23, s16, 14
    s_add_u32 s22, s22, s23
    s_add_u32 s61, s22, 4096
    s_add_u32 s62, s22, 8192
    s_add_u32 s63, s22, 12288
    v_lshlrev_b32_e32 v118, 7, v2
    v_xor_b32_e32 v126, v7, v3
    v_lshlrev_b32_e32 v126, 4, v126
    v_lshl_add_u32 v130, v7, 8, v126
    v_lshl_add_u32 v126, v3, 8, v126          ; Q staging source: (lane/16)*256 + ((lane%16)^(lane/16))*16
    v_xor_b32_e32 v127, 64, v126
    v_xor_b32_e32 v128, 0x80, v126
    v_xor_b32_e32 v129, 0xc0, v126
    s_lshl_b32 s100, s16, 14
    s_add_u32 s100, s100, {2*32768}
    s_cmp_eq_u32 s16, 2
    s_cselect_b32 s100, {3*32768 + 16384}, s100
    s_cmp_eq_u32 s16, 3
    s_cselect_b32 s100, {LDS_QX}, s100
    v_add_u32_e32 v130, s100, v130
    v_xor_b32_e32 v131, 64, v130
    v_xor_b32_e32 v132, 0x80, v130
    v_xor_b32_e32 v133, 0xc0, v130
    s_and_b32 s23, s16, 1
    s_lshl_b32 s28, s20, 19                   ; head*512KB
    s_lshl_b32 s4, s23, 13
    s_add_u32 s4, s4, s28
    s_mov_b32 s60, 0xffff0000
    s_mov_b32 s93, 0
    s_getreg_b32 s3, hwreg(HW_REG_XCC_ID, 0, 4)
    v_cmp_gt_u32_e32 vcc, 32, v2
    v_mov_b32_e32 v1, 0
    v_mov_b32_e32 v116, s3
    s_mov_b32 s58, 0x{CSCALE:08x}
    s_mov_b32 s59, 0x{CSCALE:08x}
    v_cndmask_b32_e32 v116, 16, v116, vcc
    s_lshl_b32 s19, s16, 13
    s_lshl_b32 s56, s16, 2
    s_add_u32 s56, s56, {LDS_HS}
    v_mov_b32_e32 v134, s56
    ds_write2_b32 v134, v1, v1 offset1:4
    s_mov_b32 s6, {512 << 10}
    s_mov_b32 s7, 0x20000
    s_mov_b32 s30, {V_OFF + (512 << 10)}
    s_mov_b32 s31, 0x20000
    s_mov_b32 s46, 256
    s_mov_b32 s47, 0x20000
    s_mov_b32 s98, 8192
    s_mov_b32 s99, 0x20000
    s_lshl_b32 s96, s20, 2
    s_add_u32 s96, s96, s16
    s_lshl_b32 s96, s96, 13
    s_add_u32 s96, s96, {FLAG_OFF}
    s_lshl_b32 s101, s21, 7
    s_add_u32 s17, s21, 1
    s_and_b32 s17, s17, 31
    s_lshl_b32 s17, s17, 14
    s_mov_b32 s57, {OPT['spin']}
    s_or_b32 s50, s21, s16
    s_cselect_b32 s50, 99, 12
    s_mov_b32 s18, 15
    s_mov_b32 s10, {16 << 20}
    s_mov_b32 s11, 0x20000
    s_mov_b32 s12, s14
    s_mov_b32 s13, s15
    s_mov_b32 s14, {16 << 20}
    s_mov_b32 s15, 0x20000
    s_mov_b32 s44, s24
    s_mov_b32 s45, s25
    s_lshl_b32 s23, s20, 5
    s_lshl_b64 s[88:89], s[94:95], 8
    s_mov_b32 s94, 0'''
SETUP_K2 = f'''
    v_lshrrev_b32_e32 v119, 1, v120
    v_lshlrev_b32_e32 v119, 8, v119
    v_and_b32_e32 v120, 1, v120
    v_lshl_add_u32 v119, v120, 3, v119
    v_lshl_add_u32 v135, v13, 7, v119         ; LDS write: (m/2)*256 + (m%2)*8 + h*128
    s_add_u32 s92, s19, {3*32768}
    v_add_u32_e32 v119, s92, v135
    v_add_u32_e32 v14, s92, {vD1}'''
SETUP_V2 = f'''
    v_and_b32_e32 v119, 1, v120
    v_lshlrev_b32_e32 v119, 12, v119
    v_lshl_add_u32 v119, v13, 9, v119
    v_lshrrev_b32_e32 v120, 1, v120
    v_lshl_add_u32 v135, v120, 4, v119        ; LDS write: (m%2)*4096 + h*512 + (m/2)*16
    v_add_u32_e32 v119, s19, v135
    v_add_u32_e32 v14, s19, {vD1}
    s_add_u32 s4, s4, {V_OFF}'''
SETUP_SRD = '''
    s_add_u32 s4, s26, s4
    s_addc_u32 s5, s27, 0
    s_add_u32 s28, s26, s28
    s_addc_u32 s29, s27, 0
    s_add_u32 s96, s26, s96
    s_addc_u32 s97, s27, 0'''
TAG_STORE = '''
    s_cmp_eq_u32 s50, 99
    s_cbranch_scc1 L_notag
    s_or_b32 s88, s88, 0x80
    v_mov_b32_e32 v112, s88
    v_mov_b32_e32 v113, s89
    s_mov_b64 exec, 1
    buffer_store_dwordx2 v[112:113], v1, s[44:47], s23 offen sc1
    s_mov_b64 exec, -1
L_notag:'''

def gen_core(o, errs, head):
    st = OPT['st']
    SKEW = OPT['skew']
    carry = {}
    for rg, pr, tx in sm_ops(0):
        if st + rg >= 128: carry.setdefault(st + rg - 128, []).append((pr, tx))
    late = set(tx for l in carry.values() for _, tx in l)
    def part_dma(c, slot):
        c.m0 = None
        for grp in range(2):
            c(f's_add_u32 m0, s19, {slot*32768 + grp*4096}\ns_nop 0')
            for i in range(4): c.vm(dma(grp, i), f'p{slot}')
        c('s_add_u32 s17, s17, 16384\ns_and_b32 s17, s17, 0x7ffff')
    def qk0(c, qb):
        c('s_waitcnt lgkmcnt(0)')
        ex = [(kb, r) for kb in range(4) for r in range(4)]
        pend = []
        for i in range(16):
            c(qk_mfma(i // 4, qb, i % 4))
            if pend:
                for x in pend: c(x)
                pend = []
            elif ex and 4*ex[0][0] + 3 + 4 <= i:
                kb, r = ex.pop(0)
                ops = [tx for _, _, tx in sm_elem(0, kb, qb, r)]
                c(ops[0]); pend = ops[1:]
        for kb, r in ex:
            ops = [tx for _, _, tx in sm_elem(0, kb, qb, r) if tx not in late]
            if ops and ops[0].startswith('v_exp'):
                c(ops[0]); ops = ops[1:]
            for x in pend: c(x)
            pend = ops
        for x in pend: c(x)
    def path(kind):
        c = Seq()
        tg = 1 if kind == 'k' else 3
        nroll = OPT['nra'] if kind == 'k' else OPT['nrb']
        c(SETUP_K if kind == 'k' else SETUP_V)
        def between():
            c(SETUP_REST)
            c(SETUP_K2 if kind == 'k' else SETUP_V2)
            c(SETUP_SRD)
            if kind == 'k':
                c(TAG_STORE)
            if OPT.get('touch'):
                c.vm('buffer_load_dword v122, v1, s[4:7], s55 offen sc1', 'x')
                c.vm('buffer_load_dword v123, v1, s[96:99], 0 offen sc1', 'x')
                c.vm('buffer_load_dword v124, v1, s[12:15], s22 offen sc1', 'x')
                c.vm('buffer_load_dword v125, v1, s[8:11], s22 offen', 'x')
            stampdq(c, 4)
            for r in range(128): c(f'v_accvgpr_write_b32 a{r}, 0')
            stampdq(c, 5)
        gen_dequant(c, kind, False, nroll, between)
        stamp(c, 1)
        c.vwait('st')
        c(f'''
L_tag{tg}:
        s_mov_b32 s95, {tg}
        v_cmp_eq_u64_e32 vcc, 0, v[112:113]
        s_cbranch_vccnz L_tagslow
        v_add_u32_e32 v116, v116, v112
        v_mov_b32_e32 v117, v113
        s_mov_b64 exec, 1
        buffer_store_dwordx2 v[116:117], v1, s[96:99], s101 offen
        s_mov_b64 exec, -1
L_nopub{tg}:
        s_barrier''')
        stamp(c, 2)
        def k0_reads():
            c(f'v_add_u32_e32 v12, {3*32768}, {vD1}')
            for f in range(16):
                if f == 12: c(f's_waitcnt lgkmcnt({0 if OPT["stamp"] else 8})')
                c(f'ds_read_b128 {aF(f)}, v12 offset:{frag_off(f)}')
        def check():
            c(f'''
        s_mov_b32 s57, {OPT['spin']}
L_chk{tg}:
        v_cmp_eq_u64_e32 vcc, v[116:117], v[114:115]
        s_nop 0
        s_cmp_eq_u32 vcc_lo, -1
        s_cbranch_scc0 L_pollslow
L_ok{tg}:''')
        if kind == 'k':
            for i in range(8): c.q(i)
            c.vm(POLL, 'poll')
            for i in range(8, 16): c.q(i)
            k0_reads()
            for qb in range(4):
                c.vwait(*([f'q{4*qb + 3}'] + (['poll'] if qb == 1 else [])))
                if qb == 0:
                    stamp(c, 3)
                    c(f's_waitcnt lgkmcnt({0 if OPT["stamp"] else 8})')
                qreads(c, [qb])
                if qb == 0:
                    c('v_mov_b32_e32 v12, 1\nds_write_b32 v134, v12 offset:16')
                if qb == 1:
                    check()
                    stamp(c, 4)
                    part_dma(c, 0)
                qk0(c, qb)
        else:
            k0_reads()
            c(f'''
    v_mov_b32_e32 v134, {LDS_HS + 16}
L_go:
    ds_read_b64 v[12:13], v134
    s_waitcnt lgkmcnt(0)
    v_and_b32_e32 v12, v12, v13
    v_cmp_ne_u32_e32 vcc, 1, v12
    s_cbranch_vccnz L_go''')
            stamp(c, 4)
            for i in range(8): c.q(i)
            for qb in range(4):
                c.vwait(*([f'q{4*qb + 3}'] + (['poll'] if qb == 3 else [])))
                if qb == 0:
                    stamp(c, 3)
                    if OPT['stamp']: c('s_waitcnt lgkmcnt(0)')
                qreads(c, [qb])
                if qb == 0:
                    for i in range(8, 16): c.q(i)
                    c.vm(POLL, 'poll')
                if qb == 3:
                    check()
                    part_dma(c, 1)
                qk0(c, qb)
        stamp(c, 7)
        if kind == 'k':
            c.vwait('p0')
            if SKEW:
                c('''
    v_mov_b32_e32 v12, 1
    ds_write_b32 v134, v12
    v_xor_b32_e32 v134, 4, v134
L_hs:
    ds_read_b32 v12, v134
    s_waitcnt lgkmcnt(0)
    v_cmp_ne_u32_e32 vcc, 1, v12
    s_cbranch_vccnz L_hs''')
        elif SKEW:
            c.vwait('p1')
        if kind == 'v' or not SKEW: c('s_barrier')
        for f in range(D):
            c(f'ds_read_b128 {aF(f)}, {vRd} offset:{frag_off(f)}')
        if kind == 'k': part_dma(c, 1)
        if kind == 'v' and SKEW:
            part_dma(c, 2)
            c('s_mov_b32 s32, s19\ns_add_u32 s19, s19, 0x18000')
        else:
            c('s_add_u32 s32, s19, 0x18000\ns_add_u32 s19, s19, 0x10000')
        for x in l_init(): c(x)
        c(EPI_ADDR)
        stamp(c, 5)
        c(f's_waitcnt lgkmcnt({0 if OPT["stamp"] else D - 4})')
        c('s_branch L_loop_in')
        c.l = fix_hazards(head, c.l, 'start' + kind)
        return c
    c, cb = path('k'), path('v')
    pre_lines = head
    B = Block(256, carry)
    B.stage(0, 0); B.stage(1, 1)
    B.waits.append((256, [(2, j) for j in range(4)]))
    bars = [(256, 0)] if OPT['pairbar'] else [(128, 8), (256, 8)]
    for ge, vm in bars:
        gb = ge + RP - 4*D - 1
        B.mem[gb] += [f's_waitcnt vmcnt({vm})' + (' lgkmcnt(0)' if OPT['pull'] else '')] + ([] if OPT.get('nobar') else ['s_barrier'])
    B.val[256 + RP - 4*D - 1].append((5, f'v_xor_b32_e32 {vRd}, 0x10000, {vRd}'))
    for j in range(16):
        g = OPT['dma0'] + OPT['dmastep'] * j if OPT['pairbar'] else 128*(j // 8) + OPT['dma0'] + 12*(j % 8)
        if j % 4 == 0:
            B.mem[g - 1].append(f's_add_u32 m0, {"s19" if j < 8 else "s32"}, {((j // 4) % 2)*4096}')
        B.mem[g].append(dma((j // 4) % 2, j % 4))
        if j % 8 == 7:
            B.mem[g + 1].append('s_add_u32 s17, s17, 16384')
            B.mem[g + 2].append('s_and_b32 s17, s17, 0x7ffff')
        if j == 15:
            B.mem[g + 3].append('s_xor_b32 s19, s19, 0x10000')
            B.mem[g + 4].append('s_xor_b32 s32, s32, 0x10000')
    if OPT['stamp'] >= 2:
        B.mem[1].append('s_memtime s[84:85]')
        B.mem[2].append('s_memrealtime s[86:87]')
        B.mem[14].insert(0, 's_waitcnt lgkmcnt(0)')
        B.val[18].append((9, f'v_cmp_eq_u32_e32 vcc, s18, v2'))
        for k in range(4):
            B.val[20 + 2*k].append((9, f'v_mov_b32_e32 v250, s{84+k}'))
            B.val[21 + 2*k].append((9, f'v_cndmask_b32_e32 v{244+k}, v{244+k}, v250, vcc'))
    if OPT.get('wb'):
        g = min(x for x in range(OPT['dma0'] + 12*7 + 1, 128) if not B.mem[x] and not B.val[x])
        B.mem[g] += ['s_cmp_eq_u32 s18, s50', 's_cbranch_scc1 L_dowb', 'L_nowb:']
    B.mem[253].append('s_sub_u32 s18, s18, 1')
    B.mem[254].append('s_cmp_lg_u32 s18, 0')
    assert B.finish() == carry
    loop = Out()
    B.emit(loop, 255)
    loop(B.mf[255])
    sc, head = B.gap_lines(255)
    for x in sc: loop(x)
    loop('s_cbranch_scc1 L_loop')
    E = Block(192, carry)
    E.stage(0, 0, nxt=False)
    for j in range(16):
        E.read(max(96 + 2*j, 72 + 4*j) + RP, (1, 16 + j), 16 + j, 32768 + frag_off(16 + j))
    if not OPT['pairbar']:
        E.mem[95 + RP] += (['s_cmp_ge_u32 s16, 2', 's_cbranch_scc1 L_nobar', 's_waitcnt vmcnt(0)', 's_barrier', 'L_nobar:'] if SKEW else ['s_waitcnt vmcnt(0)', 's_barrier'])
    for i in range(64):
        E.mf[128 + i] = pv_mfma((i % 16) // 2, i // 16, i % 2, 1)
    for m in range(4):
        E.waits.append((128 + 4*m, [(1, 16 + 4*m + j) for j in range(4)]))
    if OPT['stamp'] >= 2:
        E.mem[1].append('s_memtime s[84:85]')
        E.mem[2].append('s_memrealtime s[86:87]')
        E.mem[14].insert(0, 's_waitcnt lgkmcnt(0)')
        for k in range(4):
            E.val[20 + k].append((9, f'v_writelane_b32 v{244+k}, s{84+k}, 0'))
    assert not E.finish()
    lg = [129, 131, 133, 139]
    for qb in range(4):
        E.val[lg[qb]].append((30, l_mfma(1, qb)[0]))
    ad, rc, dw, dr = factor_ops()
    seq = [(lg[q] + 5, x) for q, x in enumerate(ad)] + [(0, x) for x in rc]
    seq += [(0, x) for x in dw]
    seq += [(0, f'v_minimum3_f32 v32, {vM[0]}, {vM[1]}, {vM[2]}'), (0, f'v_maximum3_f32 v33, {vM[0]}, {vM[1]}, {vM[2]}'),
            (0, f'v_minimum3_f32 v32, v32, {vM[3]}, {vM[3]}'), (0, f'v_maximum3_f32 v33, v33, {vM[3]}, {vM[3]}'),
            (0, 'v_cmp_nle_f32_e64 s[56:57], s54, v32'), (0, 'v_cmp_nge_f32_e32 vcc, s55, v33'), (0, 's_waitcnt lgkmcnt(0)')]
    seq += [(0, x) for x in dr]
    seq += [(0, 's_or_b32 s56, s56, vcc_lo'), (0, 's_and_b32 s56, s56, 0xffff'), (0, 's_cbranch_scc1 L_fallback' if not OPT.get('nofb') else 's_nop 0')]
    E.mem[128].append(f's_mov_b32 s54, 0x{f32bits(2.0**-60):08x}')
    E.mem[129].append(f's_mov_b32 s55, 0x{f32bits(2.0**60):08x}')
    groups = []
    for qb in range(4):
        for r in range(4):
            b = 160 + ((qb*4 + r) % 8) * 8
            groups.append((qb, r, b))
    after = []
    g = 130
    def place(ops):
        nonlocal g
        used = 0
        busy = lambda: any(not t.startswith(('v_mfma', 'v_smfmac')) for p, t in E.val[g] if p < 20) or any(not t.startswith('s_') for t in E.mem[g])
        for k, (eg, x) in enumerate(ops):
            while g < 192 and used == 0 and busy(): g += 1
            if x.startswith('s_'):
                if used:
                    g += 1; used = 0
                if g >= 192: return ops[k:]
                E.mem[g].append(x); g += 1
                continue
            cost = 2 if (x.startswith('v_rcp') or x.startswith('buffer_')) else 1
            if used + cost > 2 or (used and not x.startswith('v_')):
                g += 1; used = 0
            if eg > g:
                g = eg; used = 0
            while g < 192 and used == 0 and busy(): g += 1
            if g >= 192: return ops[k:]
            E.val[g].append((20 + k/1000., x)); used += cost
        if used: g += 1
        return []
    left = place(seq)
    assert not left
    first = True
    for qb, r, b in groups:
        rd = [(128 + 16*qb + 20, f'v_accvgpr_read_b32 v{b+db}, {aOr(qb, db, r)}') for db in range(8)]
        if left or g >= 190:
            left += rd + [(0, x) for x in out_group(qb, r, b, True)]
            continue
        ops = rd + ([(0, 's_waitcnt lgkmcnt(0)')] if first else []) + [(0, x) for x in out_group(qb, r, b, False)]
        first = False
        left = place(ops)
    tail = Out()
    for x in head: tail(x)
    E.emit(tail)
    stamp(tail, 6)
    tail('s_nop 7')
    for _, x in left: tail(x)
    tail.l = fix_hazards(loop.l, tail.l, 'tail')
    lin = pre_lines + c.l + loop.l + ['    ' + x for x in head] + loop.l + tail.l
    errs += check_hazards(lin, 'core') + check_waits(lin, 'core')
    lin = pre_lines + cb.l + loop.l
    errs += check_hazards(lin, 'coreB') + check_waits(lin, 'coreB')
    o.l += c.l
    o('L_pathv:')
    o.l += cb.l
    o('.p2align 6')
    o('L_loop:')
    for x in head: o(x)
    o('L_loop_in:')
    o.l += loop.l + tail.l

def gen_main():
    errs = []
    o = Out()
    o('s_cmp_ge_u32 s2, 256\ns_cbranch_scc1 L_end')
    stamp(o, 0)
    if OPT['stamp']: o('s_memrealtime s[80:81]')
    o(f'''
    s_load_dwordx4 s[8:11], s[0:1], 0         ; q, qk
    s_load_dwordx4 s[32:35], s[0:1], 16
    s_load_dwordx4 s[36:39], s[0:1], 32       ; k_zeros, v_scales
    s_load_dwordx4 s[12:15], s[0:1], 48       ; v_zeros, out
    s_load_dwordx4 s[24:27], s[0:1], 64
    s_memrealtime s[94:95]
    v_lshrrev_b32_e32 v1, 6, v0
    v_and_b32_e32 v2, 63, v0                  ; lane
    v_readfirstlane_b32 s16, v1               ; wave
    v_lshrrev_b32_e32 v13, 5, v2              ; h
    v_and_b32_e32 v120, 31, v2                ; m
    v_lshlrev_b32_e32 v12, 12, v13
    v_lshl_add_u32 v12, v120, 4, v12
    s_and_b32 s20, s2, 7
    s_lshr_b32 s21, s2, 3
    s_and_b32 s23, s16, 1
    s_lshl_b32 s48, s20, 20
    s_lshl_b32 s53, s23, 14
    s_add_u32 s48, s48, s53
    s_lshl_b32 s53, s21, 15
    s_add_u32 s53, s53, s48
    s_lshl_b32 s49, s20, 12                   ; head*4096
    s_mov_b32 s51, s21
    s_mov_b32 s42, 32768
    s_mov_b32 s43, 0x20000
    s_cmp_ge_u32 s16, 2
    s_waitcnt lgkmcnt(0)
    s_cselect_b32 s40, s12, s36
    s_cselect_b32 s41, s13, s37
    s_cselect_b32 s36, s38, s34
    s_cselect_b32 s37, s39, s35
    s_cselect_b32 s32, s32, s10
    s_cselect_b32 s33, s33, s11
    s_mov_b32 s34, {8 << 20}
    s_mov_b32 s35, 0x20000
    buffer_load_dwordx4 {rng("v", T0, 4)}, v12, s[32:35], s53 offen{POL}
    buffer_load_dwordx4 {rng("v", T0 + 4, 4)}, v12, s[32:35], s53 offen offset:512{POL}
    s_mov_b32 s38, 32768
    s_mov_b32 s39, 0x20000
    s_cbranch_scc1 L_pathv''')
    head = list(o.l)
    gen_core(o, errs, head)
    o('L_fin:')
    if OPT['stamp']:
        o(f'''
    s_memtime s[86:87]
    s_waitcnt vmcnt(0)
    s_memtime s[84:85]
    s_memrealtime s[82:83]
    s_waitcnt lgkmcnt(0)
    s_mov_b32 s88, s26
    s_mov_b32 s89, s27
    s_mov_b32 s90, 0x10000000
    s_mov_b32 s91, 0x20000
    s_lshl_b32 s101, s2, 2
    s_add_u32 s101, s101, s16
    s_lshl_b32 s92, s101, 7
    s_add_u32 s92, s92, {16 << 20}
    s_lshl_b32 s101, s101, 10
    s_add_u32 s101, s101, {17 << 20}''')
        if OPT.get('dbg'):
            o(f'''
    s_cmp_lg_u32 s16, 0
    s_cbranch_scc1 L_nodbg
    s_mov_b32 s53, 8
    s_cmp_eq_u32 s2, 9
    s_cbranch_scc1 L_dodbg
    s_mov_b32 s53, 40
    s_cmp_eq_u32 s2, 254
    s_cbranch_scc0 L_nodbg
L_dodbg:
    s_sub_u32 s54, s74, s64
    s_sub_u32 s55, s76, s64
    s_sub_u32 s56, s84, s64
    s_sub_u32 s57, s82, s80
    v_mov_b32_e32 v16, s54
    v_mov_b32_e32 v17, s55
    v_mov_b32_e32 v18, s56
    v_mov_b32_e32 v19, s57
    v_mov_b32_e32 v20, s80
    v_mov_b32_e32 v21, s82
    s_mov_b64 exec, 1
    buffer_store_dwordx4 v[16:19], v1, s[44:47], s53 offen
    buffer_store_dwordx2 v[20:21], v1, s[44:47], s53 offen offset:16
    s_mov_b64 exec, -1
    s_nop 1
L_nodbg:''')
        for k in range(24):
            o(f'v_mov_b32_e32 v{16+k}, s{64+k}')
        o('v_mov_b32_e32 v40, 0')
        for k in range(6):
            o(f'buffer_store_dwordx4 {rng("v", 16+4*k, 4)}, v40, s[88:91], s92 offen offset:{16*k}')
        if OPT['stamp'] >= 2:
            o(f'buffer_store_dwordx4 v[244:247], {vD1}, s[88:91], s101 offen')
    o('L_end:\ns_endpgm')
    if OPT.get('wb'): o('L_dowb:\nbuffer_wbl2 sc1\ns_branch L_nowb')
    o(f'''
L_tagslow:
    s_sub_u32 s57, s57, 1
    s_cselect_b32 s93, 1, 0
    s_cbranch_scc1 L_tagout
    s_sleep 1
    buffer_load_dwordx2 v[112:113], v1, s[44:47], s23 offen sc1
    s_waitcnt vmcnt(0)
    s_cmp_eq_u32 s95, 1
    s_cbranch_scc1 L_tag1
    s_branch L_tag3
L_tagout:
    s_cmp_eq_u32 s95, 1
    s_cbranch_scc1 L_nopub1
    s_branch L_nopub3
L_pollslow:
    s_cmp_eq_u32 s93, 1
    s_cbranch_scc1 L_help
    s_or_b32 s54, vcc_lo, vcc_hi
    s_not_b32 s54, s54
    s_cselect_b32 s55, 0, 1
    s_sub_u32 s57, s57, 1
    s_cselect_b32 s56, 1, 0
    s_cmp_lt_u32 s57, {OPT['spin'] - OPT['upg'] if OPT['spin'] > OPT['upg'] else 0}
    s_cselect_b32 s55, 1, s55
    s_or_b32 s55, s55, s56
    s_cmp_gt_u32 s55, s94
    s_cbranch_scc0 L_noupg
    s_mov_b32 s94, 1
    s_add_u32 s55, s101, 4096
    buffer_wbl2 sc1
    s_waitcnt vmcnt(0)
    s_mov_b32 exec_lo, 0
    s_mov_b32 exec_hi, 1
    buffer_store_dwordx2 v[116:117], v1, s[96:99], s55 offen sc1
    s_mov_b64 exec, -1
L_noupg:
    s_cmp_lg_u32 s56, 0
    s_cbranch_scc1 L_help
    s_cmp_eq_u32 s54, 0
    s_cbranch_scc1 L_polldone
    buffer_load_dwordx2 v[114:115], v118, s[96:99], 0 offen sc1
    s_waitcnt vmcnt(0)
    s_cmp_eq_u32 s95, 1
    s_cbranch_scc1 L_chk1
    s_branch L_chk3
L_polldone:
    s_cmp_eq_u32 s95, 1
    s_cbranch_scc1 L_ok1
    s_branch L_ok3
L_help:
    s_waitcnt lgkmcnt(0)
    v_add_u32_e32 v119, s100, v135
    v_add_u32_e32 v14, s100, {vD1}
    v_lshrrev_b32_e32 v13, 5, v2
    v_and_b32_e32 v120, 31, v2
    v_lshlrev_b32_e32 v12, 12, v13
    v_lshl_add_u32 v12, v120, 4, v12
    s_mov_b32 s52, 31
L_help_go:
    s_add_u32 s51, s21, s52
    s_and_b32 s51, s51, 31
    s_cmp_eq_u32 s95, 1
    s_cbranch_scc0 L_help_v''')
    for kind in 'kv':
        h = Seq()
        if kind == 'v': h('L_help_v:')
        gen_dequant(h, kind, True)
        if kind == 'k': h('s_branch L_help_next')
        errs += check_hazards(h.l, 'help') + check_waits(h.l, 'help')
        o.l += h.l
    o('''
L_help_next:
    s_waitcnt vmcnt(0)
    s_sub_u32 s52, s52, 1
    s_cmp_lg_u32 s52, 0
    s_cbranch_scc1 L_help_go
    s_branch L_polldone''')
    fb = Out()
    def kloads(off):
        for f in range(16):
            if f % 8 == 0: fb(f's_add_u32 s53, s17, {off + (f // 8)*8192}')
            v = vD1 if f % 8 < 4 else vD2
            k = f if off == 0 else 16 + 2*(f % 8) + f // 8
            fb(f'buffer_load_dwordx4 {aF(k)}, {v}, s[28:31], s53 offen offset:{1024*(f%4)} sc1')
        fb('s_waitcnt vmcnt(0)')
    fb('L_fallback:\ns_waitcnt vmcnt(0) lgkmcnt(0)\ns_nop 7\ns_nop 7')
    for q in range(4): fb(f'v_mov_b32_e32 {vM[q]}, 0xff800000')
    fb('s_mov_b32 s17, 0\nL_maxloop:')
    kloads(0)
    for i in range(64): fb(qk_mfma(i // 16, (i // 4) % 4, i % 4))
    fb('s_nop 7')
    for kb in range(4):
        for qb in range(4):
            for r in (0, 2):
                fb(f'v_max3_f32 {vM[qb]}, {vM[qb]}, {vSr(kb, qb, r)}, {vSr(kb, qb, r+1)}')
    fb(f's_add_u32 s17, s17, 16384\ns_cmp_lt_u32 s17, {512 << 10}\ns_cbranch_scc1 L_maxloop')
    for x in lane_reduce('v_max_f32_e32', 16): fb(x)
    for q in range(4):
        for r in range(4): fb(f'v_sub_f32_e32 v{C0 + 4*q + r}, 0, {vM[q]}')
    for r in range(128): fb(f'v_accvgpr_write_b32 a{r}, 0')
    for x in l_init(): fb(x)
    fb('s_mov_b32 s17, 0\nL_p2loop:')
    kloads(0)
    for i in range(64): fb(qk_mfma(i // 16, (i // 4) % 4, i % 4, True))
    kloads(V_OFF)
    for kb in range(4):
        for qb in range(4):
            el = [sm_elem(0, kb, qb, r) for r in range(4)]
            for r in range(4): fb(el[r][0][2])
            for r in range(4):
                for _, _, tx in el[r][1:]: fb(tx)
    fb('s_nop 1')
    for i in range(64): fb(pv_mfma(i // 8, (i // 2) % 4, i % 2, 0))
    for qb in range(4):
        for x in l_mfma(0, qb): fb(x)
    fb(f's_add_u32 s17, s17, 16384\ns_cmp_lt_u32 s17, {512 << 10}\ns_cbranch_scc1 L_p2loop')
    ad, rc, dw, dr = factor_ops()
    fb(EPI_ADDR)
    for x in ad + rc + dw + ['s_waitcnt lgkmcnt(0)'] + dr + ['s_waitcnt lgkmcnt(0)']: fb(x)
    for qb in range(4):
        for r in range(4):
            b = 160 + ((qb*4 + r) % 8) * 8
            for db in range(8): fb(f'v_accvgpr_read_b32 v{b+db}, {aOr(qb, db, r)}')
            for x in out_group(qb, r, b, True): fb(x)
    fb('s_branch L_fin')
    i1, i2 = fb.l.index('L_maxloop:'), fb.l.index('L_p2loop:')
    fb.l = fix_hazards([], fb.l, 'fb')
    i2 = fb.l.index('L_p2loop:')
    errs += check_hazards(fb.l, 'fb') + check_waits(fb.l, 'fb')
    p2 = fb.l[i2:[k for k, x in enumerate(fb.l) if 'L_p2loop' in x][-1] + 1]
    errs += check_hazards(p2 + p2, 'fb2')
    o.l += fb.l
    return o.l, errs

HEADER = open('cdna_kernels/' + NAME + '.s.ref').read().split('; @launch')[0]

def main():
    mn, errs = gen_main()
    for e in errs:
        print(e, file=sys.stderr)
    if errs and not OPT.get('nofb'):
        sys.exit(1)
    nm = NAME + '_kernel'
    txt = HEADER + f'; @launch grid=(256,1,1) block=(256,1,1) lds={LDS_TOTAL}\n'
    txt += '.amdgcn_target "amdgcn-amd-amdhsa--gfx950"\n.text\n'
    txt += f'.globl {nm}\n.p2align 8\n.type {nm},@function\n{nm}:\n' + '\n'.join(mn) + '\n'
    txt += f'''.section .rodata,"a"
.p2align 6
.amdhsa_kernel {nm}
  .amdhsa_next_free_vgpr 512
  .amdhsa_next_free_sgpr 102
  .amdhsa_accum_offset 256
  .amdhsa_group_segment_fixed_size 0
  .amdhsa_kernarg_size 80
  .amdhsa_user_sgpr_count 2
  .amdhsa_user_sgpr_kernarg_segment_ptr 1
  .amdhsa_system_sgpr_workgroup_id_x 1
  .amdhsa_float_denorm_mode_32 3
.end_amdhsa_kernel
'''
    open(sys.argv[1], 'w').write(txt)

main()
```

```python
import sys, struct, math
from asmlib import *

NAME = 'standalone__kv_cache_quant_int4_int2_kv_with_per_channel_or_per_token_scales__prompt'
OPT = dict(tp=6, cap=2, lpos=15, early=4, skew=1, nra=0, nrb=0, go=1, bsplit=8, zpos=1, bsleep=0, pull=6, wb=1, nb1=11, barfirst=1, nql=0, nqb=0, nqa=0, touch=1, upg=8, pol='nt', stamp=0, d=6, st=7, dma0=6, dmastep=10, spin=20000, opol='nt', rp=0, pairbar=0)
for a in sys.argv[2:]:
    k, v = a.split('=', 1)
    OPT[k] = eval(v)

def f32bits(x):
    return struct.unpack('<I', struct.pack('<f', x))[0]

CSCALE = f32bits(128 ** -0.5 * math.log2(math.e))
V_OFF = 4 << 20
FLAG_OFF = 9 << 20
MF = 'v_mfma_f32_16x16x32_bf16'
D, RP = OPT['d'], OPT['rp']
def flags(x): return (' ' + x.replace('_', ' ')) if x else ''
POL, OPOL, SC1 = flags(OPT['pol']), flags(OPT['opol']), ' sc1'

class Out:
    def __init__(self):
        self.l = []
    def __call__(self, s):
        for x in s.strip('\n').split('\n'):
            if x.strip():
                self.l.append(x.strip() if x.strip().endswith(':') or x.startswith('.') else '    ' + x.strip())

def rng(p, b, n): return f'{p}[{b}:{b+n-1}]'
O0 = 128
def vO(qb, db): return rng('v', O0 + (qb*8+db)*4, 4)
def vOr(qb, db, r): return O0 + (qb*8+db)*4 + r
def aQ(qb, ks): return rng('a', (qb*4+ks)*4, 4)
def aF(k): return rng('a', 64 + (k % 16)*4, 4)
def aX(j): return rng('a', 128 + j*4, 4)
BY, BE, C0, T0 = 16, (48, 80), 112, 128
def sbase(par, kb, qb): return (BY if kb & 1 else BE[par]) + (qb*2 + kb//2)*4
def vS(par, kb, qb): return rng('v', sbase(par, kb, qb), 4)
def vSr(par, kb, qb, r): return f'v{sbase(par, kb, qb) + r}'
def vP(par, t, qb): return rng('v', BE[par] + (qb*2+t)*4, 4)
def vPr(par, t, qb, i): return f'v{BE[par] + (qb*2+t)*4 + i}'
def vC(qb): return rng('v', C0 + qb*4, 4)
vM = ['v8', 'v9', 'v10', 'v11']
IDX = 15
L0, ONES = 192, 208
def aL(qb): return rng('a', L0 + 4*qb, 4)
vRd, vD1, vD2 = 'v4', 'v5', 'v6'
LDS_RING = 131072
LDS_SCR = LDS_RING
LDS_HS = LDS_RING + 4096
LDS_QX = LDS_HS + 256
LDS_TOTAL = LDS_QX + 16384

def frag_off(k):
    if k < 16:
        return k * 1024
    db, t = (k - 16) // 2, (k - 16) % 2
    return 16384 + t * 8192 + db * 1024

def sm_elem(buf, kb, qb, r):
    s = vSr(buf, kb, qb, r)
    ops = [(0, 0, f'v_exp_f32_e32 {s}, {s}')]
    if r & 1:
        ops.append((3, 2, f'v_cvt_pk_bf16_f32 {vPr(buf, kb//2, qb, (kb%2)*2 + r//2)}, {vSr(buf, kb, qb, r-1)}, {s}'))
    return ops

def l_mfma(buf, qb):
    return f'v_smfmac_f32_16x16x64_bf16 {aL(qb)}, {rng("a", ONES, 4)}, {rng("v", BE[buf] + qb*8, 8)}, v{IDX}'

def sel_init():
    return (['v_cmp_gt_u32_e32 vcc, 2, v7', 'v_mov_b32_e32 v8, 0x3f803f80', f'v_mov_b32_e32 v{IDX}, 0x44444444',
             'v_cndmask_b32_e32 v8, v1, v8, vcc', 'v_cmp_eq_u32_e32 vcc, 1, v7', 'v_mov_b32_e32 v9, 0xeeeeeeee'] +
            [f'v_accvgpr_write_b32 a{ONES + k}, v8' for k in range(4)] + [f'v_cndmask_b32_e32 v{IDX}, v{IDX}, v9, vcc'])

def acc_init():
    return [f'v_accvgpr_write_b32 a{L0 + k}, 0' for k in range(16)] + [f'v_mov_b32_e32 v{O0 + k}, 0' for k in range(128)]

def sm_ops(buf, order=None):
    order = order or [(e // 4, e % 4) for e in range(16)]
    return [(2*e + dg, pr, tx) for e in range(64) for dg, pr, tx in sm_elem(buf, order[e // 4][0], order[e // 4][1], e % 4)]

def qk_mfma(par, kb, qb, ks, cinit=False):
    c = (vC(qb) if cinit else '0') if ks == 0 else vS(par, kb, qb)
    return f'{MF} {vS(par, kb, qb)}, {aF(kb*4+ks)}, {aQ(qb, ks)}, {c}'

def pv_mfma(db, qb, t, buf, fr=None):
    return f'{MF} {vO(qb, db)}, {vP(buf, t, qb)}, {fr or aF(16 + db*2 + t)}, {vO(qb, db)}'

def dma(grp, i, srd='s[4:7]', so='s17'):
    v = vD1 if grp == 0 else vD2
    return f'buffer_load_dwordx4 {v}, {srd}, {so} offen offset:{1024*i}{SC1} lds'

class Block:
    def __init__(self, G, carry):
        self.G = G
        self.mf = [None] * G
        self.mem = [[] for _ in range(G)]
        self.val = [[] for _ in range(G + 140)]
        for g, lst in carry.items():
            self.val[g] += lst
        self.reads = [(4*f + RP - 4*D, (0, f)) for f in range(D)]
        self.waits = []
    def read(self, g, ident, f, off):
        self.mem[g].append(f'ds_read_b128 {aF(f)}, {vRd} offset:{off}')
        self.reads.append((g, ident))
    def finish(self):
        self.reads.sort(key=lambda r: r[0])
        ids = [r[1] for r in self.reads]
        for gw, need in self.waits:
            if gw == 0: continue
            p = max(ids.index(x) for x in need)
            assert self.reads[p][0] < gw - 1, (gw, need)
            w = len([1 for r in self.reads[p+1:] if r[0] < gw - 1])
            self.mem[gw - 1].insert(0, f's_waitcnt lgkmcnt({w})')
        return {g - self.G: self.val[g] for g in range(self.G, len(self.val)) if self.val[g]}
    def stage(self, k, par, nxt=True):
        g0 = 128 * k
        for i in range(64):
            self.mf[g0 + i] = qk_mfma(par ^ 1, i // 16, (i // 4) % 4, i % 4)
            self.mf[g0 + 64 + i] = pv_mfma(i // 8, (i // 2) % 4, i % 2, par)
        for rg, pr, tx in sm_ops(par ^ 1):
            self.val[g0 + OPT['st'] + rg].append((pr, tx))
        for qb in range(4):
            self.val[g0 + 64 + 16*qb + OPT['lpos']].append((30, l_mfma(par, qb)))
        for f in range(D, 32 + (D if nxt else 0)):
            g = g0 + 4*f + RP - 4*D
            if f in (30, 31): g -= OPT['pull']
            if f < 32: self.read(g, (k, f), f, par*32768 + frag_off(f))
            else: self.read(g, (k + 1, f - 32), f, (par ^ 1)*32768 + frag_off(f - 32))
        for m in range(8):
            self.waits.append((g0 + 16*m, [(k, 4*m + j) for j in range(4)]))
    def gap_lines(self, g):
        v = [t for _, t in sorted(self.val[g], key=lambda z: z[0])]
        m = self.mem[g]
        if OPT.get('no_exp'): v = [t for t in v if not t.startswith('v_exp')]
        if OPT.get('no_add'): v = [t for t in v if not t.startswith('v_add')]
        if OPT.get('no_cvt'): v = [t for t in v if not t.startswith('v_cvt')]
        if OPT.get('no_lds'): m = [t for t in m if not t.startswith('ds_read')]
        if OPT.get('no_dma'): m = [t for t in m if not t.startswith('buffer_load')]
        if any(t.endswith(':') for t in m):
            return m, v
        sc = [t for t in m if t.startswith('s_')]
        return sc, [t for t in m if not t.startswith('s_')] + v
    def emit(self, o, upto=None):
        for g in range(upto if upto is not None else self.G):
            o(self.mf[g])
            sc, ve = self.gap_lines(g)
            for x in sc + ve: o(x)

def stampdq(o, k):
    if OPT.get('stampdq'):
        o(f's_memtime s[{64+2*k}:{65+2*k}]')

def stampp(o, k):
    if OPT.get('stampp'):
        o(f's_memtime s[{64+2*k}:{65+2*k}]')

def stamp(o, k):
    if OPT.get('stampp') and k in (4, 5, 7):
        return
    if OPT.get('stampdq') and k in (3, 4, 5, 7):
        return
    if OPT['stamp']:
        o(f's_memtime s[{64+2*k}:{65+2*k}]')

NINIT = 0
def init_work(o):
    global NINIT
    NINIT += 1
    o(f's_cmp_lg_u32 s52, 0\ns_cbranch_scc1 L_noinit{NINIT}')
    for r in range(128):
        o(f'v_accvgpr_write_b32 a{r}, 0')
    o(f'L_noinit{NINIT}:')

def qdma(o, idx):
    idx = list(idx)
    for i in idx:
        if i % 4 == 0 or i == idx[0]:
            o(f's_add_u32 m0, s100, {(i // 4)*4096}')
            o('s_nop 0')
        so = 's22' if i < 4 else f's{60 + i // 4}'
        o(f'buffer_load_dwordx4 v{94 + i % 4}, s[8:11], {so} offen offset:{1024*(i % 4)}{POL} lds')
    return len(idx)

def qreads(o, qbs):
    for qb in qbs:
        for ks in range(4):
            o(f'ds_read_b128 {aQ(qb, ks)}, v{98 + ks} offset:{4096*qb}')

POLL = 'buffer_load_dwordx2 v[82:83], v86, s[96:99], 0 offen sc1'

class Seq(Out):
    def __init__(self):
        super().__init__()
        self.vq = []
        self.m0 = None
    def vm(self, text, tag):
        self(text); self.vq.append(tag)
    def after(self, *tags):
        return len(self.vq) - 1 - max(i for i, t in enumerate(self.vq) if t in tags)
    def vwait(self, *tags):
        self(f's_waitcnt vmcnt({self.after(*tags)})')
    def q(self, i):
        if self.m0 != ('q', i // 4):
            self(f's_add_u32 m0, s100, {(i // 4)*4096}\ns_nop 0'); self.m0 = ('q', i // 4)
        so = 's22' if i < 4 else f's{60 + i // 4}'
        self.vm(f'buffer_load_dwordx4 v{94 + i % 4}, s[8:11], {so} offen offset:{1024*(i % 4)}{POL} lds', f'q{i}')

def gen_dequant(o, kind, helper, nroll=0, between=None):
    T = T0
    NB1 = 16 if helper else OPT['nb1']
    todo = [('d', x) for x in range(NB1, 16)] + [('q', i) for i in range(nroll)]
    def dload(x):
        gs, j = x // 8, x % 8
        so = 's53' if j < 4 else 's54'
        o.vm(f'buffer_load_dwordx4 {rng("v", T + gs*32 + j*4, 4)}, v12, s[32:35], {so} offen offset:{512*(4*gs + j%4)}{POL}', f'd{x}')
    def step(x):
        o.vwait(f'd{x}')
        if x == 0 and not helper: stampdq(o, 7)
        if x == 8 and not helper:
            o.vm('buffer_load_dwordx2 v[80:81], v1, s[44:47], s23 offen sc1', 'tag')
        if todo:
            k, i = todo.pop(0)
            dload(i) if k == 'd' else o.q(i)
    if helper:
        o('''
    s_lshl_b32 s53, s51, 15
    s_add_u32 s53, s53, s48''')
    else:
        o.vq += ['d0', 'd1']
    o('''
    s_add_u32 s54, s53, 8192
    s_lshl_b32 s55, s51, 14''')
    if kind == 'k':
        o('s_lshr_b32 s56, s51, 1\ns_lshl_b32 s56, s56, 8\ns_add_u32 s56, s56, s49')
        o.vm('buffer_load_dwordx2 v[192:193], v89, s[36:39], s56 offen', 'sc')
        o.vm('buffer_load_dwordx2 v[194:195], v89, s[40:43], s56 offen', 'sc')
    else:
        o('s_lshl_b32 s56, s51, 7\ns_add_u32 s56, s56, s49')
        o.vm('buffer_load_dwordx4 v[192:195], v89, s[36:39], s56 offen', 'sc')
        o.vm('buffer_load_dwordx4 v[196:199], v89, s[36:39], s56 offen offset:32', 'sc')
        o.vm('buffer_load_dwordx4 v[200:203], v89, s[40:43], s56 offen', 'sc')
        o.vm('buffer_load_dwordx4 v[204:207], v89, s[40:43], s56 offen offset:32', 'sc')
    for x in range(0 if helper else 2, NB1): dload(x)
    if between: between()
    o.vwait('sc')
    if kind == 'k':
        o('''
    v_lshlrev_b32_e32 v196, 16, v192
    v_and_b32_e32 v197, s60, v192
    v_lshlrev_b32_e32 v198, 16, v193
    v_and_b32_e32 v199, s60, v193
    v_lshlrev_b32_e32 v200, 16, v194
    v_and_b32_e32 v201, s60, v194
    v_lshlrev_b32_e32 v202, 16, v195
    v_and_b32_e32 v203, s60, v195
    v_pk_mul_f32 v[196:197], v[196:197], s[58:59]
    v_pk_mul_f32 v[198:199], v[198:199], s[58:59]
    v_pk_mul_f32 v[200:201], v[200:201], v[196:197] neg_lo:[1,0] neg_hi:[1,0]
    v_pk_mul_f32 v[202:203], v[202:203], v[198:199] neg_lo:[1,0] neg_hi:[1,0]''')
        for gs in range(2):
            for j in range(8):
                step(gs*8 + j)
                b = T + gs*32 + j*4
                for c in range(4): o(f'v_cvt_f32_i32_e32 v{b+c}, v{b+c}')
                o(f'v_pk_fma_f32 {rng("v", b, 2)}, {rng("v", b, 2)}, v[196:197], v[200:201]')
                o(f'v_pk_fma_f32 {rng("v", b+2, 2)}, {rng("v", b+2, 2)}, v[198:199], v[202:203]')
                o(f'v_cvt_pk_bf16_f32 v{b}, v{b}, v{b+1}')
                o(f'v_cvt_pk_bf16_f32 v{b+1}, v{b+2}, v{b+3}')
                o(f'ds_write_b64 v87, {rng("v", b, 2)} offset:{(j // 4)*4096 + (4*gs + j % 4)*16}')
    else:
        SCU, ZRU = 208, 224
        for p in range(8):
            o(f'v_lshlrev_b32_e32 v{SCU+2*p}, 16, v{192+p}')
            o(f'v_and_b32_e32 v{SCU+2*p+1}, s60, v{192+p}')
            o(f'v_lshlrev_b32_e32 v{ZRU+2*p}, 16, v{200+p}')
            o(f'v_and_b32_e32 v{ZRU+2*p+1}, s60, v{200+p}')
            o(f'v_pk_mul_f32 {rng("v", ZRU+2*p, 2)}, {rng("v", ZRU+2*p, 2)}, {rng("v", SCU+2*p, 2)} neg_lo:[1,0] neg_hi:[1,0]')
        for gs in range(2):
            ob = 192 if gs == 0 else T
            for j in range(8):
                step(gs*8 + j)
                b = T + gs*32 + j*4
                ix = (j // 4)*8 + 4*gs + j % 4
                zr, sc, sel = ZRU + (ix & ~1), SCU + (ix & ~1), ix & 1
                bc = f'op_sel:[0,{sel},{sel}] op_sel_hi:[1,{sel},{sel}]'
                for c in range(4): o(f'v_cvt_f32_i32_e32 v{b+c}, v{b+c}')
                for p in range(2):
                    o(f'v_pk_fma_f32 {rng("v", b+2*p, 2)}, {rng("v", b+2*p, 2)}, {rng("v", sc, 2)}, {rng("v", zr, 2)} {bc}')
                if j & 1:
                    for c in range(4):
                        o(f'v_cvt_pk_bf16_f32 v{ob + 4*c + j//2}, v{b - 4 + c}, v{b + c}')
            for c in range(4):
                o(f'ds_write_b128 v87, {rng("v", ob + 4*c, 4)} offset:{1024*c + 256*gs}')
    o('s_waitcnt lgkmcnt(0)')
    for f in range(8):
        o(f'ds_read_b128 {rng("v", T + 32 + 4*f, 4)}, v14 offset:{1024*f}')
    for k, i in todo: o.q(i)
    for f in range(8):
        o(f's_waitcnt lgkmcnt({7 - f})')
        vv = vD1 if f < 4 else vD2
        o.vm(f'buffer_store_dwordx4 {rng("v", T + 32 + 4*f, 4)}, {vv}, s[4:7], s55 offen offset:{1024*(f%4)}', 'st')

def lane_reduce(op, tmp):
    r = []
    for sw in ('v_permlane16_swap_b32', 'v_permlane32_swap_b32'):
        r += [f'v_mov_b32_e32 v{tmp+q}, {vM[q]}' for q in range(4)]
        r += [f'{sw} {vM[q]}, v{tmp+q}' for q in range(4)]
        r += [f'{op} {vM[q]}, {vM[q]}, v{tmp+q}' for q in range(4)]
    return r

FA = 112
def out_store(qb, r):
    b = sbase(0, 1 + 2*(r & 1), qb)
    so = 's22' if qb == 0 else f's{60+qb}'
    return ([f'v_cvt_pk_bf16_f32 v{b+p}, v{vOr(qb, 2*p, r)}, v{vOr(qb, 2*p+1, r)}' for p in range(4)] +
            [f'buffer_store_dwordx4 {rng("v", b, 4)}, v14, s[12:15], {so} offen offset:{256*r}{OPOL}'])
def out_group(qb, r):
    return [f'v_mul_f32_e32 v{vOr(qb, db, r)}, v{vOr(qb, db, r)}, v{FA + 4*qb + r}' for db in range(8)] + out_store(qb, r)
def out_pair(qb, r):
    return ([f'v_pk_mul_f32 {rng("v", vOr(qb, db, r), 2)}, {rng("v", vOr(qb, db, r), 2)}, {rng("v", FA + 4*qb + r, 2)}' for db in range(8)]
            + out_store(qb, r) + out_store(qb, r + 1))

def factor_ops(q):
    t = FA + 4*q
    return ([f'v_accvgpr_read_b32 {vM[q]}, a{L0 + 4*q}', f'v_accvgpr_read_b32 v{t}, a{L0 + 4*q + 1}', f'v_add_f32_e32 {vM[q]}, {vM[q]}, v{t}',
             f'v_rcp_f32_e32 {vM[q]}, {vM[q]}', f'ds_write_b32 v12, {vM[q]} offset:{64*q}'],
            f'ds_read_b128 {rng("v", t, 4)}, v13 offset:{64*q}')

EPI_ADDR = f'''
    s_lshl_b32 s53, s16, 10
    s_add_u32 s53, s53, {LDS_SCR}
    v_lshl_add_u32 v13, v3, 4, s53
    v_lshl_add_u32 v12, v7, 2, s53
    v_lshl_add_u32 v12, v3, 8, v12
    v_lshlrev_b32_e32 v14, 10, v3
    v_lshl_add_u32 v14, v7, 4, v14'''

SETUP_K = '''
    v_lshlrev_b32_e32 v89, 3, v88           ; scales: m*8'''
SETUP_V = '''
    v_lshlrev_b32_e32 v89, 4, v13            ; scales: h*16
    s_lshl_b32 s56, s23, 6
    s_add_u32 s49, s49, s56'''
SETUP_REST = f'''
    v_lshrrev_b32_e32 v3, 4, v2               ; g
    v_and_b32_e32 v7, 15, v2                  ; n
    v_lshlrev_b32_e32 {vD1}, 4, v2
    v_add_u32_e32 {vD2}, 0x1000, {vD1}
    v_mov_b32_e32 {vRd}, {vD1}
    s_lshl_b32 s22, s20, 5
    s_add_u32 s22, s22, s21
    s_lshl_b32 s22, s22, 16
    s_lshl_b32 s23, s16, 14
    s_add_u32 s22, s22, s23
    s_add_u32 s61, s22, 4096
    s_add_u32 s62, s22, 8192
    s_add_u32 s63, s22, 12288
    v_lshlrev_b32_e32 v86, 7, v2
    v_xor_b32_e32 v94, v7, v3
    v_lshlrev_b32_e32 v94, 4, v94
    v_lshl_add_u32 v98, v7, 8, v94
    v_lshl_add_u32 v94, v3, 8, v94          ; Q staging source: (lane/16)*256 + ((lane%16)^(lane/16))*16
    v_xor_b32_e32 v95, 64, v94
    v_xor_b32_e32 v96, 0x80, v94
    v_xor_b32_e32 v97, 0xc0, v94
    s_lshl_b32 s100, s16, 14
    s_add_u32 s100, s100, {2*32768}
    s_cmp_eq_u32 s16, 2
    s_cselect_b32 s100, {3*32768 + 16384}, s100
    s_cmp_eq_u32 s16, 3
    s_cselect_b32 s100, {LDS_QX}, s100
    v_add_u32_e32 v98, s100, v98
    v_xor_b32_e32 v99, 64, v98
    v_xor_b32_e32 v100, 0x80, v98
    v_xor_b32_e32 v101, 0xc0, v98
    s_and_b32 s23, s16, 1
    s_lshl_b32 s28, s20, 19                   ; head*512KB
    s_lshl_b32 s4, s23, 13
    s_add_u32 s4, s4, s28
    s_mov_b32 s60, 0xffff0000
    s_mov_b32 s93, 0
    s_getreg_b32 s3, hwreg(HW_REG_XCC_ID, 0, 4)
    v_cmp_gt_u32_e32 vcc, 32, v2
    v_mov_b32_e32 v1, 0
    v_mov_b32_e32 v84, s3
    s_mov_b32 s58, 0x{CSCALE:08x}
    s_mov_b32 s59, 0x{CSCALE:08x}
    v_cndmask_b32_e32 v84, 16, v84, vcc
    s_lshl_b32 s19, s16, 13
    s_lshl_b32 s56, s16, 2
    s_add_u32 s56, s56, {LDS_HS}
    v_mov_b32_e32 v102, s56
    ds_write2_b32 v102, v1, v1 offset1:4
    s_mov_b32 s6, {512 << 10}
    s_mov_b32 s7, 0x20000
    s_mov_b32 s30, {V_OFF + (512 << 10)}
    s_mov_b32 s31, 0x20000
    s_mov_b32 s46, 256
    s_mov_b32 s47, 0x20000
    s_mov_b32 s98, 8192
    s_mov_b32 s99, 0x20000
    s_lshl_b32 s96, s20, 2
    s_add_u32 s96, s96, s16
    s_lshl_b32 s96, s96, 13
    s_add_u32 s96, s96, {FLAG_OFF}
    s_lshl_b32 s101, s21, 7
    s_add_u32 s17, s21, 1
    s_and_b32 s17, s17, 31
    s_lshl_b32 s17, s17, 14
    s_mov_b32 s57, {OPT['spin']}
    s_or_b32 s50, s21, s16
    s_cselect_b32 s50, 99, 12
    s_mov_b32 s18, 15
    s_mov_b32 s10, {16 << 20}
    s_mov_b32 s11, 0x20000
    s_mov_b32 s12, s14
    s_mov_b32 s13, s15
    s_mov_b32 s14, {16 << 20}
    s_mov_b32 s15, 0x20000
    s_mov_b32 s44, s24
    s_mov_b32 s45, s25
    s_lshl_b32 s23, s20, 5
    s_lshl_b64 s[88:89], s[94:95], 8
    s_mov_b32 s94, 0'''
SETUP_K2 = f'''
    v_lshrrev_b32_e32 v87, 1, v88
    v_lshlrev_b32_e32 v87, 8, v87
    v_and_b32_e32 v88, 1, v88
    v_lshl_add_u32 v87, v88, 3, v87
    v_lshl_add_u32 v103, v13, 7, v87         ; LDS write: (m/2)*256 + (m%2)*8 + h*128
    s_add_u32 s92, s19, {3*32768}
    v_add_u32_e32 v87, s92, v103
    v_add_u32_e32 v14, s92, {vD1}'''
SETUP_V2 = f'''
    v_and_b32_e32 v87, 1, v88
    v_lshlrev_b32_e32 v87, 12, v87
    v_lshl_add_u32 v87, v13, 9, v87
    v_lshrrev_b32_e32 v88, 1, v88
    v_lshl_add_u32 v103, v88, 4, v87        ; LDS write: (m%2)*4096 + h*512 + (m/2)*16
    v_add_u32_e32 v87, s19, v103
    v_add_u32_e32 v14, s19, {vD1}
    s_add_u32 s4, s4, {V_OFF}'''
SETUP_SRD = '''
    s_add_u32 s4, s26, s4
    s_addc_u32 s5, s27, 0
    s_add_u32 s28, s26, s28
    s_addc_u32 s29, s27, 0
    s_add_u32 s96, s26, s96
    s_addc_u32 s97, s27, 0'''
TAG_STORE = '''
    s_cmp_eq_u32 s50, 99
    s_cbranch_scc1 L_notag
    s_or_b32 s88, s88, 0x80
    v_mov_b32_e32 v80, s88
    v_mov_b32_e32 v81, s89
    s_mov_b64 exec, 1
    buffer_store_dwordx2 v[80:81], v1, s[44:47], s23 offen sc1
    s_mov_b64 exec, -1
L_notag:'''

def gen_core(o, errs, head):
    st = OPT['st']
    SKEW = OPT['skew']
    carry = {}
    for rg, pr, tx in sm_ops(0):
        if st + rg >= 128: carry.setdefault(st + rg - 128, []).append((pr, tx))
    late = set(tx for l in carry.values() for _, tx in l)
    def part_dma(c, slot):
        c.m0 = None
        for grp in range(2):
            c(f's_add_u32 m0, s19, {slot*32768 + grp*4096}\ns_nop 0')
            for i in range(4): c.vm(dma(grp, i), f'p{slot}')
        c('s_add_u32 s17, s17, 16384\ns_and_b32 s17, s17, 0x7ffff')
    def qk0(c, qb):
        c('s_waitcnt lgkmcnt(0)')
        ex = [(kb, r) for kb in range(4) for r in range(4)]
        pend = []
        for i in range(16):
            c(qk_mfma(0, i // 4, qb, i % 4))
            if pend:
                for x in pend: c(x)
                pend = []
            elif ex and 4*ex[0][0] + 3 + 4 <= i:
                kb, r = ex.pop(0)
                ops = [tx for _, _, tx in sm_elem(0, kb, qb, r)]
                c(ops[0]); pend = ops[1:]
        for kb, r in ex:
            ops = [tx for _, _, tx in sm_elem(0, kb, qb, r) if tx not in late]
            if ops and ops[0].startswith('v_exp'):
                c(ops[0]); ops = ops[1:]
            for x in pend: c(x)
            pend = ops
        for x in pend: c(x)
    def path(kind):
        c = Seq()
        tg = 1 if kind == 'k' else 3
        nroll = OPT['nra'] if kind == 'k' else OPT['nrb']
        c(SETUP_K if kind == 'k' else SETUP_V)
        def between():
            c(SETUP_REST)
            c(SETUP_K2 if kind == 'k' else SETUP_V2)
            c(SETUP_SRD)
            if kind == 'k':
                c(TAG_STORE)
            if OPT.get('touch'):
                c.vm('buffer_load_dword v90, v1, s[4:7], s55 offen sc1', 'x')
                c.vm('buffer_load_dword v91, v1, s[96:99], 0 offen sc1', 'x')
                c.vm('buffer_load_dword v92, v1, s[12:15], s22 offen sc1', 'x')
                c.vm('buffer_load_dword v93, v1, s[8:11], s22 offen', 'x')
            stampdq(c, 4)
            for x in sel_init(): c(x)
            stampdq(c, 5)
        gen_dequant(c, kind, False, nroll, between)
        stamp(c, 1)
        c.vwait('st')
        c(f'''
L_tag{tg}:
        s_mov_b32 s95, {tg}
        v_cmp_eq_u64_e32 vcc, 0, v[80:81]
        s_cbranch_vccnz L_tagslow
        v_add_u32_e32 v84, v84, v80
        v_mov_b32_e32 v85, v81
        s_mov_b64 exec, 1
        buffer_store_dwordx2 v[84:85], v1, s[96:99], s101 offen
        s_mov_b64 exec, -1
L_nopub{tg}:
        s_barrier''')
        stamp(c, 2)
        def k0_reads():
            c(f'v_add_u32_e32 v12, {3*32768}, {vD1}')
            for f in range(16):
                if f == 12: c(f's_waitcnt lgkmcnt({0 if OPT["stamp"] else 8})')
                c(f'ds_read_b128 {aF(f)}, v12 offset:{frag_off(f)}')
            for x in acc_init(): c(x)
        def check():
            c(f'''
        s_mov_b32 s57, {OPT['spin']}
L_chk{tg}:
        v_cmp_eq_u64_e32 vcc, v[84:85], v[82:83]
        s_nop 0
        s_cmp_eq_u32 vcc_lo, -1
        s_cbranch_scc0 L_pollslow
L_ok{tg}:''')
        if kind == 'k':
            for i in range(8): c.q(i)
            c.vm(POLL, 'poll')
            for i in range(8, 16): c.q(i)
            k0_reads()
            for qb in range(4):
                c.vwait(*([f'q{4*qb + 3}'] + (['poll'] if qb == 1 else [])))
                if qb == 0:
                    stamp(c, 3)
                    c(f's_waitcnt lgkmcnt({0 if OPT["stamp"] else 8})')
                qreads(c, [qb])
                if qb == 0:
                    c('v_mov_b32_e32 v12, 1\nds_write_b32 v102, v12 offset:16')
                if qb == 1:
                    check()
                    stamp(c, 4)
                    part_dma(c, 0)
                qk0(c, qb)
        else:
            k0_reads()
            c(f'''
    v_mov_b32_e32 v102, {LDS_HS + 16}
L_go:
    ds_read_b64 v[12:13], v102
    s_waitcnt lgkmcnt(0)
    v_and_b32_e32 v12, v12, v13
    v_cmp_ne_u32_e32 vcc, 1, v12
    s_cbranch_vccnz L_go''')
            stamp(c, 4)
            for i in range(8): c.q(i)
            for qb in range(4):
                c.vwait(*([f'q{4*qb + 3}'] + (['poll'] if qb == 3 else [])))
                if qb == 0:
                    stamp(c, 3)
                    if OPT['stamp']: c('s_waitcnt lgkmcnt(0)')
                qreads(c, [qb])
                if qb == 0:
                    for i in range(8, 16): c.q(i)
                    c.vm(POLL, 'poll')
                if qb == 3:
                    check()
                    part_dma(c, 1)
                qk0(c, qb)
        stamp(c, 7)
        if kind == 'k':
            c.vwait('p0')
            if SKEW:
                c('''
    v_mov_b32_e32 v12, 1
    ds_write_b32 v102, v12
    v_xor_b32_e32 v102, 4, v102
L_hs:
    ds_read_b32 v12, v102
    s_waitcnt lgkmcnt(0)
    v_cmp_ne_u32_e32 vcc, 1, v12
    s_cbranch_vccnz L_hs''')
        elif SKEW:
            c.vwait('p1')
        if kind == 'v' or not SKEW: c('s_barrier')
        for f in range(D):
            c(f'ds_read_b128 {aF(f)}, {vRd} offset:{frag_off(f)}')
        if kind == 'k': part_dma(c, 1)
        if kind == 'v' and SKEW:
            part_dma(c, 2)
            c('s_mov_b32 s32, s19\ns_add_u32 s19, s19, 0x18000')
        else:
            c('s_add_u32 s32, s19, 0x18000\ns_add_u32 s19, s19, 0x10000')
        c(EPI_ADDR)
        stamp(c, 5)
        c(f's_waitcnt lgkmcnt({0 if OPT["stamp"] else D - 4})')
        c('s_branch L_loop_in')
        c.l = fix_hazards(head, c.l, 'start' + kind)
        return c
    c, cb = path('k'), path('v')
    pre_lines = head
    B = Block(256, carry)
    B.stage(0, 0); B.stage(1, 1)
    B.waits.append((256, [(2, j) for j in range(4)]))
    bars = [(256, 0)] if OPT['pairbar'] else [(128, 8), (256, 8)]
    for ge, vm in bars:
        gb = ge + RP - 4*D - 1
        B.mem[gb] += [f's_waitcnt vmcnt({vm})' + (' lgkmcnt(0)' if OPT['pull'] else '')] + ([] if OPT.get('nobar') else ['s_barrier'])
    B.val[256 + RP - 4*D - 1].append((5, f'v_xor_b32_e32 {vRd}, 0x10000, {vRd}'))
    for j in range(16):
        g = OPT['dma0'] + OPT['dmastep'] * j if OPT['pairbar'] else 128*(j // 8) + OPT['dma0'] + 12*(j % 8)
        if j % 4 == 0:
            B.mem[g - 1].append(f's_add_u32 m0, {"s19" if j < 8 else "s32"}, {((j // 4) % 2)*4096}')
        B.mem[g].append(dma((j // 4) % 2, j % 4))
        if j % 8 == 7:
            B.mem[g + 1].append('s_add_u32 s17, s17, 16384')
            B.mem[g + 2].append('s_and_b32 s17, s17, 0x7ffff')
        if j == 15:
            B.mem[g + 3].append('s_xor_b32 s19, s19, 0x10000')
            B.mem[g + 4].append('s_xor_b32 s32, s32, 0x10000')
    if OPT['stamp'] >= 2:
        B.mem[1].append('s_memtime s[84:85]')
        B.mem[2].append('s_memrealtime s[86:87]')
        B.mem[14].insert(0, 's_waitcnt lgkmcnt(0)')
        B.val[18].append((9, f'v_cmp_eq_u32_e32 vcc, s18, v2'))
        for k in range(4):
            B.val[20 + 2*k].append((9, f'v_mov_b32_e32 v124, s{84+k}'))
            B.val[21 + 2*k].append((9, f'v_cndmask_b32_e32 v{120+k}, v{120+k}, v124, vcc'))
    if OPT.get('wb'):
        g = min(x for x in range(OPT['dma0'] + 12*7 + 1, 128) if not B.mem[x] and not B.val[x])
        B.mem[g] += ['s_cmp_eq_u32 s18, s50', 's_cbranch_scc1 L_dowb', 'L_nowb:']
    B.mem[253].append('s_sub_u32 s18, s18, 1')
    B.mem[254].append('s_cmp_lg_u32 s18, 0')
    assert B.finish() == carry
    loop = Out()
    B.emit(loop, 255)
    loop(B.mf[255])
    sc, head = B.gap_lines(255)
    for x in sc: loop(x)
    loop('s_cbranch_scc1 L_loop')
    E = Block(192, carry)
    for i in range(64):
        E.mf[i] = qk_mfma(1, (i % 16) // 4, i // 16, i % 4)
    for i in range(128):
        qb, db, u = i // 32, (i % 32) // 4, i % 4
        E.mf[64 + i] = pv_mfma(db, qb, u % 2, u // 2, aX(2*db + u) if u < 2 else None)
    TP = OPT['tp']
    s0 = max(carry) + 1
    for k in range(16):
        for r in range(4):
            el = sm_elem(1, k % 4, k // 4, r)
            E.val[s0 + TP*k + r].append((0, el[0][2]))
            if r & 1: E.val[s0 + TP*k + 4 + (r // 2 if TP > 5 else 0)].append((2, el[1][2]))
    used = [sum(2 if t.startswith('v_exp') else 1 for _, t in E.val[g]) for g in range(192)]
    def rd(g, ident, reg, off):
        E.mem[g].append(f'ds_read_b128 {reg}, {vRd} offset:{off}'); E.reads.append((g, ident)); used[g] += 1
    for f in range(D, 16): rd(f - D, (0, f), aF(f), frag_off(f))
    free = [g for g in range(10, 60) if used[g] < 2]
    free = sorted(free + [g for g in range(10, 60) if g not in free][:max(0, 16 - len(free))])
    for j in range(16): rd(free[j], (0, 16 + j), aX(j), frag_off(16 + j))
    E.mem[47] += (['s_cmp_ge_u32 s16, 2', 's_cbranch_scc1 L_nobar', 's_waitcnt vmcnt(0)', 's_barrier', 'L_nobar:'] if SKEW else ['s_waitcnt vmcnt(0)', 's_barrier'])
    for j in range(16): rd(max(50 + j, 54 + 2*j), (1, 16 + j), aF(16 + j), 32768 + frag_off(16 + j))
    for m in range(1, 4): E.waits.append((4*m, [(0, 4*m + j) for j in range(4)]))
    E.waits.append((64, [(0, 31), (1, 19)]))
    for m in range(1, 4): E.waits.append((64 + 8*m, [(1, 16 + 4*m + 3)]))
    if OPT['stamp'] >= 2:
        E.mem[20].append('s_memtime s[84:85]')
        E.mem[21].append('s_memrealtime s[86:87]')
        E.mem[44].insert(0, 's_waitcnt lgkmcnt(0)')
        for k in range(4):
            E.val[45].append((9, f'v_writelane_b32 v{120+k}, s{84+k}, 0'))
            E.val[46].append((9, f'v_accvgpr_write_b32 a{212+k}, v{120+k}'))
    E.finish()
    E.mem[1].append(f's_mov_b32 s54, 0x{f32bits(2.0**-60):08x}')
    E.mem[2].append(f's_mov_b32 s55, 0x{f32bits(2.0**60):08x}')
    order = [100]
    def place(ops, g, cap=2):
        for k, (eg, x) in enumerate(ops):
            if x.startswith('s_'):
                g = max(g + 1, eg)
                if g >= 192: return g, ops[k:]
                E.mem[g].append(x)
                continue
            cost = 2 if x.startswith(('v_rcp', 'buffer_')) else 1
            g = max(g, eg)
            memop = not x.startswith('v_')
            if memop: g += 1
            while g < 192 and (used[g] + cost > cap or (memop and any(not t.startswith('s_') for t in E.mem[g]))): g += 1
            if g >= 192: return g, ops[k:]
            order[0] += 1
            if memop: E.mem[g].append(x)
            else: E.val[g].append((order[0], x))
            used[g] += cost
            if x.startswith('v_rcp'): g += 1
        return g, []
    CAP = OPT['cap']
    ready = []
    g = 88
    for qb in range(4):
        E.val[15 + 4*qb].append((30, l_mfma(0, qb)))
        gl = (s0 + TP*4*(qb + 1) + 1) | 3
        E.val[gl].append((30, l_mfma(1, qb)))
        ready.append(gl + 6)
    def chain(qs, g):
        fs = [factor_ops(q) for q in qs]
        ops = [(ready[q], f[0][k]) for k in range(5) for q, f in zip(qs, fs)]
        lo = hi = vM[qs[0]]
        if len(qs) > 1:
            lo, hi = 'v126', 'v127'
            ops += [(0, f'v_minimum3_f32 {lo}, {vM[qs[0]]}, {vM[qs[1]]}, {vM[qs[-1]]}'), (0, f'v_maximum3_f32 {hi}, {vM[qs[0]]}, {vM[qs[1]]}, {vM[qs[-1]]}')]
        ops += [(0, f'v_cmp_nle_f32_e64 s[56:57], s54, {lo}'), (0, f'v_cmp_nge_f32_e32 vcc, s55, {hi}'), (0, 's_waitcnt lgkmcnt(0)')]
        ops += [(0, f[1]) for f in fs]
        ops += [(0, 's_or_b32 s56, s56, vcc_lo'), (0, 's_and_b32 s56, s56, 0xffff'),
                (0, 's_cbranch_scc1 L_fallback' if not OPT.get('nofb') else 's_nop 0')]
        g, left = place(ops, g, CAP); assert not left
        g, left = place([(g + 2, 's_waitcnt lgkmcnt(0)')], g, CAP); assert not left
        return g
    done = lambda qb: 64 + 32*(qb + 1) + 3
    left, rest = [], []
    def groups(qb, g):
        for r in range(4):
            if left or rest or g >= 188 or done(qb) >= 188:
                left.append((qb, r)); continue
            g, l2 = place([(done(qb), x) for x in out_group(qb, r)], g, CAP)
            rest.extend(x for _, x in l2)
        return g
    g = chain([0, 1, 2], g); fready = [g]*3
    g = chain([3], g); fready.append(g)
    g = 0
    for qb in range(4): g = groups(qb, max(g, fready[qb]))
    print('tail: factors', fready, 'left', left, len(rest), file=sys.stderr)
    while left:
        qb, r = left.pop(0)
        if r % 2 == 0:
            rest += out_pair(qb, r); left.pop(0)
        else:
            rest += out_group(qb, r)
    left = [(0, x) for x in rest]
    tail = Out()
    for x in head: tail(x)
    E.emit(tail)
    stamp(tail, 6)
    for _, x in left: tail(x)
    tail.l = fix_hazards(loop.l, tail.l, 'tail')
    lin = pre_lines + c.l + loop.l + ['    ' + x for x in head] + loop.l + tail.l
    errs += check_hazards(lin, 'core') + check_waits(lin, 'core')
    lin = pre_lines + cb.l + loop.l
    errs += check_hazards(lin, 'coreB') + check_waits(lin, 'coreB')
    o.l += c.l
    o('L_pathv:')
    o.l += cb.l
    o('.p2align 6')
    o('L_loop:')
    for x in head: o(x)
    o('L_loop_in:')
    o.l += loop.l + tail.l

def gen_main():
    errs = []
    o = Out()
    o('s_cmp_ge_u32 s2, 256\ns_cbranch_scc1 L_end')
    stamp(o, 0)
    if OPT['stamp']: o('s_memrealtime s[80:81]')
    o(f'''
    s_load_dwordx4 s[8:11], s[0:1], 0         ; q, qk
    s_load_dwordx4 s[32:35], s[0:1], 16
    s_load_dwordx4 s[36:39], s[0:1], 32       ; k_zeros, v_scales
    s_load_dwordx4 s[12:15], s[0:1], 48       ; v_zeros, out
    s_load_dwordx4 s[24:27], s[0:1], 64
    s_memrealtime s[94:95]
    v_lshrrev_b32_e32 v1, 6, v0
    v_and_b32_e32 v2, 63, v0                  ; lane
    v_readfirstlane_b32 s16, v1               ; wave
    v_lshrrev_b32_e32 v13, 5, v2              ; h
    v_and_b32_e32 v88, 31, v2                ; m
    v_lshlrev_b32_e32 v12, 12, v13
    v_lshl_add_u32 v12, v88, 4, v12
    s_and_b32 s20, s2, 7
    s_lshr_b32 s21, s2, 3
    s_and_b32 s23, s16, 1
    s_lshl_b32 s48, s20, 20
    s_lshl_b32 s53, s23, 14
    s_add_u32 s48, s48, s53
    s_lshl_b32 s53, s21, 15
    s_add_u32 s53, s53, s48
    s_lshl_b32 s49, s20, 12                   ; head*4096
    s_mov_b32 s51, s21
    s_mov_b32 s42, 32768
    s_mov_b32 s43, 0x20000
    s_cmp_ge_u32 s16, 2
    s_waitcnt lgkmcnt(0)
    s_cselect_b32 s40, s12, s36
    s_cselect_b32 s41, s13, s37
    s_cselect_b32 s36, s38, s34
    s_cselect_b32 s37, s39, s35
    s_cselect_b32 s32, s32, s10
    s_cselect_b32 s33, s33, s11
    s_mov_b32 s34, {8 << 20}
    s_mov_b32 s35, 0x20000
    buffer_load_dwordx4 {rng("v", T0, 4)}, v12, s[32:35], s53 offen{POL}
    buffer_load_dwordx4 {rng("v", T0 + 4, 4)}, v12, s[32:35], s53 offen offset:512{POL}
    s_mov_b32 s38, 32768
    s_mov_b32 s39, 0x20000
    s_cbranch_scc1 L_pathv''')
    head = list(o.l)
    gen_core(o, errs, head)
    o('L_fin:')
    if OPT['stamp']:
        o(f'''
    s_memtime s[86:87]
    s_waitcnt vmcnt(0)
    s_memtime s[84:85]
    s_memrealtime s[82:83]
    s_waitcnt lgkmcnt(0)
    s_mov_b32 s88, s26
    s_mov_b32 s89, s27
    s_mov_b32 s90, 0x10000000
    s_mov_b32 s91, 0x20000
    s_lshl_b32 s101, s2, 2
    s_add_u32 s101, s101, s16
    s_lshl_b32 s92, s101, 7
    s_add_u32 s92, s92, {16 << 20}
    s_lshl_b32 s101, s101, 10
    s_add_u32 s101, s101, {17 << 20}''')
        if OPT.get('dbg'):
            o(f'''
    s_cmp_lg_u32 s16, 0
    s_cbranch_scc1 L_nodbg
    s_mov_b32 s53, 8
    s_cmp_eq_u32 s2, 9
    s_cbranch_scc1 L_dodbg
    s_mov_b32 s53, 40
    s_cmp_eq_u32 s2, 254
    s_cbranch_scc0 L_nodbg
L_dodbg:
    s_sub_u32 s54, s74, s64
    s_sub_u32 s55, s76, s64
    s_sub_u32 s56, s84, s64
    s_sub_u32 s57, s82, s80
    v_mov_b32_e32 v16, s54
    v_mov_b32_e32 v17, s55
    v_mov_b32_e32 v18, s56
    v_mov_b32_e32 v19, s57
    v_mov_b32_e32 v20, s80
    v_mov_b32_e32 v21, s82
    s_mov_b64 exec, 1
    buffer_store_dwordx4 v[16:19], v1, s[44:47], s53 offen
    buffer_store_dwordx2 v[20:21], v1, s[44:47], s53 offen offset:16
    s_mov_b64 exec, -1
    s_nop 1
L_nodbg:''')
        for k in range(24):
            o(f'v_mov_b32_e32 v{16+k}, s{64+k}')
        o('v_mov_b32_e32 v40, 0')
        for k in range(6):
            o(f'buffer_store_dwordx4 {rng("v", 16+4*k, 4)}, v40, s[88:91], s92 offen offset:{16*k}')
        if OPT['stamp'] >= 2:
            o(f'buffer_store_dwordx4 a[212:215], {vD1}, s[88:91], s101 offen')
    o('L_end:\ns_endpgm')
    if OPT.get('wb'): o('L_dowb:\nbuffer_wbl2 sc1\ns_branch L_nowb')
    o(f'''
L_tagslow:
    s_sub_u32 s57, s57, 1
    s_cselect_b32 s93, 1, 0
    s_cbranch_scc1 L_tagout
    s_sleep 1
    buffer_load_dwordx2 v[80:81], v1, s[44:47], s23 offen sc1
    s_waitcnt vmcnt(0)
    s_cmp_eq_u32 s95, 1
    s_cbranch_scc1 L_tag1
    s_branch L_tag3
L_tagout:
    s_cmp_eq_u32 s95, 1
    s_cbranch_scc1 L_nopub1
    s_branch L_nopub3
L_pollslow:
    s_cmp_eq_u32 s93, 1
    s_cbranch_scc1 L_help
    s_or_b32 s54, vcc_lo, vcc_hi
    s_not_b32 s54, s54
    s_cselect_b32 s55, 0, 1
    s_sub_u32 s57, s57, 1
    s_cselect_b32 s56, 1, 0
    s_cmp_lt_u32 s57, {OPT['spin'] - OPT['upg'] if OPT['spin'] > OPT['upg'] else 0}
    s_cselect_b32 s55, 1, s55
    s_or_b32 s55, s55, s56
    s_cmp_gt_u32 s55, s94
    s_cbranch_scc0 L_noupg
    s_mov_b32 s94, 1
    s_add_u32 s55, s101, 4096
    buffer_wbl2 sc1
    s_waitcnt vmcnt(0)
    s_mov_b32 exec_lo, 0
    s_mov_b32 exec_hi, 1
    buffer_store_dwordx2 v[84:85], v1, s[96:99], s55 offen sc1
    s_mov_b64 exec, -1
L_noupg:
    s_cmp_lg_u32 s56, 0
    s_cbranch_scc1 L_help
    s_cmp_eq_u32 s54, 0
    s_cbranch_scc1 L_polldone
    buffer_load_dwordx2 v[82:83], v86, s[96:99], 0 offen sc1
    s_waitcnt vmcnt(0)
    s_cmp_eq_u32 s95, 1
    s_cbranch_scc1 L_chk1
    s_branch L_chk3
L_polldone:
    s_cmp_eq_u32 s95, 1
    s_cbranch_scc1 L_ok1
    s_branch L_ok3
L_help:
    s_waitcnt lgkmcnt(0)
    v_add_u32_e32 v87, s100, v103
    v_add_u32_e32 v14, s100, {vD1}
    v_lshrrev_b32_e32 v13, 5, v2
    v_and_b32_e32 v88, 31, v2
    v_lshlrev_b32_e32 v12, 12, v13
    v_lshl_add_u32 v12, v88, 4, v12
    s_mov_b32 s52, 31
L_help_go:
    s_add_u32 s51, s21, s52
    s_and_b32 s51, s51, 31
    s_cmp_eq_u32 s95, 1
    s_cbranch_scc0 L_help_v''')
    for kind in 'kv':
        h = Seq()
        if kind == 'v': h('L_help_v:')
        gen_dequant(h, kind, True)
        if kind == 'k': h('s_branch L_help_next')
        errs += check_hazards(h.l, 'help') + check_waits(h.l, 'help')
        o.l += h.l
    o('''
L_help_next:
    s_waitcnt vmcnt(0)
    s_sub_u32 s52, s52, 1
    s_cmp_lg_u32 s52, 0
    s_cbranch_scc1 L_help_go''')
    for x in acc_init(): o(x)
    o('s_branch L_polldone')
    fb = Out()
    def kloads(off):
        for f in range(16):
            if f % 8 == 0: fb(f's_add_u32 s53, s17, {off + (f // 8)*8192}')
            v = vD1 if f % 8 < 4 else vD2
            k = f if off == 0 else 16 + 2*(f % 8) + f // 8
            fb(f'buffer_load_dwordx4 {aF(k)}, {v}, s[28:31], s53 offen offset:{1024*(f%4)} sc1')
        fb('s_waitcnt vmcnt(0)')
    fb('L_fallback:\ns_waitcnt vmcnt(0) lgkmcnt(0)\ns_nop 7\ns_nop 7')
    for q in range(4): fb(f'v_mov_b32_e32 {vM[q]}, 0xff800000')
    fb('s_mov_b32 s17, 0\nL_maxloop:')
    kloads(0)
    for i in range(64): fb(qk_mfma(0, i // 16, (i // 4) % 4, i % 4))
    fb('s_nop 7')
    for kb in range(4):
        for qb in range(4):
            for r in (0, 2):
                fb(f'v_max3_f32 {vM[qb]}, {vM[qb]}, {vSr(0, kb, qb, r)}, {vSr(0, kb, qb, r+1)}')
    fb(f's_add_u32 s17, s17, 16384\ns_cmp_lt_u32 s17, {512 << 10}\ns_cbranch_scc1 L_maxloop')
    for x in lane_reduce('v_max_f32_e32', 16): fb(x)
    for q in range(4):
        for r in range(4): fb(f'v_sub_f32_e32 v{C0 + 4*q + r}, 0, {vM[q]}')
    for x in acc_init(): fb(x)
    fb('s_mov_b32 s17, 0\nL_p2loop:')
    kloads(0)
    for i in range(64): fb(qk_mfma(0, i // 16, (i // 4) % 4, i % 4, True))
    kloads(V_OFF)
    for kb in range(4):
        for qb in range(4):
            el = [sm_elem(0, kb, qb, r) for r in range(4)]
            for r in range(4): fb(el[r][0][2])
            for r in range(4):
                for _, _, tx in el[r][1:]: fb(tx)
    fb('s_nop 1')
    for i in range(64): fb(pv_mfma(i // 8, (i // 2) % 4, i % 2, 0))
    for qb in range(4):
        fb(l_mfma(0, qb))
    fb(f's_add_u32 s17, s17, 16384\ns_cmp_lt_u32 s17, {512 << 10}\ns_cbranch_scc1 L_p2loop')
    fb(EPI_ADDR)
    for q in range(4):
        for x in factor_ops(q)[0]: fb(x)
    fb('s_waitcnt lgkmcnt(0)')
    for q in range(4): fb(factor_ops(q)[1])
    fb('s_waitcnt lgkmcnt(0)')
    for qb in range(4):
        for r in (0, 2):
            for x in out_pair(qb, r): fb(x)
    fb('s_branch L_fin')
    i1, i2 = fb.l.index('L_maxloop:'), fb.l.index('L_p2loop:')
    fb.l = fix_hazards([], fb.l, 'fb')
    i2 = fb.l.index('L_p2loop:')
    errs += check_hazards(fb.l, 'fb') + check_waits(fb.l, 'fb')
    p2 = fb.l[i2:[k for k, x in enumerate(fb.l) if 'L_p2loop' in x][-1] + 1]
    errs += check_hazards(p2 + p2, 'fb2')
    o.l += fb.l
    return o.l, errs

HEADER = open('cdna_kernels/' + NAME + '.s.ref').read().split('; @launch')[0]

def main():
    mn, errs = gen_main()
    for e in errs:
        print(e, file=sys.stderr)
    if errs and not OPT.get('nofb'):
        sys.exit(1)
    nm = NAME + '_kernel'
    txt = HEADER + f'; @launch grid=(256,1,1) block=(256,1,1) lds={LDS_TOTAL}\n'
    txt += '.amdgcn_target "amdgcn-amd-amdhsa--gfx950"\n.text\n'
    txt += f'.globl {nm}\n.p2align 8\n.type {nm},@function\n{nm}:\n' + '\n'.join(mn) + '\n'
    txt += f'''.section .rodata,"a"
.p2align 6
.amdhsa_kernel {nm}
  .amdhsa_next_free_vgpr 472
  .amdhsa_next_free_sgpr 102
  .amdhsa_accum_offset 256
  .amdhsa_group_segment_fixed_size 0
  .amdhsa_kernarg_size 80
  .amdhsa_user_sgpr_count 2
  .amdhsa_user_sgpr_kernarg_segment_ptr 1
  .amdhsa_system_sgpr_workgroup_id_x 1
  .amdhsa_float_denorm_mode_32 3
.end_amdhsa_kernel
'''
    open(sys.argv[1], 'w').write(txt)

main()
```

```python
import sys, struct, math
from asmlib import *

NAME = 'standalone__kv_cache_quant_int4_int2_kv_with_per_channel_or_per_token_scales__prompt'
OPT = dict(tp=5, cap=2, lpos=15, early=4, skew=1, nra=0, nrb=0, go=1, bsplit=8, zpos=1, bsleep=0, pull=6, wb=1, nb1=11, barfirst=1, nql=0, nqb=0, nqa=0, touch=1, upg=12, pol='nt', stamp=0, d=6, st=7, dma0=6, dmastep=10, spin=4000, opol='nt', rp=0, pairbar=0)
for a in sys.argv[2:]:
    k, v = a.split('=', 1)
    OPT[k] = eval(v)

def f32bits(x):
    return struct.unpack('<I', struct.pack('<f', x))[0]

CSCALE = f32bits(128 ** -0.5 * math.log2(math.e))
V_OFF = 4 << 20
FLAG_OFF = 9 << 20
MF = 'v_mfma_f32_16x16x32_bf16'
D, RP = OPT['d'], OPT['rp']
def flags(x): return (' ' + x.replace('_', ' ')) if x else ''
POL, OPOL, SC1 = flags(OPT['pol']), flags(OPT['opol']), ' sc1'

class Out:
    def __init__(self):
        self.l = []
    def __call__(self, s):
        for x in s.strip('\n').split('\n'):
            if x.strip():
                self.l.append(x.strip() if x.strip().endswith(':') or x.startswith('.') else '    ' + x.strip())

def rng(p, b, n): return f'{p}[{b}:{b+n-1}]'
O0 = 128
def vO(qb, db): return rng('v', O0 + (qb*8+db)*4, 4)
def vOr(qb, db, r): return O0 + (qb*8+db)*4 + r
def aQ(qb, ks): return rng('a', (qb*4+ks)*4, 4)
def aF(k): return rng('a', 64 + (k % 16)*4, 4)
def aX(j): return rng('a', 128 + j*4, 4)
BY, BE, C0, T0 = 16, (48, 80), 112, 128
def sbase(par, kb, qb): return (BY if kb & 1 else BE[par]) + (qb*2 + kb//2)*4
def vS(par, kb, qb): return rng('v', sbase(par, kb, qb), 4)
def vSr(par, kb, qb, r): return f'v{sbase(par, kb, qb) + r}'
def vP(par, t, qb): return rng('v', BE[par] + (qb*2+t)*4, 4)
def vPr(par, t, qb, i): return f'v{BE[par] + (qb*2+t)*4 + i}'
def vC(qb): return rng('v', C0 + qb*4, 4)
vM = ['v8', 'v9', 'v10', 'v11']
IDX = 15
L0, ONES = 192, 208
def aL(qb): return rng('a', L0 + 4*qb, 4)
vRd, vD1, vD2 = 'v4', 'v5', 'v6'
LDS_RING = 131072
LDS_SCR = LDS_RING
LDS_HS = LDS_RING + 4096
LDS_QX = LDS_HS + 256
LDS_TOTAL = LDS_QX + 16384

def frag_off(k):
    if k < 16:
        return k * 1024
    db, t = (k - 16) // 2, (k - 16) % 2
    return 16384 + t * 8192 + db * 1024

def sm_elem(buf, kb, qb, r):
    s = vSr(buf, kb, qb, r)
    ops = [(0, 0, f'v_exp_f32_e32 {s}, {s}')]
    if r & 1:
        d, lo = vPr(buf, kb//2, qb, (kb%2)*2 + r//2), vSr(buf, kb, qb, r-1)
        ops.append((3, 2, f'v_perm_b32 {d}, {s}, {lo}, s92' if OPT.get('trunc') else f'v_cvt_pk_bf16_f32 {d}, {lo}, {s}'))
    return ops

def l_mfma(buf, qb):
    return f'v_smfmac_f32_16x16x64_bf16 {aL(qb)}, {rng("a", ONES, 4)}, {rng("v", BE[buf] + qb*8, 8)}, v{IDX}'

def sel_init():
    return (['v_cmp_gt_u32_e32 vcc, 2, v7', 'v_mov_b32_e32 v8, 0x3f803f80', f'v_mov_b32_e32 v{IDX}, 0x44444444',
             'v_cndmask_b32_e32 v8, v1, v8, vcc', 'v_cmp_eq_u32_e32 vcc, 1, v7', 'v_mov_b32_e32 v9, 0xeeeeeeee'] +
            [f'v_accvgpr_write_b32 a{ONES + k}, v8' for k in range(4)] + [f'v_cndmask_b32_e32 v{IDX}, v{IDX}, v9, vcc'])

def acc_init():
    return [f'v_accvgpr_write_b32 a{L0 + k}, 0' for k in range(16)] + [f'v_mov_b32_e32 v{O0 + k}, 0' for k in range(128)]

def sm_ops(buf, order=None):
    order = order or [(e // 4, e % 4) for e in range(16)]
    return [(2*e + dg, pr, tx) for e in range(64) for dg, pr, tx in sm_elem(buf, order[e // 4][0], order[e // 4][1], e % 4)]

def qk_mfma(par, kb, qb, ks, cinit=False):
    c = (vC(qb) if cinit else '0') if ks == 0 else vS(par, kb, qb)
    return f'{MF} {vS(par, kb, qb)}, {aF(kb*4+ks)}, {aQ(qb, ks)}, {c}'

def pv_mfma(db, qb, t, buf, fr=None):
    return f'{MF} {vO(qb, db)}, {vP(buf, t, qb)}, {fr or aF(16 + db*2 + t)}, {vO(qb, db)}'

def dma(grp, i, srd='s[4:7]', so='s17'):
    v = vD1 if grp == 0 else vD2
    return f'buffer_load_dwordx4 {v}, {srd}, {so} offen offset:{1024*i}{SC1} lds'

class Block:
    def __init__(self, G, carry):
        self.G = G
        self.mf = [None] * G
        self.mem = [[] for _ in range(G)]
        self.val = [[] for _ in range(G + 140)]
        for g, lst in carry.items():
            self.val[g] += lst
        self.reads = [(4*f + RP - 4*D, (0, f)) for f in range(D)]
        self.waits = []
    def read(self, g, ident, f, off):
        self.mem[g].append(f'ds_read_b128 {aF(f)}, {vRd} offset:{off}')
        self.reads.append((g, ident))
    def finish(self):
        self.reads.sort(key=lambda r: r[0])
        ids = [r[1] for r in self.reads]
        for gw, need in self.waits:
            if gw == 0: continue
            p = max(ids.index(x) for x in need)
            assert self.reads[p][0] < gw - 1, (gw, need)
            w = len([1 for r in self.reads[p+1:] if r[0] < gw - 1])
            self.mem[gw - 1].insert(0, f's_waitcnt lgkmcnt({w})')
        return {g - self.G: self.val[g] for g in range(self.G, len(self.val)) if self.val[g]}
    def stage(self, k, par, nxt=True):
        g0 = 128 * k
        for i in range(64):
            self.mf[g0 + i] = qk_mfma(par ^ 1, i // 16, (i // 4) % 4, i % 4)
            self.mf[g0 + 64 + i] = pv_mfma(i // 8, (i // 2) % 4, i % 2, par)
        for rg, pr, tx in sm_ops(par ^ 1):
            self.val[g0 + OPT['st'] + rg].append((pr, tx))
        for qb in range(4):
            self.val[g0 + 64 + 16*qb + OPT['lpos']].append((30, l_mfma(par, qb)))
        for f in range(D, 32 + (D if nxt else 0)):
            g = g0 + 4*f + RP - 4*D
            if f in (30, 31): g -= OPT['pull']
            if f < 32: self.read(g, (k, f), f, par*32768 + frag_off(f))
            else: self.read(g, (k + 1, f - 32), f, (par ^ 1)*32768 + frag_off(f - 32))
        for m in range(8):
            self.waits.append((g0 + 16*m, [(k, 4*m + j) for j in range(4)]))
    def gap_lines(self, g):
        v = [t for _, t in sorted(self.val[g], key=lambda z: z[0])]
        m = self.mem[g]
        if OPT.get('no_exp'): v = [t for t in v if not t.startswith('v_exp')]
        if OPT.get('no_add'): v = [t for t in v if not t.startswith('v_add')]
        if OPT.get('no_cvt'): v = [t for t in v if not t.startswith('v_cvt')]
        if OPT.get('no_lds'): m = [t for t in m if not t.startswith('ds_read')]
        if OPT.get('no_dma'): m = [t for t in m if not t.startswith('buffer_load')]
        if any(t.endswith(':') for t in m):
            return m, v
        sc = [t for t in m if t.startswith('s_')]
        return sc, [t for t in m if not t.startswith('s_')] + v
    def emit(self, o, upto=None):
        for g in range(upto if upto is not None else self.G):
            o(self.mf[g])
            sc, ve = self.gap_lines(g)
            for x in sc + ve: o(x)

def stampdq(o, k):
    if OPT.get('stampdq'):
        o(f's_memtime s[{64+2*k}:{65+2*k}]')

def stampp(o, k):
    if OPT.get('stampp'):
        o(f's_memtime s[{64+2*k}:{65+2*k}]')

def stamp(o, k):
    if OPT.get('stampp') and k in (4, 5, 7):
        return
    if OPT.get('stampdq') and k in (3, 4, 5, 7):
        return
    if OPT['stamp']:
        o(f's_memtime s[{64+2*k}:{65+2*k}]')

NINIT = 0
def init_work(o):
    global NINIT
    NINIT += 1
    o(f's_cmp_lg_u32 s52, 0\ns_cbranch_scc1 L_noinit{NINIT}')
    for r in range(128):
        o(f'v_accvgpr_write_b32 a{r}, 0')
    o(f'L_noinit{NINIT}:')

def qdma(o, idx):
    idx = list(idx)
    for i in idx:
        if i % 4 == 0 or i == idx[0]:
            o(f's_add_u32 m0, s100, {(i // 4)*4096}')
            o('s_nop 0')
        so = 's22' if i < 4 else f's{60 + i // 4}'
        o(f'buffer_load_dwordx4 v{94 + i % 4}, s[8:11], {so} offen offset:{1024*(i % 4)}{POL} lds')
    return len(idx)

def qreads(o, qbs):
    for qb in qbs:
        for ks in range(4):
            o(f'ds_read_b128 {aQ(qb, ks)}, v{98 + ks} offset:{4096*qb}')

POLL = 'buffer_load_dwordx2 v[82:83], v86, s[96:99], 0 offen sc1'

class Seq(Out):
    def __init__(self):
        super().__init__()
        self.vq = []
        self.m0 = None
    def vm(self, text, tag):
        self(text); self.vq.append(tag)
    def after(self, *tags):
        return len(self.vq) - 1 - max(i for i, t in enumerate(self.vq) if t in tags)
    def vwait(self, *tags):
        self(f's_waitcnt vmcnt({self.after(*tags)})')
    def q(self, i):
        if self.m0 != ('q', i // 4):
            self(f's_add_u32 m0, s100, {(i // 4)*4096}\ns_nop 0'); self.m0 = ('q', i // 4)
        so = 's22' if i < 4 else f's{60 + i // 4}'
        self.vm(f'buffer_load_dwordx4 v{94 + i % 4}, s[8:11], {so} offen offset:{1024*(i % 4)}{POL} lds', f'q{i}')

def gen_dequant(o, kind, helper, nroll=0, between=None):
    T = T0
    NB1 = 16 if helper else OPT['nb1']
    todo = [('d', x) for x in range(NB1, 16)] + [('q', i) for i in range(nroll)]
    def dload(x):
        gs, j = x // 8, x % 8
        so = 's53' if j < 4 else 's54'
        o.vm(f'buffer_load_dwordx4 {rng("v", T + gs*32 + j*4, 4)}, v12, s[32:35], {so} offen offset:{512*(4*gs + j%4)}{POL}', f'd{x}')
    def step(x):
        o.vwait(f'd{x}')
        if x == 0 and not helper: stampdq(o, 7)
        if x == 8 and not helper:
            o.vm('buffer_load_dwordx2 v[80:81], v1, s[44:47], s23 offen sc1', 'tag')
        if todo:
            k, i = todo.pop(0)
            dload(i) if k == 'd' else o.q(i)
    if helper:
        o('''
    s_lshl_b32 s53, s51, 15
    s_add_u32 s53, s53, s48''')
    else:
        o.vq += ['d0', 'd1']
    o('''
    s_add_u32 s54, s53, 8192
    s_lshl_b32 s55, s51, 14''')
    if kind == 'k':
        o('s_lshr_b32 s56, s51, 1\ns_lshl_b32 s56, s56, 8\ns_add_u32 s56, s56, s49')
        o.vm('buffer_load_dwordx2 v[192:193], v89, s[36:39], s56 offen', 'sc')
        o.vm('buffer_load_dwordx2 v[194:195], v89, s[40:43], s56 offen', 'sc')
    else:
        o('s_lshl_b32 s56, s51, 7\ns_add_u32 s56, s56, s49')
        o.vm('buffer_load_dwordx4 v[192:195], v89, s[36:39], s56 offen', 'sc')
        o.vm('buffer_load_dwordx4 v[196:199], v89, s[36:39], s56 offen offset:32', 'sc')
        o.vm('buffer_load_dwordx4 v[200:203], v89, s[40:43], s56 offen', 'sc')
        o.vm('buffer_load_dwordx4 v[204:207], v89, s[40:43], s56 offen offset:32', 'sc')
    for x in range(0 if helper else 2, NB1): dload(x)
    if between: between()
    o.vwait('sc')
    if kind == 'k':
        o('''
    v_lshlrev_b32_e32 v196, 16, v192
    v_and_b32_e32 v197, s60, v192
    v_lshlrev_b32_e32 v198, 16, v193
    v_and_b32_e32 v199, s60, v193
    v_lshlrev_b32_e32 v200, 16, v194
    v_and_b32_e32 v201, s60, v194
    v_lshlrev_b32_e32 v202, 16, v195
    v_and_b32_e32 v203, s60, v195
    v_pk_mul_f32 v[196:197], v[196:197], s[58:59]
    v_pk_mul_f32 v[198:199], v[198:199], s[58:59]
    v_pk_mul_f32 v[200:201], v[200:201], v[196:197] neg_lo:[1,0] neg_hi:[1,0]
    v_pk_mul_f32 v[202:203], v[202:203], v[198:199] neg_lo:[1,0] neg_hi:[1,0]''')
        for gs in range(2):
            for j in range(8):
                step(gs*8 + j)
                b = T + gs*32 + j*4
                for c in range(4): o(f'v_cvt_f32_i32_e32 v{b+c}, v{b+c}')
                o(f'v_pk_fma_f32 {rng("v", b, 2)}, {rng("v", b, 2)}, v[196:197], v[200:201]')
                o(f'v_pk_fma_f32 {rng("v", b+2, 2)}, {rng("v", b+2, 2)}, v[198:199], v[202:203]')
                o(f'v_cvt_pk_bf16_f32 v{b}, v{b}, v{b+1}')
                o(f'v_cvt_pk_bf16_f32 v{b+1}, v{b+2}, v{b+3}')
                o(f'ds_write_b64 v87, {rng("v", b, 2)} offset:{(j // 4)*4096 + (4*gs + j % 4)*16}')
    else:
        SCU, ZRU = 208, 224
        for p in range(8):
            o(f'v_lshlrev_b32_e32 v{SCU+2*p}, 16, v{192+p}')
            o(f'v_and_b32_e32 v{SCU+2*p+1}, s60, v{192+p}')
            o(f'v_lshlrev_b32_e32 v{ZRU+2*p}, 16, v{200+p}')
            o(f'v_and_b32_e32 v{ZRU+2*p+1}, s60, v{200+p}')
            o(f'v_pk_mul_f32 {rng("v", ZRU+2*p, 2)}, {rng("v", ZRU+2*p, 2)}, {rng("v", SCU+2*p, 2)} neg_lo:[1,0] neg_hi:[1,0]')
        for gs in range(2):
            ob = 192 if gs == 0 else T
            for j in range(8):
                step(gs*8 + j)
                b = T + gs*32 + j*4
                ix = (j // 4)*8 + 4*gs + j % 4
                zr, sc, sel = ZRU + (ix & ~1), SCU + (ix & ~1), ix & 1
                bc = f'op_sel:[0,{sel},{sel}] op_sel_hi:[1,{sel},{sel}]'
                for c in range(4): o(f'v_cvt_f32_i32_e32 v{b+c}, v{b+c}')
                for p in range(2):
                    o(f'v_pk_fma_f32 {rng("v", b+2*p, 2)}, {rng("v", b+2*p, 2)}, {rng("v", sc, 2)}, {rng("v", zr, 2)} {bc}')
                if j & 1:
                    for c in range(4):
                        o(f'v_cvt_pk_bf16_f32 v{ob + 4*c + j//2}, v{b - 4 + c}, v{b + c}')
            for c in range(4):
                o(f'ds_write_b128 v87, {rng("v", ob + 4*c, 4)} offset:{1024*c + 256*gs}')
    o('s_waitcnt lgkmcnt(0)')
    for f in range(8):
        o(f'ds_read_b128 {rng("v", T + 32 + 4*f, 4)}, v14 offset:{1024*f}')
    for k, i in todo: o.q(i)
    for f in range(8):
        o(f's_waitcnt lgkmcnt({7 - f})')
        vv = vD1 if f < 4 else vD2
        o.vm(f'buffer_store_dwordx4 {rng("v", T + 32 + 4*f, 4)}, {vv}, s[4:7], s55 offen offset:{1024*(f%4)}', 'st')

def lane_reduce(op, tmp):
    r = []
    for sw in ('v_permlane16_swap_b32', 'v_permlane32_swap_b32'):
        r += [f'v_mov_b32_e32 v{tmp+q}, {vM[q]}' for q in range(4)]
        r += [f'{sw} {vM[q]}, v{tmp+q}' for q in range(4)]
        r += [f'{op} {vM[q]}, {vM[q]}, v{tmp+q}' for q in range(4)]
    return r

FA = 112
def out_store(qb, r):
    b = sbase(0, 1 + 2*(r & 1), qb)
    so = 's22' if qb == 0 else f's{60+qb}'
    return ([f'v_cvt_pk_bf16_f32 v{b+p}, v{vOr(qb, 2*p, r)}, v{vOr(qb, 2*p+1, r)}' for p in range(4)] +
            [f'buffer_store_dwordx4 {rng("v", b, 4)}, v14, s[12:15], {so} offen offset:{256*r}{OPOL}'])
def out_group(qb, r):
    return [f'v_mul_f32_e32 v{vOr(qb, db, r)}, v{vOr(qb, db, r)}, v{FA + 4*qb + r}' for db in range(8)] + out_store(qb, r)
def out_pair(qb, r):
    return ([f'v_pk_mul_f32 {rng("v", vOr(qb, db, r), 2)}, {rng("v", vOr(qb, db, r), 2)}, {rng("v", FA + 4*qb + r, 2)}' for db in range(8)]
            + out_store(qb, r) + out_store(qb, r + 1))

def factor_ops(q):
    t = FA + 4*q
    return ([f'v_accvgpr_read_b32 {vM[q]}, a{L0 + 4*q}', f'v_accvgpr_read_b32 v{t}, a{L0 + 4*q + 1}', f'v_add_f32_e32 {vM[q]}, {vM[q]}, v{t}',
             f'v_rcp_f32_e32 {vM[q]}, {vM[q]}', f'ds_write_b32 v12, {vM[q]} offset:{64*q}'],
            f'ds_read_b128 {rng("v", t, 4)}, v13 offset:{64*q}')

EPI_ADDR = f'''
    s_lshl_b32 s53, s16, 10
    s_add_u32 s53, s53, {LDS_SCR}
    v_lshl_add_u32 v13, v3, 4, s53
    v_lshl_add_u32 v12, v7, 2, s53
    v_lshl_add_u32 v12, v3, 8, v12
    v_lshlrev_b32_e32 v14, 10, v3
    v_lshl_add_u32 v14, v7, 4, v14'''

SETUP_K = '''
    v_lshlrev_b32_e32 v89, 3, v88           ; scales: m*8'''
SETUP_V = '''
    v_lshlrev_b32_e32 v89, 4, v13            ; scales: h*16
    s_lshl_b32 s56, s23, 6
    s_add_u32 s49, s49, s56'''
SETUP_REST = f'''
    v_lshrrev_b32_e32 v3, 4, v2               ; g
    v_and_b32_e32 v7, 15, v2                  ; n
    v_lshlrev_b32_e32 {vD1}, 4, v2
    v_add_u32_e32 {vD2}, 0x1000, {vD1}
    v_mov_b32_e32 {vRd}, {vD1}
    s_lshl_b32 s22, s20, 5
    s_add_u32 s22, s22, s21
    s_lshl_b32 s22, s22, 16
    s_lshl_b32 s23, s16, 14
    s_add_u32 s22, s22, s23
    s_add_u32 s61, s22, 4096
    s_add_u32 s62, s22, 8192
    s_add_u32 s63, s22, 12288
    v_lshlrev_b32_e32 v86, 7, v2
    v_xor_b32_e32 v94, v7, v3
    v_lshlrev_b32_e32 v94, 4, v94
    v_lshl_add_u32 v98, v7, 8, v94
    v_lshl_add_u32 v94, v3, 8, v94          ; Q staging source: (lane/16)*256 + ((lane%16)^(lane/16))*16
    v_xor_b32_e32 v95, 64, v94
    v_xor_b32_e32 v96, 0x80, v94
    v_xor_b32_e32 v97, 0xc0, v94
    s_lshl_b32 s100, s16, 14
    s_add_u32 s100, s100, {2*32768}
    s_cmp_eq_u32 s16, 2
    s_cselect_b32 s100, {3*32768 + 16384}, s100
    s_cmp_eq_u32 s16, 3
    s_cselect_b32 s100, {LDS_QX}, s100
    v_add_u32_e32 v98, s100, v98
    v_xor_b32_e32 v99, 64, v98
    v_xor_b32_e32 v100, 0x80, v98
    v_xor_b32_e32 v101, 0xc0, v98
    s_and_b32 s23, s16, 1
    s_lshl_b32 s28, s20, 19                   ; head*512KB
    s_lshl_b32 s4, s23, 13
    s_add_u32 s4, s4, s28
    s_mov_b32 s60, 0xffff0000
    s_mov_b32 s93, 0
    s_getreg_b32 s3, hwreg(HW_REG_XCC_ID, 0, 4)
    v_cmp_gt_u32_e32 vcc, 32, v2
    v_mov_b32_e32 v1, 0
    v_mov_b32_e32 v84, s3
    s_mov_b32 s58, 0x{CSCALE:08x}
    s_mov_b32 s59, 0x{CSCALE:08x}
    v_cndmask_b32_e32 v84, 16, v84, vcc
    s_lshl_b32 s19, s16, 13
    s_lshl_b32 s56, s16, 2
    s_add_u32 s56, s56, {LDS_HS}
    v_mov_b32_e32 v102, s56
    ds_write2_b32 v102, v1, v1 offset1:4
    s_mov_b32 s6, {512 << 10}
    s_mov_b32 s7, 0x20000
    s_mov_b32 s30, {V_OFF + (512 << 10)}
    s_mov_b32 s31, 0x20000
    s_mov_b32 s46, 256
    s_mov_b32 s47, 0x20000
    s_mov_b32 s98, 8192
    s_mov_b32 s99, 0x20000
    s_lshl_b32 s96, s20, 2
    s_add_u32 s96, s96, s16
    s_lshl_b32 s96, s96, 13
    s_add_u32 s96, s96, {FLAG_OFF}
    s_lshl_b32 s101, s21, 7
    s_add_u32 s17, s21, 1
    s_and_b32 s17, s17, 31
    s_lshl_b32 s17, s17, 14
    s_mov_b32 s57, {OPT['spin']}
    s_or_b32 s50, s21, s16
    s_cselect_b32 s50, 99, 12
    s_mov_b32 s18, 15
    s_mov_b32 s10, {16 << 20}
    s_mov_b32 s11, 0x20000
    s_mov_b32 s12, s14
    s_mov_b32 s13, s15
    s_mov_b32 s14, {16 << 20}
    s_mov_b32 s15, 0x20000
    s_mov_b32 s44, s24
    s_mov_b32 s45, s25
    s_lshl_b32 s23, s20, 5
    s_lshl_b64 s[88:89], s[94:95], 8
    s_mov_b32 s94, 0'''
SETUP_K2 = f'''
    v_lshrrev_b32_e32 v87, 1, v88
    v_lshlrev_b32_e32 v87, 8, v87
    v_and_b32_e32 v88, 1, v88
    v_lshl_add_u32 v87, v88, 3, v87
    v_lshl_add_u32 v103, v13, 7, v87         ; LDS write: (m/2)*256 + (m%2)*8 + h*128
    s_add_u32 s92, s19, {3*32768}
    v_add_u32_e32 v87, s92, v103
    v_add_u32_e32 v14, s92, {vD1}'''
SETUP_V2 = f'''
    v_and_b32_e32 v87, 1, v88
    v_lshlrev_b32_e32 v87, 12, v87
    v_lshl_add_u32 v87, v13, 9, v87
    v_lshrrev_b32_e32 v88, 1, v88
    v_lshl_add_u32 v103, v88, 4, v87        ; LDS write: (m%2)*4096 + h*512 + (m/2)*16
    v_add_u32_e32 v87, s19, v103
    v_add_u32_e32 v14, s19, {vD1}
    s_add_u32 s4, s4, {V_OFF}'''
SETUP_SRD = '''
    s_add_u32 s4, s26, s4
    s_addc_u32 s5, s27, 0
    s_add_u32 s28, s26, s28
    s_addc_u32 s29, s27, 0
    s_add_u32 s96, s26, s96
    s_addc_u32 s97, s27, 0'''
TAG_STORE = '''
    s_cmp_eq_u32 s50, 99
    s_cbranch_scc1 L_notag
    s_or_b32 s88, s88, 0x80
    v_mov_b32_e32 v80, s88
    v_mov_b32_e32 v81, s89
    s_mov_b64 exec, 1
    buffer_store_dwordx2 v[80:81], v1, s[44:47], s23 offen sc1
    s_mov_b64 exec, -1
L_notag:'''

def gen_core(o, errs, head):
    st = OPT['st']
    SKEW = OPT['skew']
    carry = {}
    for rg, pr, tx in sm_ops(0):
        if st + rg >= 128: carry.setdefault(st + rg - 128, []).append((pr, tx))
    late = set(tx for l in carry.values() for _, tx in l)
    def part_dma(c, slot):
        c.m0 = None
        for grp in range(2):
            c(f's_add_u32 m0, s19, {slot*32768 + grp*4096}\ns_nop 0')
            for i in range(4): c.vm(dma(grp, i), f'p{slot}')
        c('s_add_u32 s17, s17, 16384\ns_and_b32 s17, s17, 0x7ffff')
    def qk0(c, qb):
        c('s_waitcnt lgkmcnt(0)')
        ex = [(kb, r) for kb in range(4) for r in range(4)]
        pend = []
        for i in range(16):
            c(qk_mfma(0, i // 4, qb, i % 4))
            if pend:
                for x in pend: c(x)
                pend = []
            elif ex and 4*ex[0][0] + 3 + 4 <= i:
                kb, r = ex.pop(0)
                ops = [tx for _, _, tx in sm_elem(0, kb, qb, r)]
                c(ops[0]); pend = ops[1:]
        for kb, r in ex:
            ops = [tx for _, _, tx in sm_elem(0, kb, qb, r) if tx not in late]
            if ops and ops[0].startswith('v_exp'):
                c(ops[0]); ops = ops[1:]
            for x in pend: c(x)
            pend = ops
        for x in pend: c(x)
    def path(kind):
        c = Seq()
        tg = 1 if kind == 'k' else 3
        nroll = OPT['nra'] if kind == 'k' else OPT['nrb']
        c(SETUP_K if kind == 'k' else SETUP_V)
        def between():
            c(SETUP_REST)
            c(SETUP_K2 if kind == 'k' else SETUP_V2)
            c(SETUP_SRD)
            if kind == 'k':
                c(TAG_STORE)
            if OPT.get('touch'):
                c.vm('buffer_load_dword v90, v1, s[4:7], s55 offen sc1', 'x')
                c.vm('buffer_load_dword v91, v1, s[96:99], 0 offen sc1', 'x')
                c.vm('buffer_load_dword v92, v1, s[12:15], s22 offen sc1', 'x')
                c.vm('buffer_load_dword v93, v1, s[8:11], s22 offen', 'x')
            stampdq(c, 4)
            for x in sel_init(): c(x)
            stampdq(c, 5)
        gen_dequant(c, kind, False, nroll, between)
        stamp(c, 1)
        c.vwait('st')
        c(f'''
L_tag{tg}:
        s_mov_b32 s95, {tg}
        v_cmp_eq_u64_e32 vcc, 0, v[80:81]
        s_cbranch_vccnz L_tagslow
        v_add_u32_e32 v84, v84, v80
        v_mov_b32_e32 v85, v81
        s_mov_b64 exec, 1
        buffer_store_dwordx2 v[84:85], v1, s[96:99], s101 offen
        s_mov_b64 exec, -1
L_nopub{tg}:
        s_barrier''')
        stamp(c, 2)
        def k0_reads():
            c(f'v_add_u32_e32 v12, {3*32768}, {vD1}')
            for f in range(16):
                if f == 12: c(f's_waitcnt lgkmcnt({0 if OPT["stamp"] else 8})')
                c(f'ds_read_b128 {aF(f)}, v12 offset:{frag_off(f)}')
            for x in acc_init(): c(x)
            if OPT.get('trunc'): c('s_mov_b32 s92, 0x07060302')
        def check():
            c(f'''
        s_mov_b32 s57, {OPT['spin']}
        s_cmp_lg_u32 s93, 0
        s_cbranch_scc1 L_help
L_chk{tg}:
        v_cmp_eq_u64_e32 vcc, v[84:85], v[82:83]
        s_nop 0
        s_cmp_eq_u32 vcc_lo, -1
        s_cbranch_scc0 L_pollslow
L_ok{tg}:''')
        if kind == 'k':
            for i in range(8): c.q(i)
            c.vm(POLL, 'poll')
            for i in range(8, 16): c.q(i)
            k0_reads()
            for qb in range(4):
                c.vwait(*([f'q{4*qb + 3}'] + (['poll'] if qb == 1 else [])))
                if qb == 0:
                    stamp(c, 3)
                    c(f's_waitcnt lgkmcnt({0 if OPT["stamp"] else 8})')
                qreads(c, [qb])
                if qb == 0:
                    c('v_mov_b32_e32 v12, 1\nds_write_b32 v102, v12 offset:16')
                if qb == 1:
                    check()
                    stamp(c, 4)
                    part_dma(c, 0)
                qk0(c, qb)
        else:
            k0_reads()
            c(f'''
    v_mov_b32_e32 v102, {LDS_HS + 16}
L_go:
    ds_read_b64 v[12:13], v102
    s_waitcnt lgkmcnt(0)
    v_and_b32_e32 v12, v12, v13
    v_cmp_ne_u32_e32 vcc, 1, v12
    s_cbranch_vccnz L_go''')
            stamp(c, 4)
            for i in range(8): c.q(i)
            for qb in range(4):
                c.vwait(*([f'q{4*qb + 3}'] + (['poll'] if qb == 3 else [])))
                if qb == 0:
                    stamp(c, 3)
                    if OPT['stamp']: c('s_waitcnt lgkmcnt(0)')
                qreads(c, [qb])
                if qb == 0:
                    for i in range(8, 16): c.q(i)
                    c.vm(POLL, 'poll')
                if qb == 3:
                    check()
                    part_dma(c, 1)
                qk0(c, qb)
        stamp(c, 7)
        if kind == 'k':
            c.vwait('p0')
            if SKEW:
                c('''
    v_mov_b32_e32 v12, 1
    ds_write_b32 v102, v12
    v_xor_b32_e32 v102, 4, v102
L_hs:
    ds_read_b32 v12, v102
    s_waitcnt lgkmcnt(0)
    v_cmp_ne_u32_e32 vcc, 1, v12
    s_cbranch_vccnz L_hs''')
        elif SKEW:
            c.vwait('p1')
        if kind == 'v' or not SKEW: c('s_barrier')
        for f in range(D):
            c(f'ds_read_b128 {aF(f)}, {vRd} offset:{frag_off(f)}')
        if kind == 'k': part_dma(c, 1)
        if kind == 'v' and SKEW:
            part_dma(c, 2)
            c('s_mov_b32 s32, s19\ns_add_u32 s19, s19, 0x18000')
        else:
            c('s_add_u32 s32, s19, 0x18000\ns_add_u32 s19, s19, 0x10000')
        c(EPI_ADDR)
        stamp(c, 5)
        c(f's_waitcnt lgkmcnt({0 if OPT["stamp"] else D - 4})')
        c('s_branch L_loop_in')
        c.l = fix_hazards(head, c.l, 'start' + kind)
        return c
    c, cb = path('k'), path('v')
    pre_lines = head
    B = Block(256, carry)
    B.stage(0, 0); B.stage(1, 1)
    B.waits.append((256, [(2, j) for j in range(4)]))
    bars = [(256, 0)] if OPT['pairbar'] else [(128, 8), (256, 8)]
    for ge, vm in bars:
        gb = ge + RP - 4*D - 1
        B.mem[gb] += [f's_waitcnt vmcnt({vm})' + (' lgkmcnt(0)' if OPT['pull'] else '')] + ([] if OPT.get('nobar') else ['s_barrier'])
    B.val[256 + RP - 4*D - 1].append((5, f'v_xor_b32_e32 {vRd}, 0x10000, {vRd}'))
    for j in range(16):
        g = OPT['dma0'] + OPT['dmastep'] * j if OPT['pairbar'] else 128*(j // 8) + OPT['dma0'] + 12*(j % 8)
        if j % 4 == 0:
            B.mem[g - 1].append(f's_add_u32 m0, {"s19" if j < 8 else "s32"}, {((j // 4) % 2)*4096}')
        B.mem[g].append(dma((j // 4) % 2, j % 4))
        if j % 8 == 7:
            B.mem[g + 1].append('s_add_u32 s17, s17, 16384')
            B.mem[g + 2].append('s_and_b32 s17, s17, 0x7ffff')
        if j == 15:
            B.mem[g + 3].append('s_xor_b32 s19, s19, 0x10000')
            B.mem[g + 4].append('s_xor_b32 s32, s32, 0x10000')
    if OPT['stamp'] >= 2:
        B.mem[1].append('s_memtime s[84:85]')
        B.mem[2].append('s_memrealtime s[86:87]')
        B.mem[14].insert(0, 's_waitcnt lgkmcnt(0)')
        B.val[18].append((9, f'v_cmp_eq_u32_e32 vcc, s18, v2'))
        for k in range(4):
            B.val[20 + 2*k].append((9, f'v_mov_b32_e32 v124, s{84+k}'))
            B.val[21 + 2*k].append((9, f'v_cndmask_b32_e32 v{120+k}, v{120+k}, v124, vcc'))
    if OPT.get('wb'):
        g = min(x for x in range(OPT['dma0'] + 12*7 + 1, 128) if not B.mem[x] and not B.val[x])
        B.mem[g] += ['s_cmp_eq_u32 s18, s50', 's_cbranch_scc1 L_dowb', 'L_nowb:']
    B.mem[253].append('s_sub_u32 s18, s18, 1')
    B.mem[254].append('s_cmp_lg_u32 s18, 0')
    assert B.finish() == carry
    loop = Out()
    B.emit(loop, 255)
    loop(B.mf[255])
    sc, head = B.gap_lines(255)
    for x in sc: loop(x)
    loop('s_cbranch_scc1 L_loop')
    E = Block(192, carry)
    for i in range(64):
        E.mf[i] = qk_mfma(1, (i % 16) // 4, i // 16, i % 4)
    for i in range(128):
        qb, db, u = i // 32, (i % 32) // 4, i % 4
        E.mf[64 + i] = pv_mfma(db, qb, u % 2, u // 2, aX(2*db + u) if u < 2 else None)
    TP = OPT['tp']
    s0 = max(carry) + 1
    for k in range(16):
        for r in range(4):
            el = sm_elem(1, k % 4, k // 4, r)
            E.val[s0 + TP*k + r].append((0, el[0][2]))
            if r & 1: E.val[s0 + TP*k + 4 + (r // 2 if TP > 5 else 0)].append((2, el[1][2]))
    used = [sum(2 if t.startswith('v_exp') else 1 for _, t in E.val[g]) for g in range(192)]
    def rd(g, ident, reg, off):
        E.mem[g].append(f'ds_read_b128 {reg}, {vRd} offset:{off}'); E.reads.append((g, ident)); used[g] += 1
    for f in range(D, 16): rd(f - D, (0, f), aF(f), frag_off(f))
    free = [g for g in range(10, 60) if used[g] < 2]
    free = sorted(free + [g for g in range(10, 60) if g not in free][:max(0, 16 - len(free))])
    for j in range(16): rd(free[j], (0, 16 + j), aX(j), frag_off(16 + j))
    E.mem[47] += (['s_cmp_ge_u32 s16, 2', 's_cbranch_scc1 L_nobar', 's_waitcnt vmcnt(0)', 's_barrier', 'L_nobar:'] if SKEW else ['s_waitcnt vmcnt(0)', 's_barrier'])
    for j in range(16): rd(max(50 + j, 54 + 2*j), (1, 16 + j), aF(16 + j), 32768 + frag_off(16 + j))
    for m in range(1, 4): E.waits.append((4*m, [(0, 4*m + j) for j in range(4)]))
    E.waits.append((64, [(0, 31), (1, 19)]))
    for m in range(1, 4): E.waits.append((64 + 8*m, [(1, 16 + 4*m + 3)]))
    if OPT['stamp'] >= 2:
        E.mem[20].append('s_memtime s[84:85]')
        E.mem[21].append('s_memrealtime s[86:87]')
        E.mem[44].insert(0, 's_waitcnt lgkmcnt(0)')
        for k in range(4):
            E.val[45].append((9, f'v_writelane_b32 v{120+k}, s{84+k}, 0'))
            E.val[46].append((9, f'v_accvgpr_write_b32 a{212+k}, v{120+k}'))
    E.finish()
    E.mem[1].append(f's_mov_b32 s54, 0x{f32bits(2.0**-60):08x}')
    E.mem[2].append(f's_mov_b32 s55, 0x{f32bits(2.0**60):08x}')
    order = [100]
    def place(ops, g, cap=2):
        for k, (eg, x) in enumerate(ops):
            if x.startswith('s_'):
                g = max(g + 1, eg)
                if g >= 192: return g, ops[k:]
                E.mem[g].append(x)
                continue
            cost = 2 if x.startswith(('v_rcp', 'buffer_')) else 1
            g = max(g, eg)
            memop = not x.startswith('v_')
            if memop: g += 1
            while g < 192 and (used[g] + cost > cap or (memop and any(not t.startswith('s_') for t in E.mem[g]))): g += 1
            if g >= 192: return g, ops[k:]
            order[0] += 1
            if memop: E.mem[g].append(x)
            else: E.val[g].append((order[0], x))
            used[g] += cost
            if x.startswith('v_rcp'): g += 1
        return g, []
    CAP = OPT['cap']
    ready = []
    g = 88
    for qb in range(4):
        E.val[15 + 4*qb].append((30, l_mfma(0, qb)))
        gl = (s0 + TP*4*(qb + 1) + 1) | 3
        E.val[gl].append((30, l_mfma(1, qb)))
        ready.append(gl + 6)
    def chain(qs, g):
        fs = [factor_ops(q) for q in qs]
        ops = [(ready[q], f[0][k]) for k in range(5) for q, f in zip(qs, fs)]
        lo = hi = vM[qs[0]]
        if len(qs) > 1:
            lo, hi = 'v126', 'v127'
            ops += [(0, f'v_minimum3_f32 {lo}, {vM[qs[0]]}, {vM[qs[1]]}, {vM[qs[-1]]}'), (0, f'v_maximum3_f32 {hi}, {vM[qs[0]]}, {vM[qs[1]]}, {vM[qs[-1]]}')]
        ops += [(0, f'v_cmp_nle_f32_e64 s[56:57], s54, {lo}'), (0, f'v_cmp_nge_f32_e32 vcc, s55, {hi}'), (0, 's_waitcnt lgkmcnt(0)')]
        ops += [(0, f[1]) for f in fs]
        ops += [(0, 's_or_b32 s56, s56, vcc_lo'), (0, 's_and_b32 s56, s56, 0xffff'),
                (0, 's_cbranch_scc1 L_fallback' if not OPT.get('nofb') else 's_nop 0')]
        g, left = place(ops, g, CAP); assert not left
        g, left = place([(g + 2, 's_waitcnt lgkmcnt(0)')], g, CAP); assert not left
        return g
    done = lambda qb: 64 + 32*(qb + 1) + 3
    left, rest = [], []
    def groups(qb, g):
        for r in range(4):
            if left or rest or g >= 188 or done(qb) >= 188:
                left.append((qb, r)); continue
            g, l2 = place([(done(qb), x) for x in out_group(qb, r)], g, CAP)
            rest.extend(x for _, x in l2)
        return g
    g = chain([0, 1, 2], g); fready = [g]*3
    g = chain([3], g); fready.append(g)
    g = 0
    for qb in range(4): g = groups(qb, max(g, fready[qb]))
    print('tail: factors', fready, 'left', left, len(rest), file=sys.stderr)
    while left:
        qb, r = left.pop(0)
        if r % 2 == 0:
            rest += out_pair(qb, r); left.pop(0)
        else:
            rest += out_group(qb, r)
    left = [(0, x) for x in rest]
    tail = Out()
    for x in head: tail(x)
    E.emit(tail)
    stamp(tail, 6)
    for _, x in left: tail(x)
    tail.l = fix_hazards(loop.l, tail.l, 'tail')
    lin = pre_lines + c.l + loop.l + ['    ' + x for x in head] + loop.l + tail.l
    errs += check_hazards(lin, 'core') + check_waits(lin, 'core')
    lin = pre_lines + cb.l + loop.l
    errs += check_hazards(lin, 'coreB') + check_waits(lin, 'coreB')
    o.l += c.l
    o('L_pathv:')
    o.l += cb.l
    o('.p2align 6')
    o('L_loop:')
    for x in head: o(x)
    o('L_loop_in:')
    o.l += loop.l + tail.l

def gen_main():
    errs = []
    o = Out()
    o('s_cmp_ge_u32 s2, 256\ns_cbranch_scc1 L_end')
    stamp(o, 0)
    if OPT['stamp']: o('s_memrealtime s[80:81]')
    o(f'''
    s_load_dwordx4 s[8:11], s[0:1], 0         ; q, qk
    s_load_dwordx4 s[32:35], s[0:1], 16
    s_load_dwordx4 s[36:39], s[0:1], 32       ; k_zeros, v_scales
    s_load_dwordx4 s[12:15], s[0:1], 48       ; v_zeros, out
    s_load_dwordx4 s[24:27], s[0:1], 64
    s_memrealtime s[94:95]
    v_lshrrev_b32_e32 v1, 6, v0
    v_and_b32_e32 v2, 63, v0                  ; lane
    v_readfirstlane_b32 s16, v1               ; wave
    v_lshrrev_b32_e32 v13, 5, v2              ; h
    v_and_b32_e32 v88, 31, v2                ; m
    v_lshlrev_b32_e32 v12, 12, v13
    v_lshl_add_u32 v12, v88, 4, v12
    s_and_b32 s20, s2, 7
    s_lshr_b32 s21, s2, 3
    s_and_b32 s23, s16, 1
    s_lshl_b32 s48, s20, 20
    s_lshl_b32 s53, s23, 14
    s_add_u32 s48, s48, s53
    s_lshl_b32 s53, s21, 15
    s_add_u32 s53, s53, s48
    s_lshl_b32 s49, s20, 12                   ; head*4096
    s_mov_b32 s51, s21
    s_mov_b32 s42, 32768
    s_mov_b32 s43, 0x20000
    s_cmp_ge_u32 s16, 2
    s_waitcnt lgkmcnt(0)
    s_cselect_b32 s40, s12, s36
    s_cselect_b32 s41, s13, s37
    s_cselect_b32 s36, s38, s34
    s_cselect_b32 s37, s39, s35
    s_cselect_b32 s32, s32, s10
    s_cselect_b32 s33, s33, s11
    s_mov_b32 s34, {8 << 20}
    s_mov_b32 s35, 0x20000
    buffer_load_dwordx4 {rng("v", T0, 4)}, v12, s[32:35], s53 offen{POL}
    buffer_load_dwordx4 {rng("v", T0 + 4, 4)}, v12, s[32:35], s53 offen offset:512{POL}
    s_mov_b32 s38, 32768
    s_mov_b32 s39, 0x20000
    s_cbranch_scc1 L_pathv''')
    head = list(o.l)
    gen_core(o, errs, head)
    o('L_fin:')
    if OPT['stamp']:
        o(f'''
    s_memtime s[86:87]
    s_waitcnt vmcnt(0)
    s_memtime s[84:85]
    s_memrealtime s[82:83]
    s_waitcnt lgkmcnt(0)
    s_mov_b32 s88, s26
    s_mov_b32 s89, s27
    s_mov_b32 s90, 0x10000000
    s_mov_b32 s91, 0x20000
    s_lshl_b32 s101, s2, 2
    s_add_u32 s101, s101, s16
    s_lshl_b32 s92, s101, 7
    s_add_u32 s92, s92, {16 << 20}
    s_lshl_b32 s101, s101, 10
    s_add_u32 s101, s101, {17 << 20}''')
        if OPT.get('dbg'):
            o(f'''
    s_cmp_lg_u32 s16, 0
    s_cbranch_scc1 L_nodbg
    s_mov_b32 s53, 8
    s_cmp_eq_u32 s2, 9
    s_cbranch_scc1 L_dodbg
    s_mov_b32 s53, 40
    s_cmp_eq_u32 s2, 254
    s_cbranch_scc0 L_nodbg
L_dodbg:
    s_sub_u32 s54, s74, s64
    s_sub_u32 s55, s76, s64
    s_sub_u32 s56, s84, s64
    s_sub_u32 s57, s82, s80
    v_mov_b32_e32 v16, s54
    v_mov_b32_e32 v17, s55
    v_mov_b32_e32 v18, s56
    v_mov_b32_e32 v19, s57
    v_mov_b32_e32 v20, s80
    v_mov_b32_e32 v21, s82
    s_mov_b64 exec, 1
    buffer_store_dwordx4 v[16:19], v1, s[44:47], s53 offen
    buffer_store_dwordx2 v[20:21], v1, s[44:47], s53 offen offset:16
    s_mov_b64 exec, -1
    s_nop 1
L_nodbg:''')
        for k in range(24):
            o(f'v_mov_b32_e32 v{16+k}, s{64+k}')
        o('v_mov_b32_e32 v40, 0')
        for k in range(6):
            o(f'buffer_store_dwordx4 {rng("v", 16+4*k, 4)}, v40, s[88:91], s92 offen offset:{16*k}')
        if OPT['stamp'] >= 2:
            o(f'buffer_store_dwordx4 a[212:215], {vD1}, s[88:91], s101 offen')
    o('L_end:\ns_endpgm')
    if OPT.get('wb'): o('L_dowb:\nbuffer_wbl2 sc1\ns_branch L_nowb')
    o(f'''
L_tagslow:
    s_sub_u32 s57, s57, 1
    s_cselect_b32 s93, 1, 0
    s_cbranch_scc1 L_tagout
    s_sleep 1
    buffer_load_dwordx2 v[80:81], v1, s[44:47], s23 offen sc1
    s_waitcnt vmcnt(0)
    s_cmp_eq_u32 s95, 1
    s_cbranch_scc1 L_tag1
    s_branch L_tag3
L_tagout:
    s_cmp_eq_u32 s95, 1
    s_cbranch_scc1 L_nopub1
    s_branch L_nopub3
L_pollslow:
    s_or_b32 s54, vcc_lo, vcc_hi
    s_not_b32 s54, s54
    s_cselect_b32 s55, 0, 1
    s_sub_u32 s57, s57, 1
    s_cselect_b32 s56, 1, 0
    s_cmp_lt_u32 s57, {OPT['spin'] - OPT['upg'] if OPT['spin'] > OPT['upg'] else 0}
    s_cselect_b32 s55, 1, s55
    s_or_b32 s55, s55, s56
    s_cmp_gt_u32 s55, s94
    s_cbranch_scc0 L_noupg
    s_mov_b32 s94, 1
    s_add_u32 s55, s101, 4096
    buffer_wbl2 sc1
    s_waitcnt vmcnt(0)
    s_mov_b32 exec_lo, 0
    s_mov_b32 exec_hi, 1
    buffer_store_dwordx2 v[84:85], v1, s[96:99], s55 offen sc1
    s_mov_b64 exec, -1
L_noupg:
    s_cmp_lg_u32 s56, 0
    s_cbranch_scc1 L_help
    s_cmp_eq_u32 s54, 0
    s_cbranch_scc1 L_polldone
    buffer_load_dwordx2 v[82:83], v86, s[96:99], 0 offen sc1
    s_waitcnt vmcnt(0)
    s_cmp_eq_u32 s95, 1
    s_cbranch_scc1 L_chk1
    s_branch L_chk3
L_polldone:
    s_cmp_eq_u32 s95, 1
    s_cbranch_scc1 L_ok1
    s_branch L_ok3
L_help:
    s_waitcnt lgkmcnt(0)
    v_add_u32_e32 v87, s100, v103
    v_add_u32_e32 v14, s100, {vD1}
    v_lshrrev_b32_e32 v13, 5, v2
    v_and_b32_e32 v88, 31, v2
    v_lshlrev_b32_e32 v12, 12, v13
    v_lshl_add_u32 v12, v88, 4, v12
    s_mov_b32 s52, 31
L_help_go:
    s_add_u32 s51, s21, s52
    s_and_b32 s51, s51, 31
    s_cmp_eq_u32 s95, 1
    s_cbranch_scc0 L_help_v''')
    for kind in 'kv':
        h = Seq()
        if kind == 'v': h('L_help_v:')
        gen_dequant(h, kind, True)
        if kind == 'k': h('s_branch L_help_next')
        errs += check_hazards(h.l, 'help') + check_waits(h.l, 'help')
        o.l += h.l
    o('''
L_help_next:
    s_waitcnt vmcnt(0)
    s_sub_u32 s52, s52, 1
    s_cmp_lg_u32 s52, 0
    s_cbranch_scc1 L_help_go''')
    for x in acc_init(): o(x)
    o('s_branch L_polldone')
    fb = Out()
    def kloads(off):
        for f in range(16):
            if f % 8 == 0: fb(f's_add_u32 s53, s17, {off + (f // 8)*8192}')
            v = vD1 if f % 8 < 4 else vD2
            k = f if off == 0 else 16 + 2*(f % 8) + f // 8
            fb(f'buffer_load_dwordx4 {aF(k)}, {v}, s[28:31], s53 offen offset:{1024*(f%4)} sc1')
        fb('s_waitcnt vmcnt(0)')
    fb('L_fallback:\ns_waitcnt vmcnt(0) lgkmcnt(0)\ns_nop 7\ns_nop 7')
    for q in range(4): fb(f'v_mov_b32_e32 {vM[q]}, 0xff800000')
    fb('s_mov_b32 s17, 0\nL_maxloop:')
    kloads(0)
    for i in range(64): fb(qk_mfma(0, i // 16, (i // 4) % 4, i % 4))
    fb('s_nop 7')
    for kb in range(4):
        for qb in range(4):
            for r in (0, 2):
                fb(f'v_max3_f32 {vM[qb]}, {vM[qb]}, {vSr(0, kb, qb, r)}, {vSr(0, kb, qb, r+1)}')
    fb(f's_add_u32 s17, s17, 16384\ns_cmp_lt_u32 s17, {512 << 10}\ns_cbranch_scc1 L_maxloop')
    for x in lane_reduce('v_max_f32_e32', 16): fb(x)
    for q in range(4):
        for r in range(4): fb(f'v_sub_f32_e32 v{C0 + 4*q + r}, 0, {vM[q]}')
    for x in acc_init(): fb(x)
    fb('s_mov_b32 s17, 0\nL_p2loop:')
    kloads(0)
    for i in range(64): fb(qk_mfma(0, i // 16, (i // 4) % 4, i % 4, True))
    kloads(V_OFF)
    for kb in range(4):
        for qb in range(4):
            el = [sm_elem(0, kb, qb, r) for r in range(4)]
            for r in range(4): fb(el[r][0][2])
            for r in range(4):
                for _, _, tx in el[r][1:]: fb(tx)
    fb('s_nop 1')
    for i in range(64): fb(pv_mfma(i // 8, (i // 2) % 4, i % 2, 0))
    for qb in range(4):
        fb(l_mfma(0, qb))
    fb(f's_add_u32 s17, s17, 16384\ns_cmp_lt_u32 s17, {512 << 10}\ns_cbranch_scc1 L_p2loop')
    fb(EPI_ADDR)
    for q in range(4):
        for x in factor_ops(q)[0]: fb(x)
    fb('s_waitcnt lgkmcnt(0)')
    for q in range(4): fb(factor_ops(q)[1])
    fb('s_waitcnt lgkmcnt(0)')
    for qb in range(4):
        for r in (0, 2):
            for x in out_pair(qb, r): fb(x)
    fb('s_branch L_fin')
    i1, i2 = fb.l.index('L_maxloop:'), fb.l.index('L_p2loop:')
    fb.l = fix_hazards([], fb.l, 'fb')
    i2 = fb.l.index('L_p2loop:')
    errs += check_hazards(fb.l, 'fb') + check_waits(fb.l, 'fb')
    p2 = fb.l[i2:[k for k, x in enumerate(fb.l) if 'L_p2loop' in x][-1] + 1]
    errs += check_hazards(p2 + p2, 'fb2')
    o.l += fb.l
    return o.l, errs

HEADER = open('cdna_kernels/' + NAME + '.s.ref').read().split('; @launch')[0]

def main():
    mn, errs = gen_main()
    for e in errs:
        print(e, file=sys.stderr)
    if errs and not OPT.get('nofb'):
        sys.exit(1)
    nm = NAME + '_kernel'
    txt = HEADER + f'; @launch grid=(256,1,1) block=(256,1,1) lds={LDS_TOTAL}\n'
    txt += '.amdgcn_target "amdgcn-amd-amdhsa--gfx950"\n.text\n'
    txt += f'.globl {nm}\n.p2align 8\n.type {nm},@function\n{nm}:\n' + '\n'.join(mn) + '\n'
    txt += f'''.section .rodata,"a"
.p2align 6
.amdhsa_kernel {nm}
  .amdhsa_next_free_vgpr 472
  .amdhsa_next_free_sgpr 102
  .amdhsa_accum_offset 256
  .amdhsa_group_segment_fixed_size 0
  .amdhsa_kernarg_size 80
  .amdhsa_user_sgpr_count 2
  .amdhsa_user_sgpr_kernarg_segment_ptr 1
  .amdhsa_system_sgpr_workgroup_id_x 1
  .amdhsa_float_denorm_mode_32 3
.end_amdhsa_kernel
'''
    open(sys.argv[1], 'w').write(txt)

main()
```

```python
import sys, struct, math
from asmlib import *

NAME = 'standalone__kv_cache_quant_int4_int2_kv_with_per_channel_or_per_token_scales__prompt'
OPT = dict(nwt=0, wpol='sc0_sc1', tp=5, cap=2, lpos=15, early=4, skew=1, nra=0, nrb=0, go=1, bsplit=8, zpos=1, bsleep=0, pull=6, wb=1, nb1=11, barfirst=1, nql=0, nqb=0, nqa=0, touch=1, upg=12, pol='nt', stamp=0, d=6, st=7, dma0=6, dmastep=10, spin=4000, opol='nt', rp=0, pairbar=0)
for a in sys.argv[2:]:
    k, v = a.split('=', 1)
    OPT[k] = eval(v)

def f32bits(x):
    return struct.unpack('<I', struct.pack('<f', x))[0]

CSCALE = f32bits(128 ** -0.5 * math.log2(math.e))
V_OFF = 4 << 20
FLAG_OFF = 9 << 20
MF = 'v_mfma_f32_16x16x32_bf16'
D, RP = OPT['d'], OPT['rp']
def flags(x): return (' ' + x.replace('_', ' ')) if x else ''
POL, OPOL, SC1 = flags(OPT['pol']), flags(OPT['opol']), ' sc1'

class Out:
    def __init__(self):
        self.l = []
    def __call__(self, s):
        for x in s.strip('\n').split('\n'):
            if x.strip():
                self.l.append(x.strip() if x.strip().endswith(':') or x.startswith('.') else '    ' + x.strip())

def rng(p, b, n): return f'{p}[{b}:{b+n-1}]'
O0 = 128
def vO(qb, db): return rng('v', O0 + (qb*8+db)*4, 4)
def vOr(qb, db, r): return O0 + (qb*8+db)*4 + r
def aQ(qb, ks): return rng('a', (qb*4+ks)*4, 4)
def aF(k): return rng('a', 64 + (k % 16)*4, 4)
def aX(j): return rng('a', 128 + j*4, 4)
BY, BE, C0, T0 = 16, (48, 80), 112, 128
def sbase(par, kb, qb): return (BY if kb & 1 else BE[par]) + (qb*2 + kb//2)*4
def vS(par, kb, qb): return rng('v', sbase(par, kb, qb), 4)
def vSr(par, kb, qb, r): return f'v{sbase(par, kb, qb) + r}'
def vP(par, t, qb): return rng('v', BE[par] + (qb*2+t)*4, 4)
def vPr(par, t, qb, i): return f'v{BE[par] + (qb*2+t)*4 + i}'
def vC(qb): return rng('v', C0 + qb*4, 4)
vM = ['v8', 'v9', 'v10', 'v11']
IDX = 15
L0, ONES = 192, 208
def aL(qb): return rng('a', L0 + 4*qb, 4)
vRd, vD1, vD2 = 'v4', 'v5', 'v6'
LDS_RING = 131072
LDS_SCR = LDS_RING
LDS_HS = LDS_RING + 4096
LDS_QX = LDS_HS + 256
LDS_TOTAL = LDS_QX + 16384

def frag_off(k):
    if k < 16:
        return k * 1024
    db, t = (k - 16) // 2, (k - 16) % 2
    return 16384 + t * 8192 + db * 1024

def sm_elem(buf, kb, qb, r):
    s = vSr(buf, kb, qb, r)
    ops = [(0, 0, f'v_exp_f32_e32 {s}, {s}')]
    if r & 1:
        d, lo = vPr(buf, kb//2, qb, (kb%2)*2 + r//2), vSr(buf, kb, qb, r-1)
        ops.append((3, 2, f'v_perm_b32 {d}, {s}, {lo}, s92' if OPT.get('trunc') else f'v_cvt_pk_bf16_f32 {d}, {lo}, {s}'))
    return ops

def l_mfma(buf, qb):
    return f'v_smfmac_f32_16x16x64_bf16 {aL(qb)}, {rng("a", ONES, 4)}, {rng("v", BE[buf] + qb*8, 8)}, v{IDX}'

def sel_init():
    return (['v_cmp_gt_u32_e32 vcc, 2, v7', 'v_mov_b32_e32 v8, 0x3f803f80', f'v_mov_b32_e32 v{IDX}, 0x44444444',
             'v_cndmask_b32_e32 v8, v1, v8, vcc', 'v_cmp_eq_u32_e32 vcc, 1, v7', 'v_mov_b32_e32 v9, 0xeeeeeeee'] +
            [f'v_accvgpr_write_b32 a{ONES + k}, v8' for k in range(4)] + [f'v_cndmask_b32_e32 v{IDX}, v{IDX}, v9, vcc'])

def acc_init():
    return [f'v_accvgpr_write_b32 a{L0 + k}, 0' for k in range(16)] + [f'v_mov_b32_e32 v{O0 + k}, 0' for k in range(128)]

def sm_ops(buf, order=None):
    order = order or [(e // 4, e % 4) for e in range(16)]
    return [(2*e + dg, pr, tx) for e in range(64) for dg, pr, tx in sm_elem(buf, order[e // 4][0], order[e // 4][1], e % 4)]

def qk_mfma(par, kb, qb, ks, cinit=False):
    c = (vC(qb) if cinit else '0') if ks == 0 else vS(par, kb, qb)
    return f'{MF} {vS(par, kb, qb)}, {aF(kb*4+ks)}, {aQ(qb, ks)}, {c}'

def pv_mfma(db, qb, t, buf, fr=None):
    return f'{MF} {vO(qb, db)}, {vP(buf, t, qb)}, {fr or aF(16 + db*2 + t)}, {vO(qb, db)}'

def dma(grp, i, srd='s[4:7]', so='s17'):
    v = vD1 if grp == 0 else vD2
    return f'buffer_load_dwordx4 {v}, {srd}, {so} offen offset:{1024*i}{SC1} lds'

class Block:
    def __init__(self, G, carry):
        self.G = G
        self.mf = [None] * G
        self.mem = [[] for _ in range(G)]
        self.val = [[] for _ in range(G + 140)]
        for g, lst in carry.items():
            self.val[g] += lst
        self.reads = [(4*f + RP - 4*D, (0, f)) for f in range(D)]
        self.waits = []
    def read(self, g, ident, f, off):
        self.mem[g].append(f'ds_read_b128 {aF(f)}, {vRd} offset:{off}')
        self.reads.append((g, ident))
    def finish(self):
        self.reads.sort(key=lambda r: r[0])
        ids = [r[1] for r in self.reads]
        for gw, need in self.waits:
            if gw == 0: continue
            p = max(ids.index(x) for x in need)
            assert self.reads[p][0] < gw - 1, (gw, need)
            w = len([1 for r in self.reads[p+1:] if r[0] < gw - 1])
            self.mem[gw - 1].insert(0, f's_waitcnt lgkmcnt({w})')
        return {g - self.G: self.val[g] for g in range(self.G, len(self.val)) if self.val[g]}
    def stage(self, k, par, nxt=True):
        g0 = 128 * k
        for i in range(64):
            self.mf[g0 + i] = qk_mfma(par ^ 1, i // 16, (i // 4) % 4, i % 4)
            self.mf[g0 + 64 + i] = pv_mfma(i // 8, (i // 2) % 4, i % 2, par)
        for rg, pr, tx in sm_ops(par ^ 1):
            self.val[g0 + OPT['st'] + rg].append((pr, tx))
        for qb in range(4):
            self.val[g0 + 64 + 16*qb + OPT['lpos']].append((30, l_mfma(par, qb)))
        for f in range(D, 32 + (D if nxt else 0)):
            g = g0 + 4*f + RP - 4*D
            if f in (30, 31): g -= OPT['pull']
            if f < 32: self.read(g, (k, f), f, par*32768 + frag_off(f))
            else: self.read(g, (k + 1, f - 32), f, (par ^ 1)*32768 + frag_off(f - 32))
        for m in range(8):
            self.waits.append((g0 + 16*m, [(k, 4*m + j) for j in range(4)]))
    def gap_lines(self, g):
        v = [t for _, t in sorted(self.val[g], key=lambda z: z[0])]
        m = self.mem[g]
        if OPT.get('no_exp'): v = [t for t in v if not t.startswith('v_exp')]
        if OPT.get('no_add'): v = [t for t in v if not t.startswith('v_add')]
        if OPT.get('no_cvt'): v = [t for t in v if not t.startswith('v_cvt')]
        if OPT.get('no_lds'): m = [t for t in m if not t.startswith('ds_read')]
        if OPT.get('no_dma'): m = [t for t in m if not t.startswith('buffer_load')]
        if any(t.endswith(':') for t in m):
            return m, v
        sc = [t for t in m if t.startswith('s_')]
        return sc, [t for t in m if not t.startswith('s_')] + v
    def emit(self, o, upto=None):
        for g in range(upto if upto is not None else self.G):
            o(self.mf[g])
            sc, ve = self.gap_lines(g)
            for x in sc + ve: o(x)

def stampdq(o, k):
    if OPT.get('stampdq'):
        o(f's_memtime s[{64+2*k}:{65+2*k}]')

def stampp(o, k):
    if OPT.get('stampp'):
        o(f's_memtime s[{64+2*k}:{65+2*k}]')

def stamp(o, k):
    if OPT.get('stampp') and k in (4, 5, 7):
        return
    if OPT.get('stampdq') and k in (3, 4, 5, 7):
        return
    if OPT['stamp']:
        o(f's_memtime s[{64+2*k}:{65+2*k}]')

NINIT = 0
def init_work(o):
    global NINIT
    NINIT += 1
    o(f's_cmp_lg_u32 s52, 0\ns_cbranch_scc1 L_noinit{NINIT}')
    for r in range(128):
        o(f'v_accvgpr_write_b32 a{r}, 0')
    o(f'L_noinit{NINIT}:')

def qdma(o, idx):
    idx = list(idx)
    for i in idx:
        if i % 4 == 0 or i == idx[0]:
            o(f's_add_u32 m0, s100, {(i // 4)*4096}')
            o('s_nop 0')
        so = 's22' if i < 4 else f's{60 + i // 4}'
        o(f'buffer_load_dwordx4 v{94 + i % 4}, s[8:11], {so} offen offset:{1024*(i % 4)}{POL} lds')
    return len(idx)

def qreads(o, qbs):
    for qb in qbs:
        for ks in range(4):
            o(f'ds_read_b128 {aQ(qb, ks)}, v{98 + ks} offset:{4096*qb}')

POLL = 'buffer_load_dwordx2 v[82:83], v86, s[96:99], 0 offen sc1'

class Seq(Out):
    def __init__(self):
        super().__init__()
        self.vq = []
        self.m0 = None
    def vm(self, text, tag):
        self(text); self.vq.append(tag)
    def after(self, *tags):
        return len(self.vq) - 1 - max(i for i, t in enumerate(self.vq) if t in tags)
    def vwait(self, *tags):
        self(f's_waitcnt vmcnt({self.after(*tags)})')
    def q(self, i):
        if self.m0 != ('q', i // 4):
            self(f's_add_u32 m0, s100, {(i // 4)*4096}\ns_nop 0'); self.m0 = ('q', i // 4)
        so = 's22' if i < 4 else f's{60 + i // 4}'
        self.vm(f'buffer_load_dwordx4 v{94 + i % 4}, s[8:11], {so} offen offset:{1024*(i % 4)}{POL} lds', f'q{i}')

def gen_dequant(o, kind, helper, nroll=0, between=None):
    T = T0
    NB1 = 16 if helper else OPT['nb1']
    todo = [('d', x) for x in range(NB1, 16)] + [('q', i) for i in range(nroll)]
    def dload(x):
        gs, j = x // 8, x % 8
        so = 's53' if j < 4 else 's54'
        o.vm(f'buffer_load_dwordx4 {rng("v", T + gs*32 + j*4, 4)}, v12, s[32:35], {so} offen offset:{512*(4*gs + j%4)}{POL}', f'd{x}')
    def step(x):
        o.vwait(f'd{x}')
        if x == 0 and not helper: stampdq(o, 7)
        if x == 8 and not helper:
            o.vm('buffer_load_dwordx2 v[80:81], v1, s[44:47], s23 offen sc1', 'tag')
        if todo:
            k, i = todo.pop(0)
            dload(i) if k == 'd' else o.q(i)
    if helper:
        o('''
    s_lshl_b32 s53, s51, 15
    s_add_u32 s53, s53, s48''')
    else:
        o.vq += ['d0', 'd1']
    o('''
    s_add_u32 s54, s53, 8192
    s_lshl_b32 s55, s51, 14''')
    if kind == 'k':
        o('s_lshr_b32 s56, s51, 1\ns_lshl_b32 s56, s56, 8\ns_add_u32 s56, s56, s49')
        o.vm('buffer_load_dwordx2 v[192:193], v89, s[36:39], s56 offen', 'sc')
        o.vm('buffer_load_dwordx2 v[194:195], v89, s[40:43], s56 offen', 'sc')
    else:
        o('s_lshl_b32 s56, s51, 7\ns_add_u32 s56, s56, s49')
        o.vm('buffer_load_dwordx4 v[192:195], v89, s[36:39], s56 offen', 'sc')
        o.vm('buffer_load_dwordx4 v[196:199], v89, s[36:39], s56 offen offset:32', 'sc')
        o.vm('buffer_load_dwordx4 v[200:203], v89, s[40:43], s56 offen', 'sc')
        o.vm('buffer_load_dwordx4 v[204:207], v89, s[40:43], s56 offen offset:32', 'sc')
    for x in range(0 if helper else 2, NB1): dload(x)
    if between: between()
    o.vwait('sc')
    if kind == 'k':
        o('''
    v_lshlrev_b32_e32 v196, 16, v192
    v_and_b32_e32 v197, s60, v192
    v_lshlrev_b32_e32 v198, 16, v193
    v_and_b32_e32 v199, s60, v193
    v_lshlrev_b32_e32 v200, 16, v194
    v_and_b32_e32 v201, s60, v194
    v_lshlrev_b32_e32 v202, 16, v195
    v_and_b32_e32 v203, s60, v195
    v_pk_mul_f32 v[196:197], v[196:197], s[58:59]
    v_pk_mul_f32 v[198:199], v[198:199], s[58:59]
    v_pk_mul_f32 v[200:201], v[200:201], v[196:197] neg_lo:[1,0] neg_hi:[1,0]
    v_pk_mul_f32 v[202:203], v[202:203], v[198:199] neg_lo:[1,0] neg_hi:[1,0]''')
        for gs in range(2):
            for j in range(8):
                step(gs*8 + j)
                b = T + gs*32 + j*4
                for c in range(4): o(f'v_cvt_f32_i32_e32 v{b+c}, v{b+c}')
                o(f'v_pk_fma_f32 {rng("v", b, 2)}, {rng("v", b, 2)}, v[196:197], v[200:201]')
                o(f'v_pk_fma_f32 {rng("v", b+2, 2)}, {rng("v", b+2, 2)}, v[198:199], v[202:203]')
                o(f'v_cvt_pk_bf16_f32 v{b}, v{b}, v{b+1}')
                o(f'v_cvt_pk_bf16_f32 v{b+1}, v{b+2}, v{b+3}')
                o(f'ds_write_b64 v87, {rng("v", b, 2)} offset:{(j // 4)*4096 + (4*gs + j % 4)*16}')
    else:
        SCU, ZRU = 208, 224
        for p in range(8):
            o(f'v_lshlrev_b32_e32 v{SCU+2*p}, 16, v{192+p}')
            o(f'v_and_b32_e32 v{SCU+2*p+1}, s60, v{192+p}')
            o(f'v_lshlrev_b32_e32 v{ZRU+2*p}, 16, v{200+p}')
            o(f'v_and_b32_e32 v{ZRU+2*p+1}, s60, v{200+p}')
            o(f'v_pk_mul_f32 {rng("v", ZRU+2*p, 2)}, {rng("v", ZRU+2*p, 2)}, {rng("v", SCU+2*p, 2)} neg_lo:[1,0] neg_hi:[1,0]')
        for gs in range(2):
            ob = 192 if gs == 0 else T
            for j in range(8):
                step(gs*8 + j)
                b = T + gs*32 + j*4
                ix = (j // 4)*8 + 4*gs + j % 4
                zr, sc, sel = ZRU + (ix & ~1), SCU + (ix & ~1), ix & 1
                bc = f'op_sel:[0,{sel},{sel}] op_sel_hi:[1,{sel},{sel}]'
                for c in range(4): o(f'v_cvt_f32_i32_e32 v{b+c}, v{b+c}')
                for p in range(2):
                    o(f'v_pk_fma_f32 {rng("v", b+2*p, 2)}, {rng("v", b+2*p, 2)}, {rng("v", sc, 2)}, {rng("v", zr, 2)} {bc}')
                if j & 1:
                    for c in range(4):
                        o(f'v_cvt_pk_bf16_f32 v{ob + 4*c + j//2}, v{b - 4 + c}, v{b + c}')
            for c in range(4):
                o(f'ds_write_b128 v87, {rng("v", ob + 4*c, 4)} offset:{1024*c + 256*gs}')
    o('s_waitcnt lgkmcnt(0)')
    for f in range(8):
        o(f'ds_read_b128 {rng("v", T + 32 + 4*f, 4)}, v14 offset:{1024*f}')
    for k, i in todo: o.q(i)
    for f in range(8):
        o(f's_waitcnt lgkmcnt({7 - f})')
        vv = vD1 if f < 4 else vD2
        o.vm(f'buffer_store_dwordx4 {rng("v", T + 32 + 4*f, 4)}, {vv}, s[4:7], s55 offen offset:{1024*(f%4)}', 'st')

def lane_reduce(op, tmp):
    r = []
    for sw in ('v_permlane16_swap_b32', 'v_permlane32_swap_b32'):
        r += [f'v_mov_b32_e32 v{tmp+q}, {vM[q]}' for q in range(4)]
        r += [f'{sw} {vM[q]}, v{tmp+q}' for q in range(4)]
        r += [f'{op} {vM[q]}, {vM[q]}, v{tmp+q}' for q in range(4)]
    return r

FA = 112
def out_store(qb, r):
    b = sbase(0, 1 + 2*(r & 1), qb)
    so = 's22' if qb == 0 else f's{60+qb}'
    return ([f'v_cvt_pk_bf16_f32 v{b+p}, v{vOr(qb, 2*p, r)}, v{vOr(qb, 2*p+1, r)}' for p in range(4)] +
            [f'buffer_store_dwordx4 {rng("v", b, 4)}, v14, s[12:15], {so} offen offset:{256*r}{flags(OPT["wpol"]) if qb*4 + r < OPT["nwt"] else OPOL}'])
def out_group(qb, r):
    return [f'v_mul_f32_e32 v{vOr(qb, db, r)}, v{vOr(qb, db, r)}, v{FA + 4*qb + r}' for db in range(8)] + out_store(qb, r)
def out_pair(qb, r):
    return ([f'v_pk_mul_f32 {rng("v", vOr(qb, db, r), 2)}, {rng("v", vOr(qb, db, r), 2)}, {rng("v", FA + 4*qb + r, 2)}' for db in range(8)]
            + out_store(qb, r) + out_store(qb, r + 1))

def factor_ops(q):
    t = FA + 4*q
    return ([f'v_accvgpr_read_b32 {vM[q]}, a{L0 + 4*q}', f'v_accvgpr_read_b32 v{t}, a{L0 + 4*q + 1}', f'v_add_f32_e32 {vM[q]}, {vM[q]}, v{t}',
             f'v_rcp_f32_e32 {vM[q]}, {vM[q]}', f'ds_write_b32 v12, {vM[q]} offset:{64*q}'],
            f'ds_read_b128 {rng("v", t, 4)}, v13 offset:{64*q}')

EPI_ADDR = f'''
    s_lshl_b32 s53, s16, 10
    s_add_u32 s53, s53, {LDS_SCR}
    v_lshl_add_u32 v13, v3, 4, s53
    v_lshl_add_u32 v12, v7, 2, s53
    v_lshl_add_u32 v12, v3, 8, v12
    v_lshlrev_b32_e32 v14, 10, v3
    v_lshl_add_u32 v14, v7, 4, v14'''

SETUP_K = '''
    v_lshlrev_b32_e32 v89, 3, v88           ; scales: m*8'''
SETUP_V = '''
    v_lshlrev_b32_e32 v89, 4, v13            ; scales: h*16
    s_lshl_b32 s56, s23, 6
    s_add_u32 s49, s49, s56'''
SETUP_REST = f'''
    v_lshrrev_b32_e32 v3, 4, v2               ; g
    v_and_b32_e32 v7, 15, v2                  ; n
    v_lshlrev_b32_e32 {vD1}, 4, v2
    v_add_u32_e32 {vD2}, 0x1000, {vD1}
    v_mov_b32_e32 {vRd}, {vD1}
    s_lshl_b32 s22, s20, 5
    s_add_u32 s22, s22, s21
    s_lshl_b32 s22, s22, 16
    s_lshl_b32 s23, s16, 14
    s_add_u32 s22, s22, s23
    s_add_u32 s61, s22, 4096
    s_add_u32 s62, s22, 8192
    s_add_u32 s63, s22, 12288
    v_lshlrev_b32_e32 v86, 7, v2
    v_xor_b32_e32 v94, v7, v3
    v_lshlrev_b32_e32 v94, 4, v94
    v_lshl_add_u32 v98, v7, 8, v94
    v_lshl_add_u32 v94, v3, 8, v94          ; Q staging source: (lane/16)*256 + ((lane%16)^(lane/16))*16
    v_xor_b32_e32 v95, 64, v94
    v_xor_b32_e32 v96, 0x80, v94
    v_xor_b32_e32 v97, 0xc0, v94
    s_lshl_b32 s100, s16, 14
    s_add_u32 s100, s100, {2*32768}
    s_cmp_eq_u32 s16, 2
    s_cselect_b32 s100, {3*32768 + 16384}, s100
    s_cmp_eq_u32 s16, 3
    s_cselect_b32 s100, {LDS_QX}, s100
    v_add_u32_e32 v98, s100, v98
    v_xor_b32_e32 v99, 64, v98
    v_xor_b32_e32 v100, 0x80, v98
    v_xor_b32_e32 v101, 0xc0, v98
    s_and_b32 s23, s16, 1
    s_lshl_b32 s28, s20, 19                   ; head*512KB
    s_lshl_b32 s4, s23, 13
    s_add_u32 s4, s4, s28
    s_mov_b32 s60, 0xffff0000
    s_mov_b32 s93, 0
    s_getreg_b32 s3, hwreg(HW_REG_XCC_ID, 0, 4)
    v_cmp_gt_u32_e32 vcc, 32, v2
    v_mov_b32_e32 v1, 0
    v_mov_b32_e32 v84, s3
    s_mov_b32 s58, 0x{CSCALE:08x}
    s_mov_b32 s59, 0x{CSCALE:08x}
    v_cndmask_b32_e32 v84, 16, v84, vcc
    s_lshl_b32 s19, s16, 13
    s_lshl_b32 s56, s16, 2
    s_add_u32 s56, s56, {LDS_HS}
    v_mov_b32_e32 v102, s56
    ds_write2_b32 v102, v1, v1 offset1:4
    s_mov_b32 s6, {512 << 10}
    s_mov_b32 s7, 0x20000
    s_mov_b32 s30, {V_OFF + (512 << 10)}
    s_mov_b32 s31, 0x20000
    s_mov_b32 s46, 256
    s_mov_b32 s47, 0x20000
    s_mov_b32 s98, 8192
    s_mov_b32 s99, 0x20000
    s_lshl_b32 s96, s20, 2
    s_add_u32 s96, s96, s16
    s_lshl_b32 s96, s96, 13
    s_add_u32 s96, s96, {FLAG_OFF}
    s_lshl_b32 s101, s21, 7
    s_add_u32 s17, s21, 1
    s_and_b32 s17, s17, 31
    s_lshl_b32 s17, s17, 14
    s_mov_b32 s57, {OPT['spin']}
    s_or_b32 s50, s21, s16
    s_cselect_b32 s50, 99, 12
    s_mov_b32 s18, 15
    s_mov_b32 s10, {16 << 20}
    s_mov_b32 s11, 0x20000
    s_mov_b32 s12, s14
    s_mov_b32 s13, s15
    s_mov_b32 s14, {16 << 20}
    s_mov_b32 s15, 0x20000
    s_mov_b32 s44, s24
    s_mov_b32 s45, s25
    s_lshl_b32 s23, s20, 5
    s_mov_b32 s94, 0'''
SETUP_K2 = f'''
    v_lshrrev_b32_e32 v87, 1, v88
    v_lshlrev_b32_e32 v87, 8, v87
    v_and_b32_e32 v88, 1, v88
    v_lshl_add_u32 v87, v88, 3, v87
    v_lshl_add_u32 v103, v13, 7, v87         ; LDS write: (m/2)*256 + (m%2)*8 + h*128
    s_add_u32 s92, s19, {3*32768}
    v_add_u32_e32 v87, s92, v103
    v_add_u32_e32 v14, s92, {vD1}'''
SETUP_V2 = f'''
    v_and_b32_e32 v87, 1, v88
    v_lshlrev_b32_e32 v87, 12, v87
    v_lshl_add_u32 v87, v13, 9, v87
    v_lshrrev_b32_e32 v88, 1, v88
    v_lshl_add_u32 v103, v88, 4, v87        ; LDS write: (m%2)*4096 + h*512 + (m/2)*16
    v_add_u32_e32 v87, s19, v103
    v_add_u32_e32 v14, s19, {vD1}
    s_add_u32 s4, s4, {V_OFF}'''
SETUP_SRD = '''
    s_add_u32 s4, s26, s4
    s_addc_u32 s5, s27, 0
    s_add_u32 s28, s26, s28
    s_addc_u32 s29, s27, 0
    s_add_u32 s96, s26, s96
    s_addc_u32 s97, s27, 0'''
TAG_STORE = '''
    s_or_b32 s50, s21, s16
    s_cbranch_scc1 L_notag
    s_mov_b32 s44, s24
    s_mov_b32 s45, s25
    s_mov_b32 s46, 256
    s_mov_b32 s47, 0x20000
    s_lshl_b32 s56, s20, 5
    s_lshl_b64 s[88:89], s[94:95], 8
    s_or_b32 s88, s88, 0x80
    v_mov_b32_e32 v1, 0
    v_mov_b32_e32 v80, s88
    v_mov_b32_e32 v81, s89
    s_mov_b64 exec, 1
    buffer_store_dwordx2 v[80:81], v1, s[44:47], s56 offen sc1
    s_mov_b64 exec, -1
L_notag:'''

def gen_core(o, errs, head):
    st = OPT['st']
    SKEW = OPT['skew']
    carry = {}
    for rg, pr, tx in sm_ops(0):
        if st + rg >= 128: carry.setdefault(st + rg - 128, []).append((pr, tx))
    late = set(tx for l in carry.values() for _, tx in l)
    def part_dma(c, slot):
        c.m0 = None
        for grp in range(2):
            c(f's_add_u32 m0, s19, {slot*32768 + grp*4096}\ns_nop 0')
            for i in range(4): c.vm(dma(grp, i), f'p{slot}')
        c('s_add_u32 s17, s17, 16384\ns_and_b32 s17, s17, 0x7ffff')
    def qk0(c, qb):
        c('s_waitcnt lgkmcnt(0)')
        ex = [(kb, r) for kb in range(4) for r in range(4)]
        pend = []
        for i in range(16):
            c(qk_mfma(0, i // 4, qb, i % 4))
            if pend:
                for x in pend: c(x)
                pend = []
            elif ex and 4*ex[0][0] + 3 + 4 <= i:
                kb, r = ex.pop(0)
                ops = [tx for _, _, tx in sm_elem(0, kb, qb, r)]
                c(ops[0]); pend = ops[1:]
        for kb, r in ex:
            ops = [tx for _, _, tx in sm_elem(0, kb, qb, r) if tx not in late]
            if ops and ops[0].startswith('v_exp'):
                c(ops[0]); ops = ops[1:]
            for x in pend: c(x)
            pend = ops
        for x in pend: c(x)
    def path(kind):
        c = Seq()
        tg = 1 if kind == 'k' else 3
        nroll = OPT['nra'] if kind == 'k' else OPT['nrb']
        c(SETUP_K if kind == 'k' else SETUP_V)
        def between():
            c(SETUP_REST)
            c(SETUP_K2 if kind == 'k' else SETUP_V2)
            c(SETUP_SRD)
            if OPT.get('touch'):
                c.vm('buffer_load_dword v90, v1, s[4:7], s55 offen sc1', 'x')
                c.vm('buffer_load_dword v91, v1, s[96:99], 0 offen sc1', 'x')
                c.vm('buffer_load_dword v92, v1, s[12:15], s22 offen sc1', 'x')
                c.vm('buffer_load_dword v93, v1, s[8:11], s22 offen', 'x')
            stampdq(c, 4)
            for x in sel_init(): c(x)
            stampdq(c, 5)
        gen_dequant(c, kind, False, nroll, between)
        stamp(c, 1)
        c.vwait('st')
        c(f'''
L_tag{tg}:
        s_mov_b32 s95, {tg}
        v_cmp_eq_u64_e32 vcc, 0, v[80:81]
        s_cbranch_vccnz L_tagslow
        v_add_u32_e32 v84, v84, v80
        v_mov_b32_e32 v85, v81
        s_mov_b64 exec, 1
        buffer_store_dwordx2 v[84:85], v1, s[96:99], s101 offen
        s_mov_b64 exec, -1
L_nopub{tg}:
        s_barrier''')
        stamp(c, 2)
        def k0_reads():
            c(f'v_add_u32_e32 v12, {3*32768}, {vD1}')
            for f in range(16):
                if f == 12: c(f's_waitcnt lgkmcnt({0 if OPT["stamp"] else 8})')
                c(f'ds_read_b128 {aF(f)}, v12 offset:{frag_off(f)}')
            for x in acc_init(): c(x)
            if OPT.get('trunc'): c('s_mov_b32 s92, 0x07060302')
        def check():
            c(f'''
        s_mov_b32 s57, {OPT['spin']}
        s_cmp_lg_u32 s93, 0
        s_cbranch_scc1 L_help
L_chk{tg}:
        v_cmp_eq_u64_e32 vcc, v[84:85], v[82:83]
        s_nop 0
        s_cmp_eq_u32 vcc_lo, -1
        s_cbranch_scc0 L_pollslow
L_ok{tg}:''')
        if kind == 'k':
            for i in range(8): c.q(i)
            c.vm(POLL, 'poll')
            for i in range(8, 16): c.q(i)
            k0_reads()
            for qb in range(4):
                c.vwait(*([f'q{4*qb + 3}'] + (['poll'] if qb == 1 else [])))
                if qb == 0:
                    stamp(c, 3)
                    c(f's_waitcnt lgkmcnt({0 if OPT["stamp"] else 8})')
                qreads(c, [qb])
                if qb == 0:
                    c('v_mov_b32_e32 v12, 1\nds_write_b32 v102, v12 offset:16')
                if qb == 1:
                    check()
                    stamp(c, 4)
                    part_dma(c, 0)
                qk0(c, qb)
        else:
            k0_reads()
            c(f'''
    v_mov_b32_e32 v102, {LDS_HS + 16}
L_go:
    ds_read_b64 v[12:13], v102
    s_waitcnt lgkmcnt(0)
    v_and_b32_e32 v12, v12, v13
    v_cmp_ne_u32_e32 vcc, 1, v12
    s_cbranch_vccnz L_go''')
            stamp(c, 4)
            for i in range(8): c.q(i)
            for qb in range(4):
                c.vwait(*([f'q{4*qb + 3}'] + (['poll'] if qb == 3 else [])))
                if qb == 0:
                    stamp(c, 3)
                    if OPT['stamp']: c('s_waitcnt lgkmcnt(0)')
                qreads(c, [qb])
                if qb == 0:
                    for i in range(8, 16): c.q(i)
                    c.vm(POLL, 'poll')
                if qb == 3:
                    check()
                    part_dma(c, 1)
                qk0(c, qb)
        stamp(c, 7)
        if kind == 'k':
            c.vwait('p0')
            if SKEW:
                c('''
    v_mov_b32_e32 v12, 1
    ds_write_b32 v102, v12
    v_xor_b32_e32 v102, 4, v102
L_hs:
    ds_read_b32 v12, v102
    s_waitcnt lgkmcnt(0)
    v_cmp_ne_u32_e32 vcc, 1, v12
    s_cbranch_vccnz L_hs''')
        elif SKEW:
            c.vwait('p1')
        if kind == 'v' or not SKEW: c('s_barrier')
        for f in range(D):
            c(f'ds_read_b128 {aF(f)}, {vRd} offset:{frag_off(f)}')
        if kind == 'k': part_dma(c, 1)
        if kind == 'v' and SKEW:
            part_dma(c, 2)
            c('s_mov_b32 s32, s19\ns_add_u32 s19, s19, 0x18000')
        else:
            c('s_add_u32 s32, s19, 0x18000\ns_add_u32 s19, s19, 0x10000')
        if OPT.get('retry'): c(f's_waitcnt lgkmcnt(0)\ns_sub_u32 s70, {OPT["spin"]}, s57\ns_add_u32 s70, s70, s64\ns_addc_u32 s71, s65, 0\ns_add_u32 s72, s64, s94\ns_addc_u32 s73, s65, 0')
        c(EPI_ADDR)
        stamp(c, 5)
        c(f's_waitcnt lgkmcnt({0 if OPT["stamp"] else D - 4})')
        c('s_branch L_loop_in')
        c.l = fix_hazards(head, c.l, 'start' + kind)
        return c
    c, cb = path('k'), path('v')
    pre_lines = head
    B = Block(256, carry)
    B.stage(0, 0); B.stage(1, 1)
    B.waits.append((256, [(2, j) for j in range(4)]))
    bars = [(256, 0)] if OPT['pairbar'] else [(128, 8), (256, 8)]
    for ge, vm in bars:
        gb = ge + RP - 4*D - 1
        B.mem[gb] += [f's_waitcnt vmcnt({vm})' + (' lgkmcnt(0)' if OPT['pull'] else '')] + ([] if OPT.get('nobar') else ['s_barrier'])
    B.val[256 + RP - 4*D - 1].append((5, f'v_xor_b32_e32 {vRd}, 0x10000, {vRd}'))
    for j in range(16):
        g = OPT['dma0'] + OPT['dmastep'] * j if OPT['pairbar'] else 128*(j // 8) + OPT['dma0'] + 12*(j % 8)
        if j % 4 == 0:
            B.mem[g - 1].append(f's_add_u32 m0, {"s19" if j < 8 else "s32"}, {((j // 4) % 2)*4096}')
        B.mem[g].append(dma((j // 4) % 2, j % 4))
        if j % 8 == 7:
            B.mem[g + 1].append('s_add_u32 s17, s17, 16384')
            B.mem[g + 2].append('s_and_b32 s17, s17, 0x7ffff')
        if j == 15:
            B.mem[g + 3].append('s_xor_b32 s19, s19, 0x10000')
            B.mem[g + 4].append('s_xor_b32 s32, s32, 0x10000')
    if OPT['stamp'] >= 2:
        B.mem[1].append('s_memtime s[84:85]')
        B.mem[2].append('s_memrealtime s[86:87]')
        B.mem[14].insert(0, 's_waitcnt lgkmcnt(0)')
        B.val[18].append((9, f'v_cmp_eq_u32_e32 vcc, s18, v2'))
        for k in range(4):
            B.val[20 + 2*k].append((9, f'v_mov_b32_e32 v124, s{84+k}'))
            B.val[21 + 2*k].append((9, f'v_cndmask_b32_e32 v{120+k}, v{120+k}, v124, vcc'))
    if OPT.get('wb'):
        g = min(x for x in range(OPT['dma0'] + 12*7 + 1, 128) if not B.mem[x] and not B.val[x])
        B.mem[g] += ['s_cmp_eq_u32 s18, s50', 's_cbranch_scc1 L_dowb', 'L_nowb:']
    B.mem[253].append('s_sub_u32 s18, s18, 1')
    B.mem[254].append('s_cmp_lg_u32 s18, 0')
    assert B.finish() == carry
    loop = Out()
    B.emit(loop, 255)
    loop(B.mf[255])
    sc, head = B.gap_lines(255)
    for x in sc: loop(x)
    loop('s_cbranch_scc1 L_loop')
    E = Block(192, carry)
    for i in range(64):
        E.mf[i] = qk_mfma(1, (i % 16) // 4, i // 16, i % 4)
    for i in range(128):
        qb, db, u = i // 32, (i % 32) // 4, i % 4
        E.mf[64 + i] = pv_mfma(db, qb, u % 2, u // 2, aX(2*db + u) if u < 2 else None)
    TP = OPT['tp']
    s0 = max(carry) + 1
    for k in range(16):
        for r in range(4):
            el = sm_elem(1, k % 4, k // 4, r)
            E.val[s0 + TP*k + r].append((0, el[0][2]))
            if r & 1: E.val[s0 + TP*k + 4 + (r // 2 if TP > 5 else 0)].append((2, el[1][2]))
    used = [sum(2 if t.startswith('v_exp') else 1 for _, t in E.val[g]) for g in range(192)]
    def rd(g, ident, reg, off):
        E.mem[g].append(f'ds_read_b128 {reg}, {vRd} offset:{off}'); E.reads.append((g, ident)); used[g] += 1
    for f in range(D, 16): rd(f - D, (0, f), aF(f), frag_off(f))
    free = [g for g in range(10, 60) if used[g] < 2]
    free = sorted(free + [g for g in range(10, 60) if g not in free][:max(0, 16 - len(free))])
    for j in range(16): rd(free[j], (0, 16 + j), aX(j), frag_off(16 + j))
    E.mem[47] += (['s_cmp_ge_u32 s16, 2', 's_cbranch_scc1 L_nobar', 's_waitcnt vmcnt(0)', 's_barrier', 'L_nobar:'] if SKEW else ['s_waitcnt vmcnt(0)', 's_barrier'])
    for j in range(16): rd(max(50 + j, 54 + 2*j), (1, 16 + j), aF(16 + j), 32768 + frag_off(16 + j))
    for m in range(1, 4): E.waits.append((4*m, [(0, 4*m + j) for j in range(4)]))
    E.waits.append((64, [(0, 31), (1, 19)]))
    for m in range(1, 4): E.waits.append((64 + 8*m, [(1, 16 + 4*m + 3)]))
    if OPT['stamp'] >= 2:
        E.mem[20].append('s_memtime s[84:85]')
        E.mem[21].append('s_memrealtime s[86:87]')
        E.mem[44].insert(0, 's_waitcnt lgkmcnt(0)')
        for k in range(4):
            E.val[45].append((9, f'v_writelane_b32 v{120+k}, s{84+k}, 0'))
            E.val[46].append((9, f'v_accvgpr_write_b32 a{212+k}, v{120+k}'))
    E.finish()
    E.mem[1].append(f's_mov_b32 s54, 0x{f32bits(2.0**-60):08x}')
    E.mem[2].append(f's_mov_b32 s55, 0x{f32bits(2.0**60):08x}')
    order = [100]
    def place(ops, g, cap=2):
        for k, (eg, x) in enumerate(ops):
            if x.startswith('s_'):
                g = max(g + 1, eg)
                if g >= 192: return g, ops[k:]
                E.mem[g].append(x)
                continue
            cost = 2 if x.startswith(('v_rcp', 'buffer_')) else 1
            g = max(g, eg)
            memop = not x.startswith('v_')
            if memop: g += 1
            while g < 192 and (used[g] + cost > cap or (memop and any(not t.startswith('s_') for t in E.mem[g]))): g += 1
            if g >= 192: return g, ops[k:]
            order[0] += 1
            if memop: E.mem[g].append(x)
            else: E.val[g].append((order[0], x))
            used[g] += cost
            if x.startswith('v_rcp'): g += 1
        return g, []
    CAP = OPT['cap']
    ready = []
    g = 88
    for qb in range(4):
        E.val[15 + 4*qb].append((30, l_mfma(0, qb)))
        gl = (s0 + TP*4*(qb + 1) + 1) | 3
        E.val[gl].append((30, l_mfma(1, qb)))
        ready.append(gl + 6)
    def chain(qs, g):
        fs = [factor_ops(q) for q in qs]
        ops = [(ready[q], f[0][k]) for k in range(5) for q, f in zip(qs, fs)]
        lo = hi = vM[qs[0]]
        if len(qs) > 1:
            lo, hi = 'v126', 'v127'
            ops += [(0, f'v_minimum3_f32 {lo}, {vM[qs[0]]}, {vM[qs[1]]}, {vM[qs[-1]]}'), (0, f'v_maximum3_f32 {hi}, {vM[qs[0]]}, {vM[qs[1]]}, {vM[qs[-1]]}')]
        ops += [(0, f'v_cmp_nle_f32_e64 s[56:57], s54, {lo}'), (0, f'v_cmp_nge_f32_e32 vcc, s55, {hi}'), (0, 's_waitcnt lgkmcnt(0)')]
        ops += [(0, f[1]) for f in fs]
        ops += [(0, 's_or_b32 s56, s56, vcc_lo'), (0, 's_and_b32 s56, s56, 0xffff'),
                (0, 's_cbranch_scc1 L_fallback' if not OPT.get('nofb') else 's_nop 0')]
        g, left = place(ops, g, CAP); assert not left
        g, left = place([(g + 2, 's_waitcnt lgkmcnt(0)')], g, CAP); assert not left
        return g
    done = lambda qb: 64 + 32*(qb + 1) + 3
    left, rest = [], []
    def groups(qb, g):
        for r in range(4):
            if left or rest or g >= 188 or done(qb) >= 188:
                left.append((qb, r)); continue
            g, l2 = place([(done(qb), x) for x in out_group(qb, r)], g, CAP)
            rest.extend(x for _, x in l2)
        return g
    g = chain([0, 1, 2], g); fready = [g]*3
    g = chain([3], g); fready.append(g)
    g = 0
    for qb in range(4): g = groups(qb, max(g, fready[qb]))
    print('tail: factors', fready, 'left', left, len(rest), file=sys.stderr)
    while left:
        qb, r = left.pop(0)
        if r % 2 == 0:
            rest += out_pair(qb, r); left.pop(0)
        else:
            rest += out_group(qb, r)
    left = [(0, x) for x in rest]
    tail = Out()
    for x in head: tail(x)
    E.emit(tail)
    stamp(tail, 6)
    for _, x in left: tail(x)
    tail.l = fix_hazards(loop.l, tail.l, 'tail')
    lin = pre_lines + c.l + loop.l + ['    ' + x for x in head] + loop.l + tail.l
    errs += check_hazards(lin, 'core') + check_waits(lin, 'core')
    lin = pre_lines + cb.l + loop.l
    errs += check_hazards(lin, 'coreB') + check_waits(lin, 'coreB')
    o.l += c.l
    o('L_pathv:')
    o.l += cb.l
    o('.p2align 6')
    o('L_loop:')
    for x in head: o(x)
    o('L_loop_in:')
    o.l += loop.l + tail.l

def gen_main():
    errs = []
    o = Out()
    o('s_cmp_ge_u32 s2, 256\ns_cbranch_scc1 L_end')
    stamp(o, 0)
    if OPT['stamp']: o('s_memrealtime s[80:81]')
    o(f'''
    s_load_dwordx4 s[8:11], s[0:1], 0         ; q, qk
    s_load_dwordx4 s[32:35], s[0:1], 16
    s_load_dwordx4 s[36:39], s[0:1], 32       ; k_zeros, v_scales
    s_load_dwordx4 s[12:15], s[0:1], 48       ; v_zeros, out
    s_load_dwordx4 s[24:27], s[0:1], 64
    s_memrealtime s[94:95]
    v_lshrrev_b32_e32 v1, 6, v0
    v_and_b32_e32 v2, 63, v0                  ; lane
    v_readfirstlane_b32 s16, v1               ; wave
    v_lshrrev_b32_e32 v13, 5, v2              ; h
    v_and_b32_e32 v88, 31, v2                ; m
    v_lshlrev_b32_e32 v12, 12, v13
    v_lshl_add_u32 v12, v88, 4, v12
    s_and_b32 s20, s2, 7
    s_lshr_b32 s21, s2, 3
    s_and_b32 s23, s16, 1
    s_lshl_b32 s48, s20, 20
    s_lshl_b32 s53, s23, 14
    s_add_u32 s48, s48, s53
    s_lshl_b32 s53, s21, 15
    s_add_u32 s53, s53, s48
    s_lshl_b32 s49, s20, 12                   ; head*4096
    s_mov_b32 s51, s21
    s_mov_b32 s42, 32768
    s_mov_b32 s43, 0x20000
    s_waitcnt lgkmcnt(0)''')
    o(TAG_STORE)
    o(f'''
    s_cmp_ge_u32 s16, 2
    s_cselect_b32 s40, s12, s36
    s_cselect_b32 s41, s13, s37
    s_cselect_b32 s36, s38, s34
    s_cselect_b32 s37, s39, s35
    s_cselect_b32 s32, s32, s10
    s_cselect_b32 s33, s33, s11
    s_mov_b32 s34, {8 << 20}
    s_mov_b32 s35, 0x20000
    buffer_load_dwordx4 {rng("v", T0, 4)}, v12, s[32:35], s53 offen{POL}
    buffer_load_dwordx4 {rng("v", T0 + 4, 4)}, v12, s[32:35], s53 offen offset:512{POL}
    s_mov_b32 s38, 32768
    s_mov_b32 s39, 0x20000
    s_cbranch_scc1 L_pathv''')
    head = list(o.l)
    gen_core(o, errs, head)
    o('L_fin:')
    if OPT['stamp']:
        o(f'''
    s_memtime s[86:87]
    s_waitcnt vmcnt(0)
    s_memtime s[84:85]
    s_memrealtime s[82:83]
    s_waitcnt lgkmcnt(0)
    s_mov_b32 s88, s26
    s_mov_b32 s89, s27
    s_mov_b32 s90, 0x10000000
    s_mov_b32 s91, 0x20000
    s_lshl_b32 s101, s2, 2
    s_add_u32 s101, s101, s16
    s_lshl_b32 s92, s101, 7
    s_add_u32 s92, s92, {16 << 20}
    s_lshl_b32 s101, s101, 10
    s_add_u32 s101, s101, {17 << 20}''')
        if OPT.get('dbg'):
            o(f'''
    s_cmp_lg_u32 s16, 0
    s_cbranch_scc1 L_nodbg
    s_mov_b32 s53, 8
    s_cmp_eq_u32 s2, 9
    s_cbranch_scc1 L_dodbg
    s_mov_b32 s53, 40
    s_cmp_eq_u32 s2, 254
    s_cbranch_scc0 L_nodbg
L_dodbg:
    s_sub_u32 s54, s74, s64
    s_sub_u32 s55, s76, s64
    s_sub_u32 s56, s84, s64
    s_sub_u32 s57, s82, s80
    v_mov_b32_e32 v16, s54
    v_mov_b32_e32 v17, s55
    v_mov_b32_e32 v18, s56
    v_mov_b32_e32 v19, s57
    v_mov_b32_e32 v20, s80
    v_mov_b32_e32 v21, s82
    s_mov_b64 exec, 1
    buffer_store_dwordx4 v[16:19], v1, s[44:47], s53 offen
    buffer_store_dwordx2 v[20:21], v1, s[44:47], s53 offen offset:16
    s_mov_b64 exec, -1
    s_nop 1
L_nodbg:''')
        for k in range(24):
            o(f'v_mov_b32_e32 v{16+k}, s{64+k}')
        o('v_mov_b32_e32 v40, 0')
        for k in range(6):
            o(f'buffer_store_dwordx4 {rng("v", 16+4*k, 4)}, v40, s[88:91], s92 offen offset:{16*k}')
        if OPT['stamp'] >= 2:
            o(f'buffer_store_dwordx4 a[212:215], {vD1}, s[88:91], s101 offen')
    o('L_end:\ns_endpgm')
    if OPT.get('wb'): o('L_dowb:\nbuffer_wbl2 sc1\ns_branch L_nowb')
    o(f'''
L_tagslow:
    s_sub_u32 s57, s57, 1
    s_cselect_b32 s93, 1, 0
    s_cbranch_scc1 L_tagout
    s_sleep 1
    buffer_load_dwordx2 v[80:81], v1, s[44:47], s23 offen sc1
    s_waitcnt vmcnt(0)
    s_cmp_eq_u32 s95, 1
    s_cbranch_scc1 L_tag1
    s_branch L_tag3
L_tagout:
    s_cmp_eq_u32 s95, 1
    s_cbranch_scc1 L_nopub1
    s_branch L_nopub3
L_pollslow:
    s_or_b32 s54, vcc_lo, vcc_hi
    s_not_b32 s54, s54
    s_cselect_b32 s55, 0, 1
    s_sub_u32 s57, s57, 1
    s_cselect_b32 s56, 1, 0
    s_cmp_lt_u32 s57, {OPT['spin'] - OPT['upg'] if OPT['spin'] > OPT['upg'] else 0}
    s_cselect_b32 s55, 1, s55
    s_or_b32 s55, s55, s56
    s_cmp_gt_u32 s55, s94
    s_cbranch_scc0 L_noupg
    s_mov_b32 s94, 1
    s_add_u32 s55, s101, 4096
    buffer_wbl2 sc1
    s_waitcnt vmcnt(0)
    s_mov_b32 exec_lo, 0
    s_mov_b32 exec_hi, 1
    buffer_store_dwordx2 v[84:85], v1, s[96:99], s55 offen sc1
    s_mov_b64 exec, -1
L_noupg:
    s_cmp_lg_u32 s56, 0
    s_cbranch_scc1 L_help
    s_cmp_eq_u32 s54, 0
    s_cbranch_scc1 L_polldone
    buffer_load_dwordx2 v[82:83], v86, s[96:99], 0 offen sc1
    s_waitcnt vmcnt(0)
    s_cmp_eq_u32 s95, 1
    s_cbranch_scc1 L_chk1
    s_branch L_chk3
L_polldone:
    s_cmp_eq_u32 s95, 1
    s_cbranch_scc1 L_ok1
    s_branch L_ok3
L_help:
    s_waitcnt lgkmcnt(0)
    v_add_u32_e32 v87, s100, v103
    v_add_u32_e32 v14, s100, {vD1}
    v_lshrrev_b32_e32 v13, 5, v2
    v_and_b32_e32 v88, 31, v2
    v_lshlrev_b32_e32 v12, 12, v13
    v_lshl_add_u32 v12, v88, 4, v12
    s_mov_b32 s52, 31
L_help_go:
    s_add_u32 s51, s21, s52
    s_and_b32 s51, s51, 31
    s_cmp_eq_u32 s95, 1
    s_cbranch_scc0 L_help_v''')
    for kind in 'kv':
        h = Seq()
        if kind == 'v': h('L_help_v:')
        gen_dequant(h, kind, True)
        if kind == 'k': h('s_branch L_help_next')
        errs += check_hazards(h.l, 'help') + check_waits(h.l, 'help')
        o.l += h.l
    o('''
L_help_next:
    s_waitcnt vmcnt(0)
    s_sub_u32 s52, s52, 1
    s_cmp_lg_u32 s52, 0
    s_cbranch_scc1 L_help_go''')
    for x in acc_init(): o(x)
    o('s_branch L_polldone')
    fb = Out()
    def kloads(off):
        for f in range(16):
            if f % 8 == 0: fb(f's_add_u32 s53, s17, {off + (f // 8)*8192}')
            v = vD1 if f % 8 < 4 else vD2
            k = f if off == 0 else 16 + 2*(f % 8) + f // 8
            fb(f'buffer_load_dwordx4 {aF(k)}, {v}, s[28:31], s53 offen offset:{1024*(f%4)} sc1')
        fb('s_waitcnt vmcnt(0)')
    fb('L_fallback:\ns_waitcnt vmcnt(0) lgkmcnt(0)\ns_nop 7\ns_nop 7')
    for q in range(4): fb(f'v_mov_b32_e32 {vM[q]}, 0xff800000')
    fb('s_mov_b32 s17, 0\nL_maxloop:')
    kloads(0)
    for i in range(64): fb(qk_mfma(0, i // 16, (i // 4) % 4, i % 4))
    fb('s_nop 7')
    for kb in range(4):
        for qb in range(4):
            for r in (0, 2):
                fb(f'v_max3_f32 {vM[qb]}, {vM[qb]}, {vSr(0, kb, qb, r)}, {vSr(0, kb, qb, r+1)}')
    fb(f's_add_u32 s17, s17, 16384\ns_cmp_lt_u32 s17, {512 << 10}\ns_cbranch_scc1 L_maxloop')
    for x in lane_reduce('v_max_f32_e32', 16): fb(x)
    for q in range(4):
        for r in range(4): fb(f'v_sub_f32_e32 v{C0 + 4*q + r}, 0, {vM[q]}')
    for x in acc_init(): fb(x)
    fb('s_mov_b32 s17, 0\nL_p2loop:')
    kloads(0)
    for i in range(64): fb(qk_mfma(0, i // 16, (i // 4) % 4, i % 4, True))
    kloads(V_OFF)
    for kb in range(4):
        for qb in range(4):
            el = [sm_elem(0, kb, qb, r) for r in range(4)]
            for r in range(4): fb(el[r][0][2])
            for r in range(4):
                for _, _, tx in el[r][1:]: fb(tx)
    fb('s_nop 1')
    for i in range(64): fb(pv_mfma(i // 8, (i // 2) % 4, i % 2, 0))
    for qb in range(4):
        fb(l_mfma(0, qb))
    fb(f's_add_u32 s17, s17, 16384\ns_cmp_lt_u32 s17, {512 << 10}\ns_cbranch_scc1 L_p2loop')
    fb(EPI_ADDR)
    for q in range(4):
        for x in factor_ops(q)[0]: fb(x)
    fb('s_waitcnt lgkmcnt(0)')
    for q in range(4): fb(factor_ops(q)[1])
    fb('s_waitcnt lgkmcnt(0)')
    for qb in range(4):
        for r in (0, 2):
            for x in out_pair(qb, r): fb(x)
    fb('s_branch L_fin')
    i1, i2 = fb.l.index('L_maxloop:'), fb.l.index('L_p2loop:')
    fb.l = fix_hazards([], fb.l, 'fb')
    i2 = fb.l.index('L_p2loop:')
    errs += check_hazards(fb.l, 'fb') + check_waits(fb.l, 'fb')
    p2 = fb.l[i2:[k for k, x in enumerate(fb.l) if 'L_p2loop' in x][-1] + 1]
    errs += check_hazards(p2 + p2, 'fb2')
    o.l += fb.l
    return o.l, errs

HEADER = open('cdna_kernels/' + NAME + '.s.ref').read().split('; @launch')[0]

def main():
    mn, errs = gen_main()
    for e in errs:
        print(e, file=sys.stderr)
    if errs and not OPT.get('nofb'):
        sys.exit(1)
    nm = NAME + '_kernel'
    txt = HEADER + f'; @launch grid=(256,1,1) block=(256,1,1) lds={LDS_TOTAL}\n'
    txt += '.amdgcn_target "amdgcn-amd-amdhsa--gfx950"\n.text\n'
    txt += f'.globl {nm}\n.p2align 8\n.type {nm},@function\n{nm}:\n' + '\n'.join(mn) + '\n'
    txt += f'''.section .rodata,"a"
.p2align 6
.amdhsa_kernel {nm}
  .amdhsa_next_free_vgpr 472
  .amdhsa_next_free_sgpr 102
  .amdhsa_accum_offset 256
  .amdhsa_group_segment_fixed_size 0
  .amdhsa_kernarg_size 80
  .amdhsa_user_sgpr_count 2
  .amdhsa_user_sgpr_kernarg_segment_ptr 1
  .amdhsa_system_sgpr_workgroup_id_x 1
  .amdhsa_float_denorm_mode_32 3
.end_amdhsa_kernel
'''
    open(sys.argv[1], 'w').write(txt)

main()
```

```python
import sys, struct, math
from asmlib import *

NAME = 'standalone__kv_cache_quant_int4_int2_kv_with_per_channel_or_per_token_scales__prompt'
OPT = dict(rot=3, nwt=0, wpol='sc0_sc1', tp=5, cap=2, lpos=15, early=4, skew=1, nra=0, nrb=0, go=1, bsplit=8, zpos=1, bsleep=0, pull=6, wb=1, nb1=11, barfirst=1, nql=0, nqb=0, nqa=0, touch=1, upg=12, pol='nt', stamp=0, d=6, st=7, dma0=6, dmastep=10, spin=4000, opol='nt', rp=0, pairbar=0)
for a in sys.argv[2:]:
    k, v = a.split('=', 1)
    OPT[k] = eval(v)

def f32bits(x):
    return struct.unpack('<I', struct.pack('<f', x))[0]

CSCALE = f32bits(128 ** -0.5 * math.log2(math.e))
V_OFF = 4 << 20
FLAG_OFF = 9 << 20
MF = 'v_mfma_f32_16x16x32_bf16'
D, RP = OPT['d'], OPT['rp']
def flags(x): return (' ' + x.replace('_', ' ')) if x else ''
POL, OPOL, SC1 = flags(OPT['pol']), flags(OPT['opol']), ' sc1'

class Out:
    def __init__(self):
        self.l = []
    def __call__(self, s):
        for x in s.strip('\n').split('\n'):
            if x.strip():
                self.l.append(x.strip() if x.strip().endswith(':') or x.startswith('.') else '    ' + x.strip())

def rng(p, b, n): return f'{p}[{b}:{b+n-1}]'
O0 = 128
def vO(qb, db): return rng('v', O0 + (qb*8+db)*4, 4)
def vOr(qb, db, r): return O0 + (qb*8+db)*4 + r
def aQ(qb, ks): return rng('a', (qb*4+ks)*4, 4)
def aF(k): return rng('a', 64 + (k % 16)*4, 4)
def aX(j): return rng('a', 128 + j*4, 4)
BY, BE, C0, T0 = 16, (48, 80), 112, 128
def sbase(par, kb, qb): return (BY if kb & 1 else BE[par]) + (qb*2 + kb//2)*4
def vS(par, kb, qb): return rng('v', sbase(par, kb, qb), 4)
def vSr(par, kb, qb, r): return f'v{sbase(par, kb, qb) + r}'
def vP(par, t, qb): return rng('v', BE[par] + (qb*2+t)*4, 4)
def vPr(par, t, qb, i): return f'v{BE[par] + (qb*2+t)*4 + i}'
def vC(qb): return rng('v', C0 + qb*4, 4)
vM = ['v8', 'v9', 'v10', 'v11']
IDX = 15
L0, ONES = 192, 208
def aL(qb): return rng('a', L0 + 4*qb, 4)
vRd, vD1, vD2 = 'v4', 'v5', 'v6'
LDS_RING = 131072
LDS_SCR = LDS_RING
LDS_HS = LDS_RING + 4096
LDS_QX = LDS_HS + 256
LDS_TOTAL = LDS_QX + 16384

def frag_off(k):
    if k < 16:
        return k * 1024
    db, t = (k - 16) // 2, (k - 16) % 2
    return 16384 + t * 8192 + db * 1024

def sm_elem(buf, kb, qb, r):
    s = vSr(buf, kb, qb, r)
    ops = [(0, 0, f'v_exp_f32_e32 {s}, {s}')]
    if r & 1:
        d, lo = vPr(buf, kb//2, qb, (kb%2)*2 + r//2), vSr(buf, kb, qb, r-1)
        ops.append((3, 2, f'v_perm_b32 {d}, {s}, {lo}, s92' if OPT.get('trunc') else f'v_cvt_pk_bf16_f32 {d}, {lo}, {s}'))
    return ops

def l_mfma(buf, qb):
    return f'v_smfmac_f32_16x16x64_bf16 {aL(qb)}, {rng("a", ONES, 4)}, {rng("v", BE[buf] + qb*8, 8)}, v{IDX}'

def sel_init():
    return (['v_cmp_gt_u32_e32 vcc, 2, v7', 'v_mov_b32_e32 v8, 0x3f803f80', f'v_mov_b32_e32 v{IDX}, 0x44444444',
             'v_cndmask_b32_e32 v8, v1, v8, vcc', 'v_cmp_eq_u32_e32 vcc, 1, v7', 'v_mov_b32_e32 v9, 0xeeeeeeee'] +
            [f'v_accvgpr_write_b32 a{ONES + k}, v8' for k in range(4)] + [f'v_cndmask_b32_e32 v{IDX}, v{IDX}, v9, vcc'])

def acc_init():
    return [f'v_accvgpr_write_b32 a{L0 + k}, 0' for k in range(16)] + [f'v_mov_b32_e32 v{O0 + k}, 0' for k in range(128)]

def sm_ops(buf, order=None):
    order = order or [(e // 4, e % 4) for e in range(16)]
    return [(2*e + dg, pr, tx) for e in range(64) for dg, pr, tx in sm_elem(buf, order[e // 4][0], order[e // 4][1], e % 4)]

def qk_mfma(par, kb, qb, ks, cinit=False):
    c = (vC(qb) if cinit else '0') if ks == 0 else vS(par, kb, qb)
    return f'{MF} {vS(par, kb, qb)}, {aF(kb*4+ks)}, {aQ(qb, ks)}, {c}'

def pv_mfma(db, qb, t, buf, fr=None):
    return f'{MF} {vO(qb, db)}, {vP(buf, t, qb)}, {fr or aF(16 + db*2 + t)}, {vO(qb, db)}'

def dma(grp, i, srd='s[4:7]', so='s17'):
    v = vD1 if grp == 0 else vD2
    return f'buffer_load_dwordx4 {v}, {srd}, {so} offen offset:{1024*i}{SC1} lds'

class Block:
    def __init__(self, G, carry):
        self.G = G
        self.mf = [None] * G
        self.mem = [[] for _ in range(G)]
        self.val = [[] for _ in range(G + 140)]
        for g, lst in carry.items():
            self.val[g] += lst
        self.reads = [(4*f + RP - 4*D, (0, f)) for f in range(D)]
        self.waits = []
    def read(self, g, ident, f, off):
        self.mem[g].append(f'ds_read_b128 {aF(f)}, {vRd} offset:{off}')
        self.reads.append((g, ident))
    def finish(self):
        self.reads.sort(key=lambda r: r[0])
        ids = [r[1] for r in self.reads]
        for gw, need in self.waits:
            if gw == 0: continue
            p = max(ids.index(x) for x in need)
            assert self.reads[p][0] < gw - 1, (gw, need)
            w = len([1 for r in self.reads[p+1:] if r[0] < gw - 1])
            self.mem[gw - 1].insert(0, f's_waitcnt lgkmcnt({w})')
        return {g - self.G: self.val[g] for g in range(self.G, len(self.val)) if self.val[g]}
    def stage(self, k, par, nxt=True):
        g0 = 128 * k
        for i in range(64):
            self.mf[g0 + i] = qk_mfma(par ^ 1, i // 16, (i // 4) % 4, i % 4)
            self.mf[g0 + 64 + i] = pv_mfma(i // 8, (i // 2) % 4, i % 2, par)
        for rg, pr, tx in sm_ops(par ^ 1):
            self.val[g0 + OPT['st'] + rg].append((pr, tx))
        for qb in range(4):
            self.val[g0 + 64 + 16*qb + OPT['lpos']].append((30, l_mfma(par, qb)))
        for f in range(D, 32 + (D if nxt else 0)):
            g = g0 + 4*f + RP - 4*D
            if f in (30, 31): g -= OPT['pull']
            if f < 32: self.read(g, (k, f), f, par*32768 + frag_off(f))
            else: self.read(g, (k + 1, f - 32), f, (par ^ 1)*32768 + frag_off(f - 32))
        for m in range(8):
            self.waits.append((g0 + 16*m, [(k, 4*m + j) for j in range(4)]))
    def gap_lines(self, g):
        v = [t for _, t in sorted(self.val[g], key=lambda z: z[0])]
        m = self.mem[g]
        if OPT.get('no_exp'): v = [t for t in v if not t.startswith('v_exp')]
        if OPT.get('no_add'): v = [t for t in v if not t.startswith('v_add')]
        if OPT.get('no_cvt'): v = [t for t in v if not t.startswith('v_cvt')]
        if OPT.get('no_lds'): m = [t for t in m if not t.startswith('ds_read')]
        if OPT.get('no_dma'): m = [t for t in m if not t.startswith('buffer_load')]
        if any(t.endswith(':') for t in m):
            return m, v
        sc = [t for t in m if t.startswith('s_')]
        return sc, [t for t in m if not t.startswith('s_')] + v
    def emit(self, o, upto=None):
        for g in range(upto if upto is not None else self.G):
            o(self.mf[g])
            sc, ve = self.gap_lines(g)
            for x in sc + ve: o(x)

def stampdq(o, k):
    if OPT.get('stampdq'):
        o(f's_memtime s[{64+2*k}:{65+2*k}]')

def stampp(o, k):
    if OPT.get('stampp'):
        o(f's_memtime s[{64+2*k}:{65+2*k}]')

def stamp(o, k):
    if OPT.get('stampp') and k in (4, 5, 7):
        return
    if OPT.get('stampdq') and k in (3, 4, 5, 7):
        return
    if OPT['stamp']:
        o(f's_memtime s[{64+2*k}:{65+2*k}]')

NINIT = 0
def init_work(o):
    global NINIT
    NINIT += 1
    o(f's_cmp_lg_u32 s52, 0\ns_cbranch_scc1 L_noinit{NINIT}')
    for r in range(128):
        o(f'v_accvgpr_write_b32 a{r}, 0')
    o(f'L_noinit{NINIT}:')

def qdma(o, idx):
    idx = list(idx)
    for i in idx:
        if i % 4 == 0 or i == idx[0]:
            o(f's_add_u32 m0, s100, {(i // 4)*4096}')
            o('s_nop 0')
        so = 's22' if i < 4 else f's{60 + i // 4}'
        o(f'buffer_load_dwordx4 v{94 + i % 4}, s[8:11], {so} offen offset:{1024*(i % 4)}{POL} lds')
    return len(idx)

def qreads(o, qbs):
    for qb in qbs:
        for ks in range(4):
            o(f'ds_read_b128 {aQ(qb, ks)}, v{98 + ks} offset:{4096*qb}')

POLL = 'buffer_load_dwordx2 v[82:83], v86, s[96:99], 0 offen sc1'

class Seq(Out):
    def __init__(self):
        super().__init__()
        self.vq = []
        self.m0 = None
    def vm(self, text, tag):
        self(text); self.vq.append(tag)
    def after(self, *tags):
        return len(self.vq) - 1 - max(i for i, t in enumerate(self.vq) if t in tags)
    def vwait(self, *tags):
        self(f's_waitcnt vmcnt({self.after(*tags)})')
    def q(self, i):
        if self.m0 != ('q', i // 4):
            self(f's_add_u32 m0, s100, {(i // 4)*4096}\ns_nop 0'); self.m0 = ('q', i // 4)
        so = 's22' if i < 4 else f's{60 + i // 4}'
        self.vm(f'buffer_load_dwordx4 v{94 + i % 4}, s[8:11], {so} offen offset:{1024*(i % 4)}{POL} lds', f'q{i}')

def gen_dequant(o, kind, helper, nroll=0, between=None):
    T = T0
    NB1 = 16 if helper else OPT['nb1']
    todo = [('d', x) for x in range(NB1, 16)] + [('q', i) for i in range(nroll)]
    def dload(x):
        gs, j = x // 8, x % 8
        so = 's53' if j < 4 else 's54'
        o.vm(f'buffer_load_dwordx4 {rng("v", T + gs*32 + j*4, 4)}, v12, s[32:35], {so} offen offset:{512*(4*gs + j%4)}{POL}', f'd{x}')
    def step(x):
        o.vwait(f'd{x}')
        if x == 0 and not helper: stampdq(o, 7)
        if x == 8 and not helper:
            o.vm('buffer_load_dwordx2 v[80:81], v1, s[44:47], s23 offen sc1', 'tag')
        if todo:
            k, i = todo.pop(0)
            dload(i) if k == 'd' else o.q(i)
    if helper:
        o('''
    s_lshl_b32 s53, s51, 15                   ; tile * 64 tokens * 512 B
    s_add_u32 s53, s53, s48                   ; + head*1MB + (wave&1)*16KB
    s_add_u32 s57, s51, s16
    s_and_b32 s57, s57, ''' + str(1 if OPT['rot'] else 0) + '''
    s_lshl_b32 s56, s57, 13
    s_add_u32 s53, s53, s56''')
    else:
        o.vq += ['d0', 'd1']
    o('''
    s_xor_b32 s54, s53, 8192
    s_lshl_b32 s55, s51, 14''')
    if kind == 'k':
        o('s_lshr_b32 s56, s51, 1\ns_lshl_b32 s56, s56, 8\ns_add_u32 s56, s56, s49')
        o.vm('buffer_load_dwordx2 v[192:193], v89, s[36:39], s56 offen', 'sc')
        o.vm('buffer_load_dwordx2 v[194:195], v89, s[40:43], s56 offen', 'sc')
    else:
        o('s_lshl_b32 s56, s51, 7\ns_add_u32 s56, s56, s49\ns_lshl_b32 s57, s57, 5\ns_add_u32 s56, s56, s57\ns_xor_b32 s57, s56, 32')
        o.vm('buffer_load_dwordx4 v[192:195], v89, s[36:39], s56 offen', 'sc')
        o.vm('buffer_load_dwordx4 v[196:199], v89, s[36:39], s57 offen', 'sc')
        o.vm('buffer_load_dwordx4 v[200:203], v89, s[40:43], s56 offen', 'sc')
        o.vm('buffer_load_dwordx4 v[204:207], v89, s[40:43], s57 offen', 'sc')
    for x in range(0 if helper else 2, NB1): dload(x)
    if between: between()
    o.vwait('sc')
    if kind == 'k':
        o('''
    v_lshlrev_b32_e32 v196, 16, v192
    v_and_b32_e32 v197, s60, v192
    v_lshlrev_b32_e32 v198, 16, v193
    v_and_b32_e32 v199, s60, v193
    v_lshlrev_b32_e32 v200, 16, v194
    v_and_b32_e32 v201, s60, v194
    v_lshlrev_b32_e32 v202, 16, v195
    v_and_b32_e32 v203, s60, v195
    v_pk_mul_f32 v[196:197], v[196:197], s[58:59]
    v_pk_mul_f32 v[198:199], v[198:199], s[58:59]
    v_pk_mul_f32 v[200:201], v[200:201], v[196:197] neg_lo:[1,0] neg_hi:[1,0]
    v_pk_mul_f32 v[202:203], v[202:203], v[198:199] neg_lo:[1,0] neg_hi:[1,0]''')
        for gs in range(2):
            for j in range(8):
                step(gs*8 + j)
                b = T + gs*32 + j*4
                for c in range(4): o(f'v_cvt_f32_i32_e32 v{b+c}, v{b+c}')
                o(f'v_pk_fma_f32 {rng("v", b, 2)}, {rng("v", b, 2)}, v[196:197], v[200:201]')
                o(f'v_pk_fma_f32 {rng("v", b+2, 2)}, {rng("v", b+2, 2)}, v[198:199], v[202:203]')
                o(f'v_cvt_pk_bf16_f32 v{b}, v{b}, v{b+1}')
                o(f'v_cvt_pk_bf16_f32 v{b+1}, v{b+2}, v{b+3}')
                o(f'ds_write_b64 v87, {rng("v", b, 2)} offset:{(j // 4)*4096 + (4*gs + j % 4)*16}')
    else:
        SCU, ZRU = 208, 224
        for p in range(8):
            o(f'v_lshlrev_b32_e32 v{SCU+2*p}, 16, v{192+p}')
            o(f'v_and_b32_e32 v{SCU+2*p+1}, s60, v{192+p}')
            o(f'v_lshlrev_b32_e32 v{ZRU+2*p}, 16, v{200+p}')
            o(f'v_and_b32_e32 v{ZRU+2*p+1}, s60, v{200+p}')
            o(f'v_pk_mul_f32 {rng("v", ZRU+2*p, 2)}, {rng("v", ZRU+2*p, 2)}, {rng("v", SCU+2*p, 2)} neg_lo:[1,0] neg_hi:[1,0]')
        for gs in range(2):
            ob = 192 if gs == 0 else T
            for j in range(8):
                step(gs*8 + j)
                b = T + gs*32 + j*4
                ix = (j // 4)*8 + 4*gs + j % 4
                zr, sc, sel = ZRU + (ix & ~1), SCU + (ix & ~1), ix & 1
                bc = f'op_sel:[0,{sel},{sel}] op_sel_hi:[1,{sel},{sel}]'
                for c in range(4): o(f'v_cvt_f32_i32_e32 v{b+c}, v{b+c}')
                for p in range(2):
                    o(f'v_pk_fma_f32 {rng("v", b+2*p, 2)}, {rng("v", b+2*p, 2)}, {rng("v", sc, 2)}, {rng("v", zr, 2)} {bc}')
                if j & 1:
                    for c in range(4):
                        o(f'v_cvt_pk_bf16_f32 v{ob + 4*c + j//2}, v{b - 4 + c}, v{b + c}')
            for c in range(4):
                o(f'ds_write_b128 v87, {rng("v", ob + 4*c, 4)} offset:{1024*c + 256*gs}')
    o('s_waitcnt lgkmcnt(0)')
    for f in range(8):
        o(f'ds_read_b128 {rng("v", T + 32 + 4*f, 4)}, v14 offset:{1024*f}')
    for k, i in todo: o.q(i)
    for f in range(8):
        o(f's_waitcnt lgkmcnt({7 - f})')
        vv = vD1 if f < 4 else vD2
        o.vm(f'buffer_store_dwordx4 {rng("v", T + 32 + 4*f, 4)}, {vv}, s[4:7], s55 offen offset:{1024*(f%4)}', 'st')

def lane_reduce(op, tmp):
    r = []
    for sw in ('v_permlane16_swap_b32', 'v_permlane32_swap_b32'):
        r += [f'v_mov_b32_e32 v{tmp+q}, {vM[q]}' for q in range(4)]
        r += [f'{sw} {vM[q]}, v{tmp+q}' for q in range(4)]
        r += [f'{op} {vM[q]}, {vM[q]}, v{tmp+q}' for q in range(4)]
    return r

FA = 112
def out_store(qb, r):
    b = sbase(0, 1 + 2*(r & 1), qb)
    so = 's22' if qb == 0 else f's{60+qb}'
    return ([f'v_cvt_pk_bf16_f32 v{b+p}, v{vOr(qb, 2*p, r)}, v{vOr(qb, 2*p+1, r)}' for p in range(4)] +
            [f'buffer_store_dwordx4 {rng("v", b, 4)}, v14, s[12:15], {so} offen offset:{256*r}{flags(OPT["wpol"]) if qb*4 + r < OPT["nwt"] else OPOL}'])
def out_group(qb, r):
    return [f'v_mul_f32_e32 v{vOr(qb, db, r)}, v{vOr(qb, db, r)}, v{FA + 4*qb + r}' for db in range(8)] + out_store(qb, r)
def out_pair(qb, r):
    return ([f'v_pk_mul_f32 {rng("v", vOr(qb, db, r), 2)}, {rng("v", vOr(qb, db, r), 2)}, {rng("v", FA + 4*qb + r, 2)}' for db in range(8)]
            + out_store(qb, r) + out_store(qb, r + 1))

def factor_ops(q):
    t = FA + 4*q
    return ([f'v_accvgpr_read_b32 {vM[q]}, a{L0 + 4*q}', f'v_accvgpr_read_b32 v{t}, a{L0 + 4*q + 1}', f'v_add_f32_e32 {vM[q]}, {vM[q]}, v{t}',
             f'v_rcp_f32_e32 {vM[q]}, {vM[q]}', f'ds_write_b32 v12, {vM[q]} offset:{64*q}'],
            f'ds_read_b128 {rng("v", t, 4)}, v13 offset:{64*q}')

EPI_ADDR = f'''
    s_lshl_b32 s53, s16, 10
    s_add_u32 s53, s53, {LDS_SCR}
    v_lshl_add_u32 v13, v3, 4, s53
    v_lshl_add_u32 v12, v7, 2, s53
    v_lshl_add_u32 v12, v3, 8, v12
    v_lshlrev_b32_e32 v14, 10, v3
    v_lshl_add_u32 v14, v7, 4, v14'''

SETUP_K = '''
    v_lshlrev_b32_e32 v89, 3, v88           ; scales: m*8'''
SETUP_V = '''
    v_lshlrev_b32_e32 v89, 4, v13            ; scales: h*16
    s_lshl_b32 s56, s23, 6
    s_add_u32 s49, s49, s56'''
SETUP_REST = f'''
    v_lshrrev_b32_e32 v3, 4, v2               ; g
    v_and_b32_e32 v7, 15, v2                  ; n
    v_lshlrev_b32_e32 {vD1}, 4, v2
    v_add_u32_e32 {vD2}, 0x1000, {vD1}
    v_mov_b32_e32 {vRd}, {vD1}
    s_lshl_b32 s22, s20, 5
    s_add_u32 s22, s22, s21
    s_lshl_b32 s22, s22, 16
    s_lshl_b32 s23, s16, 14
    s_add_u32 s22, s22, s23
    s_add_u32 s23, s21, s16
    s_and_b32 s23, s23, {OPT['rot']}
    s_lshl_b32 s23, s23, 12
    s_xor_b32 s22, s22, s23
    s_xor_b32 s61, s22, 4096
    s_xor_b32 s62, s22, 8192
    s_xor_b32 s63, s22, 12288
    v_lshlrev_b32_e32 v86, 7, v2
    v_xor_b32_e32 v94, v7, v3
    v_lshlrev_b32_e32 v94, 4, v94
    v_lshl_add_u32 v98, v7, 8, v94
    v_lshl_add_u32 v94, v3, 8, v94          ; Q staging source: (lane/16)*256 + ((lane%16)^(lane/16))*16
    v_xor_b32_e32 v95, 64, v94
    v_xor_b32_e32 v96, 0x80, v94
    v_xor_b32_e32 v97, 0xc0, v94
    s_lshl_b32 s100, s16, 14
    s_add_u32 s100, s100, {2*32768}
    s_cmp_eq_u32 s16, 2
    s_cselect_b32 s100, {3*32768 + 16384}, s100
    s_cmp_eq_u32 s16, 3
    s_cselect_b32 s100, {LDS_QX}, s100
    v_add_u32_e32 v98, s100, v98
    v_xor_b32_e32 v99, 64, v98
    v_xor_b32_e32 v100, 0x80, v98
    v_xor_b32_e32 v101, 0xc0, v98
    s_and_b32 s23, s16, 1
    s_lshl_b32 s28, s20, 19                   ; head*512KB
    s_lshl_b32 s4, s23, 13
    s_add_u32 s4, s4, s28
    s_mov_b32 s60, 0xffff0000
    s_mov_b32 s93, 0
    s_getreg_b32 s3, hwreg(HW_REG_XCC_ID, 0, 4)
    v_cmp_gt_u32_e32 vcc, 32, v2
    v_mov_b32_e32 v1, 0
    v_mov_b32_e32 v84, s3
    s_mov_b32 s58, 0x{CSCALE:08x}
    s_mov_b32 s59, 0x{CSCALE:08x}
    v_cndmask_b32_e32 v84, 16, v84, vcc
    s_lshl_b32 s19, s16, 13
    s_lshl_b32 s56, s16, 2
    s_add_u32 s56, s56, {LDS_HS}
    v_mov_b32_e32 v102, s56
    ds_write2_b32 v102, v1, v1 offset1:4
    s_mov_b32 s6, {512 << 10}
    s_mov_b32 s7, 0x20000
    s_mov_b32 s30, {V_OFF + (512 << 10)}
    s_mov_b32 s31, 0x20000
    s_mov_b32 s46, 256
    s_mov_b32 s47, 0x20000
    s_mov_b32 s98, 8192
    s_mov_b32 s99, 0x20000
    s_lshl_b32 s96, s20, 2
    s_add_u32 s96, s96, s16
    s_lshl_b32 s96, s96, 13
    s_add_u32 s96, s96, {FLAG_OFF}
    s_lshl_b32 s101, s21, 7
    s_add_u32 s17, s21, 1
    s_and_b32 s17, s17, 31
    s_lshl_b32 s17, s17, 14
    s_mov_b32 s57, {OPT['spin']}
    s_or_b32 s50, s21, s16
    s_cselect_b32 s50, 99, 12
    s_mov_b32 s18, 15
    s_mov_b32 s10, {16 << 20}
    s_mov_b32 s11, 0x20000
    s_mov_b32 s12, s14
    s_mov_b32 s13, s15
    s_mov_b32 s14, {16 << 20}
    s_mov_b32 s15, 0x20000
    s_mov_b32 s44, s24
    s_mov_b32 s45, s25
    s_lshl_b32 s23, s20, 5
    s_mov_b32 s94, 0'''
SETUP_K2 = f'''
    v_lshrrev_b32_e32 v87, 1, v88
    v_lshlrev_b32_e32 v87, 8, v87
    v_and_b32_e32 v88, 1, v88
    v_lshl_add_u32 v87, v88, 3, v87
    v_lshl_add_u32 v103, v13, 7, v87         ; LDS write: (m/2)*256 + (m%2)*8 + h*128
    s_add_u32 s92, s19, {3*32768}
    v_add_u32_e32 v87, s92, v103
    v_add_u32_e32 v14, s92, {vD1}'''
SETUP_V2 = f'''
    v_and_b32_e32 v87, 1, v88
    v_lshlrev_b32_e32 v87, 12, v87
    v_lshl_add_u32 v87, v13, 9, v87
    v_lshrrev_b32_e32 v88, 1, v88
    v_lshl_add_u32 v103, v88, 4, v87        ; LDS write: (m%2)*4096 + h*512 + (m/2)*16
    v_add_u32_e32 v87, s19, v103
    v_add_u32_e32 v14, s19, {vD1}
    s_add_u32 s4, s4, {V_OFF}'''
SETUP_SRD = '''
    s_add_u32 s4, s26, s4
    s_addc_u32 s5, s27, 0
    s_add_u32 s28, s26, s28
    s_addc_u32 s29, s27, 0
    s_add_u32 s96, s26, s96
    s_addc_u32 s97, s27, 0'''
TAG_STORE = '''
    s_or_b32 s50, s21, s16
    s_cbranch_scc1 L_notag
    s_mov_b32 s44, s24
    s_mov_b32 s45, s25
    s_mov_b32 s46, 256
    s_mov_b32 s47, 0x20000
    s_lshl_b32 s56, s20, 5
    s_lshl_b64 s[88:89], s[94:95], 8
    s_or_b32 s88, s88, 0x80
    v_mov_b32_e32 v1, 0
    v_mov_b32_e32 v80, s88
    v_mov_b32_e32 v81, s89
    s_mov_b64 exec, 1
    buffer_store_dwordx2 v[80:81], v1, s[44:47], s56 offen sc1
    s_mov_b64 exec, -1
L_notag:'''

def gen_core(o, errs, head):
    st = OPT['st']
    SKEW = OPT['skew']
    carry = {}
    for rg, pr, tx in sm_ops(0):
        if st + rg >= 128: carry.setdefault(st + rg - 128, []).append((pr, tx))
    late = set(tx for l in carry.values() for _, tx in l)
    def part_dma(c, slot):
        c.m0 = None
        for grp in range(2):
            c(f's_add_u32 m0, s19, {slot*32768 + grp*4096}\ns_nop 0')
            for i in range(4): c.vm(dma(grp, i), f'p{slot}')
        c('s_add_u32 s17, s17, 16384\ns_and_b32 s17, s17, 0x7ffff')
    def qk0(c, qb):
        c('s_waitcnt lgkmcnt(0)')
        ex = [(kb, r) for kb in range(4) for r in range(4)]
        pend = []
        for i in range(16):
            c(qk_mfma(0, i // 4, qb, i % 4))
            if pend:
                for x in pend: c(x)
                pend = []
            elif ex and 4*ex[0][0] + 3 + 4 <= i:
                kb, r = ex.pop(0)
                ops = [tx for _, _, tx in sm_elem(0, kb, qb, r)]
                c(ops[0]); pend = ops[1:]
        for kb, r in ex:
            ops = [tx for _, _, tx in sm_elem(0, kb, qb, r) if tx not in late]
            if ops and ops[0].startswith('v_exp'):
                c(ops[0]); ops = ops[1:]
            for x in pend: c(x)
            pend = ops
        for x in pend: c(x)
    def path(kind):
        c = Seq()
        tg = 1 if kind == 'k' else 3
        nroll = OPT['nra'] if kind == 'k' else OPT['nrb']
        c(SETUP_K if kind == 'k' else SETUP_V)
        def between():
            c(SETUP_REST)
            c(SETUP_K2 if kind == 'k' else SETUP_V2)
            c(SETUP_SRD)
            if OPT.get('touch'):
                c.vm('buffer_load_dword v90, v1, s[4:7], s55 offen sc1', 'x')
                c.vm('buffer_load_dword v91, v1, s[96:99], 0 offen sc1', 'x')
                c.vm('buffer_load_dword v92, v1, s[12:15], s22 offen sc1', 'x')
                c.vm('buffer_load_dword v93, v1, s[8:11], s22 offen', 'x')
            stampdq(c, 4)
            for x in sel_init(): c(x)
            stampdq(c, 5)
        gen_dequant(c, kind, False, nroll, between)
        stamp(c, 1)
        c.vwait('st')
        c(f'''
L_tag{tg}:
        s_mov_b32 s95, {tg}
        v_cmp_eq_u64_e32 vcc, 0, v[80:81]
        s_cbranch_vccnz L_tagslow
        v_add_u32_e32 v84, v84, v80
        v_mov_b32_e32 v85, v81
        s_mov_b64 exec, 1
        buffer_store_dwordx2 v[84:85], v1, s[96:99], s101 offen
        s_mov_b64 exec, -1
L_nopub{tg}:
        s_barrier''')
        stamp(c, 2)
        def k0_reads():
            c(f'v_add_u32_e32 v12, {3*32768}, {vD1}')
            for f in range(16):
                if f == 12: c(f's_waitcnt lgkmcnt({0 if OPT["stamp"] else 8})')
                c(f'ds_read_b128 {aF(f)}, v12 offset:{frag_off(f)}')
            for x in acc_init(): c(x)
            if OPT.get('trunc'): c('s_mov_b32 s92, 0x07060302')
        def check():
            c(f'''
        s_mov_b32 s57, {OPT['spin']}
        s_cmp_lg_u32 s93, 0
        s_cbranch_scc1 L_help
L_chk{tg}:
        v_cmp_eq_u64_e32 vcc, v[84:85], v[82:83]
        s_nop 0
        s_cmp_eq_u32 vcc_lo, -1
        s_cbranch_scc0 L_pollslow
L_ok{tg}:''')
        if kind == 'k':
            for i in range(8): c.q(i)
            c.vm(POLL, 'poll')
            for i in range(8, 16): c.q(i)
            k0_reads()
            for qb in range(4):
                c.vwait(*([f'q{4*qb + 3}'] + (['poll'] if qb == 1 else [])))
                if qb == 0:
                    stamp(c, 3)
                    c(f's_waitcnt lgkmcnt({0 if OPT["stamp"] else 8})')
                qreads(c, [qb])
                if qb == 0:
                    c('v_mov_b32_e32 v12, 1\nds_write_b32 v102, v12 offset:16')
                if qb == 1:
                    check()
                    stamp(c, 4)
                    part_dma(c, 0)
                qk0(c, qb)
        else:
            k0_reads()
            c(f'''
    v_mov_b32_e32 v102, {LDS_HS + 16}
L_go:
    ds_read_b64 v[12:13], v102
    s_waitcnt lgkmcnt(0)
    v_and_b32_e32 v12, v12, v13
    v_cmp_ne_u32_e32 vcc, 1, v12
    s_cbranch_vccnz L_go''')
            stamp(c, 4)
            for i in range(8): c.q(i)
            for qb in range(4):
                c.vwait(*([f'q{4*qb + 3}'] + (['poll'] if qb == 3 else [])))
                if qb == 0:
                    stamp(c, 3)
                    if OPT['stamp']: c('s_waitcnt lgkmcnt(0)')
                qreads(c, [qb])
                if qb == 0:
                    for i in range(8, 16): c.q(i)
                    c.vm(POLL, 'poll')
                if qb == 3:
                    check()
                    part_dma(c, 1)
                qk0(c, qb)
        stamp(c, 7)
        if kind == 'k':
            c.vwait('p0')
            if SKEW:
                c('''
    v_mov_b32_e32 v12, 1
    ds_write_b32 v102, v12
    v_xor_b32_e32 v102, 4, v102
L_hs:
    ds_read_b32 v12, v102
    s_waitcnt lgkmcnt(0)
    v_cmp_ne_u32_e32 vcc, 1, v12
    s_cbranch_vccnz L_hs''')
        elif SKEW:
            c.vwait('p1')
        if kind == 'v' or not SKEW: c('s_barrier')
        for f in range(D):
            c(f'ds_read_b128 {aF(f)}, {vRd} offset:{frag_off(f)}')
        if kind == 'k': part_dma(c, 1)
        if kind == 'v' and SKEW:
            part_dma(c, 2)
            c('s_mov_b32 s32, s19\ns_add_u32 s19, s19, 0x18000')
        else:
            c('s_add_u32 s32, s19, 0x18000\ns_add_u32 s19, s19, 0x10000')
        if OPT.get('retry'): c(f's_waitcnt lgkmcnt(0)\ns_sub_u32 s70, {OPT["spin"]}, s57\ns_add_u32 s70, s70, s64\ns_addc_u32 s71, s65, 0\ns_add_u32 s72, s64, s94\ns_addc_u32 s73, s65, 0')
        c(EPI_ADDR)
        stamp(c, 5)
        c(f's_waitcnt lgkmcnt({0 if OPT["stamp"] else D - 4})')
        c('s_branch L_loop_in')
        c.l = fix_hazards(head, c.l, 'start' + kind)
        return c
    c, cb = path('k'), path('v')
    pre_lines = head
    B = Block(256, carry)
    B.stage(0, 0); B.stage(1, 1)
    B.waits.append((256, [(2, j) for j in range(4)]))
    bars = [(256, 0)] if OPT['pairbar'] else [(128, 8), (256, 8)]
    for ge, vm in bars:
        gb = ge + RP - 4*D - 1
        B.mem[gb] += [f's_waitcnt vmcnt({vm})' + (' lgkmcnt(0)' if OPT['pull'] else '')] + ([] if OPT.get('nobar') else ['s_barrier'])
    B.val[256 + RP - 4*D - 1].append((5, f'v_xor_b32_e32 {vRd}, 0x10000, {vRd}'))
    for j in range(16):
        g = OPT['dma0'] + OPT['dmastep'] * j if OPT['pairbar'] else 128*(j // 8) + OPT['dma0'] + 12*(j % 8)
        if j % 4 == 0:
            B.mem[g - 1].append(f's_add_u32 m0, {"s19" if j < 8 else "s32"}, {((j // 4) % 2)*4096}')
        B.mem[g].append(dma((j // 4) % 2, j % 4))
        if j % 8 == 7:
            B.mem[g + 1].append('s_add_u32 s17, s17, 16384')
            B.mem[g + 2].append('s_and_b32 s17, s17, 0x7ffff')
        if j == 15:
            B.mem[g + 3].append('s_xor_b32 s19, s19, 0x10000')
            B.mem[g + 4].append('s_xor_b32 s32, s32, 0x10000')
    if OPT['stamp'] >= 2:
        B.mem[1].append('s_memtime s[84:85]')
        B.mem[2].append('s_memrealtime s[86:87]')
        B.mem[14].insert(0, 's_waitcnt lgkmcnt(0)')
        B.val[18].append((9, f'v_cmp_eq_u32_e32 vcc, s18, v2'))
        for k in range(4):
            B.val[20 + 2*k].append((9, f'v_mov_b32_e32 v124, s{84+k}'))
            B.val[21 + 2*k].append((9, f'v_cndmask_b32_e32 v{120+k}, v{120+k}, v124, vcc'))
    if OPT.get('wb'):
        g = min(x for x in range(OPT['dma0'] + 12*7 + 1, 128) if not B.mem[x] and not B.val[x])
        B.mem[g] += ['s_cmp_eq_u32 s18, s50', 's_cbranch_scc1 L_dowb', 'L_nowb:']
    B.mem[253].append('s_sub_u32 s18, s18, 1')
    B.mem[254].append('s_cmp_lg_u32 s18, 0')
    assert B.finish() == carry
    loop = Out()
    B.emit(loop, 255)
    loop(B.mf[255])
    sc, head = B.gap_lines(255)
    for x in sc: loop(x)
    loop('s_cbranch_scc1 L_loop')
    E = Block(192, carry)
    for i in range(64):
        E.mf[i] = qk_mfma(1, (i % 16) // 4, i // 16, i % 4)
    for i in range(128):
        qb, db, u = i // 32, (i % 32) // 4, i % 4
        E.mf[64 + i] = pv_mfma(db, qb, u % 2, u // 2, aX(2*db + u) if u < 2 else None)
    TP = OPT['tp']
    s0 = max(carry) + 1
    for k in range(16):
        for r in range(4):
            el = sm_elem(1, k % 4, k // 4, r)
            E.val[s0 + TP*k + r].append((0, el[0][2]))
            if r & 1: E.val[s0 + TP*k + 4 + (r // 2 if TP > 5 else 0)].append((2, el[1][2]))
    used = [sum(2 if t.startswith('v_exp') else 1 for _, t in E.val[g]) for g in range(192)]
    def rd(g, ident, reg, off):
        E.mem[g].append(f'ds_read_b128 {reg}, {vRd} offset:{off}'); E.reads.append((g, ident)); used[g] += 1
    for f in range(D, 16): rd(f - D, (0, f), aF(f), frag_off(f))
    free = [g for g in range(10, 60) if used[g] < 2]
    free = sorted(free + [g for g in range(10, 60) if g not in free][:max(0, 16 - len(free))])
    for j in range(16): rd(free[j], (0, 16 + j), aX(j), frag_off(16 + j))
    E.mem[47] += (['s_cmp_ge_u32 s16, 2', 's_cbranch_scc1 L_nobar', 's_waitcnt vmcnt(0)', 's_barrier', 'L_nobar:'] if SKEW else ['s_waitcnt vmcnt(0)', 's_barrier'])
    for j in range(16): rd(max(50 + j, 54 + 2*j), (1, 16 + j), aF(16 + j), 32768 + frag_off(16 + j))
    for m in range(1, 4): E.waits.append((4*m, [(0, 4*m + j) for j in range(4)]))
    E.waits.append((64, [(0, 31), (1, 19)]))
    for m in range(1, 4): E.waits.append((64 + 8*m, [(1, 16 + 4*m + 3)]))
    if OPT['stamp'] >= 2:
        E.mem[20].append('s_memtime s[84:85]')
        E.mem[21].append('s_memrealtime s[86:87]')
        E.mem[44].insert(0, 's_waitcnt lgkmcnt(0)')
        for k in range(4):
            E.val[45].append((9, f'v_writelane_b32 v{120+k}, s{84+k}, 0'))
            E.val[46].append((9, f'v_accvgpr_write_b32 a{212+k}, v{120+k}'))
    E.finish()
    E.mem[1].append(f's_mov_b32 s54, 0x{f32bits(2.0**-60):08x}')
    E.mem[2].append(f's_mov_b32 s55, 0x{f32bits(2.0**40):08x}')
    order = [100]
    def place(ops, g, cap=2):
        for k, (eg, x) in enumerate(ops):
            if x.startswith('s_'):
                g = max(g + 1, eg)
                if g >= 192: return g, ops[k:]
                E.mem[g].append(x)
                continue
            cost = 2 if x.startswith(('v_rcp', 'buffer_')) else 1
            g = max(g, eg)
            memop = not x.startswith('v_')
            if memop: g += 1
            while g < 192 and (used[g] + cost > cap or (memop and any(not t.startswith('s_') for t in E.mem[g]))): g += 1
            if g >= 192: return g, ops[k:]
            order[0] += 1
            if memop: E.mem[g].append(x)
            else: E.val[g].append((order[0], x))
            used[g] += cost
            if x.startswith('v_rcp'): g += 1
        return g, []
    CAP = OPT['cap']
    ready = []
    g = 88
    for qb in range(4):
        E.val[15 + 4*qb].append((30, l_mfma(0, qb)))
        gl = (s0 + TP*4*(qb + 1) + 1) | 3
        E.val[gl].append((30, l_mfma(1, qb)))
        ready.append(gl + 6)
    def chain(qs, g):
        fs = [factor_ops(q) for q in qs]
        ops = [(ready[q], f[0][k]) for k in range(5) for q, f in zip(qs, fs)]
        lo = hi = vM[qs[0]]
        if len(qs) > 1:
            lo, hi = 'v126', 'v127'
            ops += [(0, f'v_minimum3_f32 {lo}, {vM[qs[0]]}, {vM[qs[1]]}, {vM[qs[-1]]}'), (0, f'v_maximum3_f32 {hi}, {vM[qs[0]]}, {vM[qs[1]]}, {vM[qs[-1]]}')]
        ops += [(0, f'v_cmp_nle_f32_e64 s[56:57], s54, {lo}'), (0, f'v_cmp_nge_f32_e32 vcc, s55, {hi}'), (0, 's_waitcnt lgkmcnt(0)')]
        ops += [(0, f[1]) for f in fs]
        ops += [(0, 's_or_b32 s56, s56, vcc_lo'), (0, 's_and_b32 s56, s56, 0xffff'),
                (0, 's_cbranch_scc1 L_fallback' if not OPT.get('nofb') else 's_nop 0')]
        g, left = place(ops, g, CAP); assert not left
        g, left = place([(g + 2, 's_waitcnt lgkmcnt(0)')], g, CAP); assert not left
        return g
    done = lambda qb: 64 + 32*(qb + 1) + 3
    left, rest = [], []
    def groups(qb, g):
        for r in range(4):
            if left or rest or g >= 188 or done(qb) >= 188:
                left.append((qb, r)); continue
            g, l2 = place([(done(qb), x) for x in out_group(qb, r)], g, CAP)
            rest.extend(x for _, x in l2)
        return g
    g = chain([0, 1, 2], g); fready = [g]*3
    g = chain([3], g); fready.append(g)
    g = 0
    for qb in range(4): g = groups(qb, max(g, fready[qb]))
    print('tail: factors', fready, 'left', left, len(rest), file=sys.stderr)
    while left:
        qb, r = left.pop(0)
        if r % 2 == 0:
            rest += out_pair(qb, r); left.pop(0)
        else:
            rest += out_group(qb, r)
    left = [(0, x) for x in rest]
    tail = Out()
    for x in head: tail(x)
    E.emit(tail)
    stamp(tail, 6)
    for _, x in left: tail(x)
    tail.l = fix_hazards(loop.l, tail.l, 'tail')
    lin = pre_lines + c.l + loop.l + ['    ' + x for x in head] + loop.l + tail.l
    errs += check_hazards(lin, 'core') + check_waits(lin, 'core')
    k = tail.l.index('L_nobar:')
    errs += check_hazards(loop.l + tail.l[:k-2] + tail.l[k:], 'tailB')
    lin = pre_lines + cb.l + loop.l
    errs += check_hazards(lin, 'coreB') + check_waits(lin, 'coreB')
    o.l += c.l
    o('L_pathv:')
    o.l += cb.l
    o('.p2align 6')
    o('L_loop:')
    for x in head: o(x)
    o('L_loop_in:')
    o.l += loop.l + tail.l

def gen_main():
    errs = []
    o = Out()
    o('s_cmp_ge_u32 s2, 256\ns_cbranch_scc1 L_end')
    stamp(o, 0)
    if OPT['stamp']: o('s_memrealtime s[80:81]')
    o(f'''
    s_load_dwordx4 s[8:11], s[0:1], 0         ; q, qk
    s_load_dwordx4 s[32:35], s[0:1], 16
    s_load_dwordx4 s[36:39], s[0:1], 32       ; k_zeros, v_scales
    s_load_dwordx4 s[12:15], s[0:1], 48       ; v_zeros, out
    s_load_dwordx4 s[24:27], s[0:1], 64
    s_memrealtime s[94:95]
    v_lshrrev_b32_e32 v1, 6, v0
    v_and_b32_e32 v2, 63, v0                  ; lane
    v_readfirstlane_b32 s16, v1               ; wave
    v_lshrrev_b32_e32 v13, 5, v2              ; h
    v_and_b32_e32 v88, 31, v2                ; m
    v_lshlrev_b32_e32 v12, 12, v13
    v_lshl_add_u32 v12, v88, 4, v12
    s_and_b32 s20, s2, 7
    s_lshr_b32 s21, s2, 3
    s_and_b32 s23, s16, 1
    s_lshl_b32 s48, s20, 20
    s_lshl_b32 s53, s23, 14
    s_add_u32 s48, s48, s53
    s_lshl_b32 s53, s21, 15
    s_add_u32 s53, s53, s48
    s_add_u32 s57, s21, s16
    s_and_b32 s57, s57, {1 if OPT['rot'] else 0}
    s_lshl_b32 s56, s57, 13
    s_add_u32 s53, s53, s56
    s_lshl_b32 s49, s20, 12                   ; head*4096
    s_mov_b32 s51, s21
    s_mov_b32 s42, 32768
    s_mov_b32 s43, 0x20000
    s_waitcnt lgkmcnt(0)''')
    o(TAG_STORE)
    o(f'''
    s_cmp_ge_u32 s16, 2
    s_cselect_b32 s40, s12, s36
    s_cselect_b32 s41, s13, s37
    s_cselect_b32 s36, s38, s34
    s_cselect_b32 s37, s39, s35
    s_cselect_b32 s32, s32, s10
    s_cselect_b32 s33, s33, s11
    s_mov_b32 s34, {8 << 20}
    s_mov_b32 s35, 0x20000
    buffer_load_dwordx4 {rng("v", T0, 4)}, v12, s[32:35], s53 offen{POL}
    buffer_load_dwordx4 {rng("v", T0 + 4, 4)}, v12, s[32:35], s53 offen offset:512{POL}
    s_mov_b32 s38, 32768
    s_mov_b32 s39, 0x20000
    s_cbranch_scc1 L_pathv''')
    head = list(o.l)
    gen_core(o, errs, head)
    o('L_fin:')
    if OPT['stamp']:
        o(f'''
    s_memtime s[86:87]
    s_waitcnt vmcnt(0)
    s_memtime s[84:85]
    s_memrealtime s[82:83]
    s_waitcnt lgkmcnt(0)
    s_mov_b32 s88, s26
    s_mov_b32 s89, s27
    s_mov_b32 s90, 0x10000000
    s_mov_b32 s91, 0x20000
    s_lshl_b32 s101, s2, 2
    s_add_u32 s101, s101, s16
    s_lshl_b32 s92, s101, 7
    s_add_u32 s92, s92, {16 << 20}
    s_lshl_b32 s101, s101, 10
    s_add_u32 s101, s101, {17 << 20}''')
        if OPT.get('dbg'):
            o(f'''
    s_cmp_lg_u32 s16, 0
    s_cbranch_scc1 L_nodbg
    s_mov_b32 s53, 8
    s_cmp_eq_u32 s2, 9
    s_cbranch_scc1 L_dodbg
    s_mov_b32 s53, 40
    s_cmp_eq_u32 s2, 254
    s_cbranch_scc0 L_nodbg
L_dodbg:
    s_sub_u32 s54, s74, s64
    s_sub_u32 s55, s76, s64
    s_sub_u32 s56, s84, s64
    s_sub_u32 s57, s82, s80
    v_mov_b32_e32 v16, s54
    v_mov_b32_e32 v17, s55
    v_mov_b32_e32 v18, s56
    v_mov_b32_e32 v19, s57
    v_mov_b32_e32 v20, s80
    v_mov_b32_e32 v21, s82
    s_mov_b64 exec, 1
    buffer_store_dwordx4 v[16:19], v1, s[44:47], s53 offen
    buffer_store_dwordx2 v[20:21], v1, s[44:47], s53 offen offset:16
    s_mov_b64 exec, -1
    s_nop 1
L_nodbg:''')
        for k in range(24):
            o(f'v_mov_b32_e32 v{16+k}, s{64+k}')
        o('v_mov_b32_e32 v40, 0')
        for k in range(6):
            o(f'buffer_store_dwordx4 {rng("v", 16+4*k, 4)}, v40, s[88:91], s92 offen offset:{16*k}')
        if OPT['stamp'] >= 2:
            o(f'buffer_store_dwordx4 a[212:215], {vD1}, s[88:91], s101 offen')
    o('L_end:\ns_endpgm')
    if OPT.get('wb'): o('L_dowb:\nbuffer_wbl2 sc1\ns_branch L_nowb')
    o(f'''
L_tagslow:
    s_sub_u32 s57, s57, 1
    s_cselect_b32 s93, 1, 0
    s_cbranch_scc1 L_tagout
    s_sleep 1
    buffer_load_dwordx2 v[80:81], v1, s[44:47], s23 offen sc1
    s_waitcnt vmcnt(0)
    s_cmp_eq_u32 s95, 1
    s_cbranch_scc1 L_tag1
    s_branch L_tag3
L_tagout:
    s_cmp_eq_u32 s95, 1
    s_cbranch_scc1 L_nopub1
    s_branch L_nopub3
L_pollslow:
    s_or_b32 s54, vcc_lo, vcc_hi
    s_not_b32 s54, s54
    s_cselect_b32 s55, 0, 1
    s_sub_u32 s57, s57, 1
    s_cselect_b32 s56, 1, 0
    s_cmp_lt_u32 s57, {OPT['spin'] - OPT['upg'] if OPT['spin'] > OPT['upg'] else 0}
    s_cselect_b32 s55, 1, s55
    s_or_b32 s55, s55, s56
    s_cmp_gt_u32 s55, s94
    s_cbranch_scc0 L_noupg
    s_mov_b32 s94, 1
    s_add_u32 s55, s101, 4096
    buffer_wbl2 sc1
    s_waitcnt vmcnt(0)
    s_mov_b32 exec_lo, 0
    s_mov_b32 exec_hi, 1
    buffer_store_dwordx2 v[84:85], v1, s[96:99], s55 offen sc1
    s_mov_b64 exec, -1
L_noupg:
    s_cmp_lg_u32 s56, 0
    s_cbranch_scc1 L_help
    s_cmp_eq_u32 s54, 0
    s_cbranch_scc1 L_polldone
    buffer_load_dwordx2 v[82:83], v86, s[96:99], 0 offen sc1
    s_waitcnt vmcnt(0)
    s_cmp_eq_u32 s95, 1
    s_cbranch_scc1 L_chk1
    s_branch L_chk3
L_polldone:
    s_cmp_eq_u32 s95, 1
    s_cbranch_scc1 L_ok1
    s_branch L_ok3
L_help:
    s_waitcnt lgkmcnt(0)
    v_add_u32_e32 v87, s100, v103
    v_add_u32_e32 v14, s100, {vD1}
    v_lshrrev_b32_e32 v13, 5, v2
    v_and_b32_e32 v88, 31, v2
    v_lshlrev_b32_e32 v12, 12, v13
    v_lshl_add_u32 v12, v88, 4, v12
    s_mov_b32 s52, 31
L_help_go:
    s_add_u32 s51, s21, s52
    s_and_b32 s51, s51, 31
    s_cmp_eq_u32 s95, 1
    s_cbranch_scc0 L_help_v''')
    for kind in 'kv':
        h = Seq()
        if kind == 'v': h('L_help_v:')
        gen_dequant(h, kind, True)
        if kind == 'k': h('s_branch L_help_next')
        errs += check_hazards(h.l, 'help') + check_waits(h.l, 'help')
        o.l += h.l
    o('''
L_help_next:
    s_waitcnt vmcnt(0)
    s_sub_u32 s52, s52, 1
    s_cmp_lg_u32 s52, 0
    s_cbranch_scc1 L_help_go''')
    for x in acc_init(): o(x)
    o('s_branch L_polldone')
    fb = Out()
    def kloads(off):
        for f in range(16):
            if f % 8 == 0: fb(f's_add_u32 s53, s17, {off + (f // 8)*8192}')
            v = vD1 if f % 8 < 4 else vD2
            k = f if off == 0 else 16 + 2*(f % 8) + f // 8
            fb(f'buffer_load_dwordx4 {aF(k)}, {v}, s[28:31], s53 offen offset:{1024*(f%4)} sc1')
        fb('s_waitcnt vmcnt(0)')
    fb('L_fallback:\ns_waitcnt vmcnt(0) lgkmcnt(0)\ns_nop 7\ns_nop 7')
    for q in range(4): fb(f'v_mov_b32_e32 {vM[q]}, 0xff800000')
    fb('s_mov_b32 s17, 0\nL_maxloop:')
    kloads(0)
    for i in range(64): fb(qk_mfma(0, i // 16, (i // 4) % 4, i % 4))
    fb('s_nop 7')
    for kb in range(4):
        for qb in range(4):
            for r in (0, 2):
                fb(f'v_max3_f32 {vM[qb]}, {vM[qb]}, {vSr(0, kb, qb, r)}, {vSr(0, kb, qb, r+1)}')
    fb(f's_add_u32 s17, s17, 16384\ns_cmp_lt_u32 s17, {512 << 10}\ns_cbranch_scc1 L_maxloop')
    for x in lane_reduce('v_max_f32_e32', 16): fb(x)
    for q in range(4):
        for r in range(4): fb(f'v_sub_f32_e32 v{C0 + 4*q + r}, 0, {vM[q]}')
    for x in acc_init(): fb(x)
    fb('s_mov_b32 s17, 0\nL_p2loop:')
    kloads(0)
    for i in range(64): fb(qk_mfma(0, i // 16, (i // 4) % 4, i % 4, True))
    kloads(V_OFF)
    for kb in range(4):
        for qb in range(4):
            el = [sm_elem(0, kb, qb, r) for r in range(4)]
            for r in range(4): fb(el[r][0][2])
            for r in range(4):
                for _, _, tx in el[r][1:]: fb(tx)
    fb('s_nop 1')
    for i in range(64): fb(pv_mfma(i // 8, (i // 2) % 4, i % 2, 0))
    for qb in range(4):
        fb(l_mfma(0, qb))
    fb(f's_add_u32 s17, s17, 16384\ns_cmp_lt_u32 s17, {512 << 10}\ns_cbranch_scc1 L_p2loop')
    fb(EPI_ADDR)
    for q in range(4):
        for x in factor_ops(q)[0]: fb(x)
    fb('s_waitcnt lgkmcnt(0)')
    for q in range(4): fb(factor_ops(q)[1])
    fb('s_waitcnt lgkmcnt(0)')
    for qb in range(4):
        for r in (0, 2):
            for x in out_pair(qb, r): fb(x)
    fb('s_branch L_fin')
    i1, i2 = fb.l.index('L_maxloop:'), fb.l.index('L_p2loop:')
    fb.l = fix_hazards([], fb.l, 'fb')
    i2 = fb.l.index('L_p2loop:')
    errs += check_hazards(fb.l, 'fb') + check_waits(fb.l, 'fb')
    p2 = fb.l[i2:[k for k, x in enumerate(fb.l) if 'L_p2loop' in x][-1] + 1]
    errs += check_hazards(p2 + p2, 'fb2')
    o.l += fb.l
    return o.l, errs

HEADER = open('cdna_kernels/' + NAME + '.s.ref').read().split('; @launch')[0]

DOC = '''; ---------------------------------------------------------------------------------------------------------
;  * every wave owns 64 q rows: S^T = K Q^T and O = P V with v_mfma_f32_16x16x32_bf16, K/V tiles stream through a
; ---------------------------------------------------------------------------------------------------------
'''

def main():
    mn, errs = gen_main()
    for e in errs:
        print(e, file=sys.stderr)
    if errs and not OPT.get('nofb'):
        sys.exit(1)
    nm = NAME + '_kernel'
    txt = HEADER + f'; @launch grid=(256,1,1) block=(256,1,1) lds={LDS_TOTAL}\n'
    txt += DOC + '.amdgcn_target "amdgcn-amd-amdhsa--gfx950"\n.text\n'
    txt += f'.globl {nm}\n.p2align 8\n.type {nm},@function\n{nm}:\n' + '\n'.join(mn) + '\n'
    txt += f'''.section .rodata,"a"
.p2align 6
.amdhsa_kernel {nm}
  .amdhsa_next_free_vgpr 472
  .amdhsa_next_free_sgpr 102
  .amdhsa_accum_offset 256
  .amdhsa_group_segment_fixed_size 0
  .amdhsa_kernarg_size 80
  .amdhsa_user_sgpr_count 2
  .amdhsa_user_sgpr_kernarg_segment_ptr 1
  .amdhsa_system_sgpr_workgroup_id_x 1
  .amdhsa_float_denorm_mode_32 3
.end_amdhsa_kernel
'''
    open(sys.argv[1], 'w').write(txt)

main()
```

```python
import sys, struct, math
from asmlib import *

NAME = 'standalone__kv_cache_quant_int4_int2_kv_with_per_channel_or_per_token_scales__prompt'
OPT = dict(spol='', rot=3, nwt=0, wpol='sc0_sc1', tp=5, cap=2, lpos=15, early=4, skew=1, nra=0, nrb=0, go=1, k2=2, bsplit=8, zpos=1, bsleep=0, pull=6, wb=1, nb1=11, barfirst=1, nql=0, nqb=0, nqa=0, touch=1, upg=12, pol='nt', stamp=0, d=6, st=7, dma0=6, dmastep=10, spin=4000, opol='nt', rp=0, pairbar=0)
for a in sys.argv[2:]:
    k, v = a.split('=', 1)
    OPT[k] = eval(v)

def f32bits(x):
    return struct.unpack('<I', struct.pack('<f', x))[0]

CSCALE = f32bits(128 ** -0.5 * math.log2(math.e))
V_OFF = 4 << 20
FLAG_OFF = 9 << 20
MF = 'v_mfma_f32_16x16x32_bf16'
D, RP = OPT['d'], OPT['rp']
def flags(x): return (' ' + x.replace('_', ' ')) if x else ''
POL, OPOL, SC1 = flags(OPT['pol']), flags(OPT['opol']), ' sc1'

class Out:
    def __init__(self):
        self.l = []
    def __call__(self, s):
        for x in s.strip('\n').split('\n'):
            if x.strip():
                self.l.append(x.strip() if x.strip().endswith(':') or x.startswith('.') else '    ' + x.strip())

def rng(p, b, n): return f'{p}[{b}:{b+n-1}]'
O0 = 128
def vO(qb, db): return rng('v', O0 + (qb*8+db)*4, 4)
def vOr(qb, db, r): return O0 + (qb*8+db)*4 + r
def aQ(qb, ks): return rng('a', (qb*4+ks)*4, 4)
def aF(k): return rng('a', 64 + (k % 16)*4, 4)
def aX(j): return rng('a', 128 + j*4, 4)
BY, BE, C0, T0 = 16, (48, 80), 112, 128
def sbase(par, kb, qb): return (BY if kb & 1 else BE[par]) + (qb*2 + kb//2)*4
def vS(par, kb, qb): return rng('v', sbase(par, kb, qb), 4)
def vSr(par, kb, qb, r): return f'v{sbase(par, kb, qb) + r}'
def vP(par, t, qb): return rng('v', BE[par] + (qb*2+t)*4, 4)
def vPr(par, t, qb, i): return f'v{BE[par] + (qb*2+t)*4 + i}'
def vC(qb): return rng('v', C0 + qb*4, 4)
vM = ['v8', 'v9', 'v10', 'v11']
IDX = 15
L0, ONES = 192, 208
def aL(qb): return rng('a', L0 + 4*qb, 4)
vRd, vD1, vD2 = 'v4', 'v5', 'v6'
LDS_RING = 131072
LDS_SCR = LDS_RING
LDS_HS = LDS_RING + 4096
LDS_QX = LDS_HS + 256
LDS_TOTAL = LDS_QX + 16384

def frag_off(k):
    if k < 16:
        return k * 1024
    db, t = (k - 16) // 2, (k - 16) % 2
    return 16384 + t * 8192 + db * 1024

def sm_elem(buf, kb, qb, r):
    s = vSr(buf, kb, qb, r)
    ops = [(0, 0, f'v_exp_f32_e32 {s}, {s}')]
    if r & 1:
        d, lo = vPr(buf, kb//2, qb, (kb%2)*2 + r//2), vSr(buf, kb, qb, r-1)
        ops.append((3, 2, f'v_perm_b32 {d}, {s}, {lo}, s92' if OPT.get('trunc') else f'v_cvt_pk_bf16_f32 {d}, {lo}, {s}'))
    return ops

def l_mfma(buf, qb):
    return f'v_smfmac_f32_16x16x64_bf16 {aL(qb)}, {rng("a", ONES, 4)}, {rng("v", BE[buf] + qb*8, 8)}, v{IDX}'

def sel_init():
    return (['v_cmp_gt_u32_e32 vcc, 2, v7', 'v_mov_b32_e32 v8, 0x3f803f80', f'v_mov_b32_e32 v{IDX}, 0x44444444',
             'v_cndmask_b32_e32 v8, v1, v8, vcc', 'v_cmp_eq_u32_e32 vcc, 1, v7', 'v_mov_b32_e32 v9, 0xeeeeeeee'] +
            [f'v_accvgpr_write_b32 a{ONES + k}, v8' for k in range(4)] + [f'v_cndmask_b32_e32 v{IDX}, v{IDX}, v9, vcc'])

def acc_init():
    return [f'v_accvgpr_write_b32 a{L0 + k}, 0' for k in range(16)] + [f'v_mov_b32_e32 v{O0 + k}, 0' for k in range(128)]

def sm_ops(buf, order=None):
    order = order or [(e // 4, e % 4) for e in range(16)]
    return [(2*e + dg, pr, tx) for e in range(64) for dg, pr, tx in sm_elem(buf, order[e // 4][0], order[e // 4][1], e % 4)]

def qk_mfma(par, kb, qb, ks, cinit=False):
    c = (vC(qb) if cinit else '0') if ks == 0 else vS(par, kb, qb)
    return f'{MF} {vS(par, kb, qb)}, {aF(kb*4+ks)}, {aQ(qb, ks)}, {c}'

def pv_mfma(db, qb, t, buf, fr=None):
    return f'{MF} {vO(qb, db)}, {vP(buf, t, qb)}, {fr or aF(16 + db*2 + t)}, {vO(qb, db)}'

def dma(grp, i, srd='s[4:7]', so='s17'):
    v = vD1 if grp == 0 else vD2
    return f'buffer_load_dwordx4 {v}, {srd}, {so} offen offset:{1024*i}{SC1} lds'

class Block:
    def __init__(self, G, carry):
        self.G = G
        self.mf = [None] * G
        self.mem = [[] for _ in range(G)]
        self.val = [[] for _ in range(G + 140)]
        for g, lst in carry.items():
            self.val[g] += lst
        self.reads = [(4*f + RP - 4*D, (0, f)) for f in range(D)]
        self.waits = []
    def read(self, g, ident, f, off):
        self.mem[g].append(f'ds_read_b128 {aF(f)}, {vRd} offset:{off}')
        self.reads.append((g, ident))
    def finish(self):
        self.reads.sort(key=lambda r: r[0])
        ids = [r[1] for r in self.reads]
        for gw, need in self.waits:
            if gw == 0: continue
            p = max(ids.index(x) for x in need)
            assert self.reads[p][0] < gw - 1, (gw, need)
            w = len([1 for r in self.reads[p+1:] if r[0] < gw - 1])
            self.mem[gw - 1].insert(0, f's_waitcnt lgkmcnt({w})')
        return {g - self.G: self.val[g] for g in range(self.G, len(self.val)) if self.val[g]}
    def stage(self, k, par, nxt=True):
        g0 = 128 * k
        for i in range(64):
            self.mf[g0 + i] = qk_mfma(par ^ 1, i // 16, (i // 4) % 4, i % 4)
            self.mf[g0 + 64 + i] = pv_mfma(i // 8, (i // 2) % 4, i % 2, par)
        for rg, pr, tx in sm_ops(par ^ 1):
            self.val[g0 + OPT['st'] + rg].append((pr, tx))
        for qb in range(4):
            self.val[g0 + 64 + 16*qb + OPT['lpos']].append((30, l_mfma(par, qb)))
        for f in range(D, 32 + (D if nxt else 0)):
            g = g0 + 4*f + RP - 4*D
            if f in (30, 31): g -= OPT['pull']
            if f < 32: self.read(g, (k, f), f, par*32768 + frag_off(f))
            else: self.read(g, (k + 1, f - 32), f, (par ^ 1)*32768 + frag_off(f - 32))
        for m in range(8):
            self.waits.append((g0 + 16*m, [(k, 4*m + j) for j in range(4)]))
    def gap_lines(self, g):
        v = [t for _, t in sorted(self.val[g], key=lambda z: z[0])]
        m = self.mem[g]
        if OPT.get('no_exp'): v = [t for t in v if not t.startswith('v_exp')]
        if OPT.get('no_add'): v = [t for t in v if not t.startswith('v_add')]
        if OPT.get('no_cvt'): v = [t for t in v if not t.startswith('v_cvt')]
        if OPT.get('no_lds'): m = [t for t in m if not t.startswith('ds_read')]
        if OPT.get('no_dma'): m = [t for t in m if not t.startswith('buffer_load')]
        if any(t.endswith(':') for t in m):
            return m, v
        sc = [t for t in m if t.startswith('s_')]
        return sc, [t for t in m if not t.startswith('s_')] + v
    def emit(self, o, upto=None):
        for g in range(upto if upto is not None else self.G):
            o(self.mf[g])
            sc, ve = self.gap_lines(g)
            for x in sc + ve: o(x)

def stampdq(o, k):
    if OPT.get('stampdq'):
        o(f's_memtime s[{64+2*k}:{65+2*k}]')

def stampp(o, k):
    if OPT.get('stampp'):
        o(f's_memtime s[{64+2*k}:{65+2*k}]')

def stamp(o, k):
    if OPT.get('stampp') and k in (4, 5, 7):
        return
    if OPT.get('stampdq') and k in (3, 4, 5, 7):
        return
    if OPT['stamp']:
        o(f's_memtime s[{64+2*k}:{65+2*k}]')

NINIT = 0
def init_work(o):
    global NINIT
    NINIT += 1
    o(f's_cmp_lg_u32 s52, 0\ns_cbranch_scc1 L_noinit{NINIT}')
    for r in range(128):
        o(f'v_accvgpr_write_b32 a{r}, 0')
    o(f'L_noinit{NINIT}:')

def qdma(o, idx):
    idx = list(idx)
    for i in idx:
        if i % 4 == 0 or i == idx[0]:
            o(f's_add_u32 m0, s100, {(i // 4)*4096}')
            o('s_nop 0')
        so = 's22' if i < 4 else f's{60 + i // 4}'
        o(f'buffer_load_dwordx4 v{94 + i % 4}, s[8:11], {so} offen offset:{1024*(i % 4)}{POL} lds')
    return len(idx)

def qreads(o, qbs):
    for qb in qbs:
        for ks in range(4):
            o(f'ds_read_b128 {aQ(qb, ks)}, v{98 + ks} offset:{4096*qb}')

POLL = 'buffer_load_dwordx2 v[82:83], v86, s[96:99], 0 offen sc1'

class Seq(Out):
    def __init__(self):
        super().__init__()
        self.vq = []
        self.m0 = None
    def vm(self, text, tag):
        self(text); self.vq.append(tag)
    def after(self, *tags):
        return len(self.vq) - 1 - max(i for i, t in enumerate(self.vq) if t in tags)
    def vwait(self, *tags):
        self(f's_waitcnt vmcnt({self.after(*tags)})')
    def q(self, i):
        if self.m0 != ('q', i // 4):
            self(f's_add_u32 m0, s100, {(i // 4)*4096}\ns_nop 0'); self.m0 = ('q', i // 4)
        so = 's22' if i < 4 else f's{60 + i // 4}'
        self.vm(f'buffer_load_dwordx4 v{94 + i % 4}, s[8:11], {so} offen offset:{1024*(i % 4)}{POL} lds', f'q{i}')

def gen_dequant(o, kind, helper, nroll=0, between=None):
    T = T0
    NB1 = 16 if helper else OPT['nb1']
    todo = [('d', x) for x in range(NB1, 16)] + [('q', i) for i in range(nroll)]
    def dload(x):
        gs, j = x // 8, x % 8
        so = 's53' if j < 4 else 's54'
        o.vm(f'buffer_load_dwordx4 {rng("v", T + gs*32 + j*4, 4)}, v12, s[32:35], {so} offen offset:{512*(4*gs + j%4)}{POL}', f'd{x}')
    def step(x):
        o.vwait(f'd{x}')
        if x == 0 and not helper: stampdq(o, 7)
        if x == 8 and not helper:
            o.vm('buffer_load_dwordx2 v[80:81], v1, s[44:47], s23 offen sc1', 'tag')
        if todo:
            k, i = todo.pop(0)
            dload(i) if k == 'd' else o.q(i)
    if helper:
        o('''
    s_lshl_b32 s53, s51, 15                   ; tile * 64 tokens * 512 B
    s_add_u32 s53, s53, s48                   ; + head*1MB + (wave&1)*16KB
    s_add_u32 s57, s51, s16
    s_and_b32 s57, s57, ''' + str(1 if OPT['rot'] else 0) + '''
    s_lshl_b32 s56, s57, 13
    s_add_u32 s53, s53, s56''')
    else:
        o.vq += ['d0', 'd1']
    o('''
    s_xor_b32 s54, s53, 8192
    s_lshl_b32 s55, s51, 14''')
    if kind == 'k':
        o('s_lshr_b32 s56, s51, 1\ns_lshl_b32 s56, s56, 8\ns_add_u32 s56, s56, s49')
        o.vm('buffer_load_dwordx2 v[192:193], v89, s[36:39], s56 offen', 'sc')
        o.vm('buffer_load_dwordx2 v[194:195], v89, s[40:43], s56 offen', 'sc')
    else:
        o('s_lshl_b32 s56, s51, 7\ns_add_u32 s56, s56, s49\ns_lshl_b32 s57, s57, 5\ns_add_u32 s56, s56, s57\ns_xor_b32 s57, s56, 32')
        o.vm('buffer_load_dwordx4 v[192:195], v89, s[36:39], s56 offen', 'sc')
        o.vm('buffer_load_dwordx4 v[196:199], v89, s[36:39], s57 offen', 'sc')
        o.vm('buffer_load_dwordx4 v[200:203], v89, s[40:43], s56 offen', 'sc')
        o.vm('buffer_load_dwordx4 v[204:207], v89, s[40:43], s57 offen', 'sc')
    for x in range(0 if helper else 2, NB1): dload(x)
    if between: between()
    o.vwait('sc')
    if kind == 'k':
        o('''
    v_lshlrev_b32_e32 v196, 16, v192
    v_and_b32_e32 v197, s60, v192
    v_lshlrev_b32_e32 v198, 16, v193
    v_and_b32_e32 v199, s60, v193
    v_lshlrev_b32_e32 v200, 16, v194
    v_and_b32_e32 v201, s60, v194
    v_lshlrev_b32_e32 v202, 16, v195
    v_and_b32_e32 v203, s60, v195
    v_pk_mul_f32 v[196:197], v[196:197], s[58:59]
    v_pk_mul_f32 v[198:199], v[198:199], s[58:59]
    v_pk_mul_f32 v[200:201], v[200:201], v[196:197] neg_lo:[1,0] neg_hi:[1,0]
    v_pk_mul_f32 v[202:203], v[202:203], v[198:199] neg_lo:[1,0] neg_hi:[1,0]''')
        for gs in range(2):
            for j in range(8):
                step(gs*8 + j)
                b = T + gs*32 + j*4
                for c in range(4): o(f'v_cvt_f32_i32_e32 v{b+c}, v{b+c}')
                o(f'v_pk_fma_f32 {rng("v", b, 2)}, {rng("v", b, 2)}, v[196:197], v[200:201]')
                o(f'v_pk_fma_f32 {rng("v", b+2, 2)}, {rng("v", b+2, 2)}, v[198:199], v[202:203]')
                o(f'v_cvt_pk_bf16_f32 v{b}, v{b}, v{b+1}')
                o(f'v_cvt_pk_bf16_f32 v{b+1}, v{b+2}, v{b+3}')
                o(f'ds_write_b64 v87, {rng("v", b, 2)} offset:{(j // 4)*4096 + (4*gs + j % 4)*16}')
    else:
        SCU, ZRU = 208, 224
        for p in range(8):
            o(f'v_lshlrev_b32_e32 v{SCU+2*p}, 16, v{192+p}')
            o(f'v_and_b32_e32 v{SCU+2*p+1}, s60, v{192+p}')
            o(f'v_lshlrev_b32_e32 v{ZRU+2*p}, 16, v{200+p}')
            o(f'v_and_b32_e32 v{ZRU+2*p+1}, s60, v{200+p}')
            o(f'v_pk_mul_f32 {rng("v", ZRU+2*p, 2)}, {rng("v", ZRU+2*p, 2)}, {rng("v", SCU+2*p, 2)} neg_lo:[1,0] neg_hi:[1,0]')
        for gs in range(2):
            ob = 192 if gs == 0 else T
            for j in range(8):
                step(gs*8 + j)
                b = T + gs*32 + j*4
                ix = (j // 4)*8 + 4*gs + j % 4
                zr, sc, sel = ZRU + (ix & ~1), SCU + (ix & ~1), ix & 1
                bc = f'op_sel:[0,{sel},{sel}] op_sel_hi:[1,{sel},{sel}]'
                for c in range(4): o(f'v_cvt_f32_i32_e32 v{b+c}, v{b+c}')
                for p in range(2):
                    o(f'v_pk_fma_f32 {rng("v", b+2*p, 2)}, {rng("v", b+2*p, 2)}, {rng("v", sc, 2)}, {rng("v", zr, 2)} {bc}')
                if j & 1:
                    for c in range(4):
                        o(f'v_cvt_pk_bf16_f32 v{ob + 4*c + j//2}, v{b - 4 + c}, v{b + c}')
            for c in range(4):
                o(f'ds_write_b128 v87, {rng("v", ob + 4*c, 4)} offset:{1024*c + 256*gs}')
    o('s_waitcnt lgkmcnt(0)')
    for f in range(8):
        o(f'ds_read_b128 {rng("v", T + 32 + 4*f, 4)}, v14 offset:{1024*f}')
    for k, i in todo: o.q(i)
    for f in range(8):
        o(f's_waitcnt lgkmcnt({7 - f})')
        vv = vD1 if f < 4 else vD2
        o.vm(f'buffer_store_dwordx4 {rng("v", T + 32 + 4*f, 4)}, {vv}, s[4:7], s55 offen offset:{1024*(f%4)}{flags(OPT["spol"])}', 'st')

def lane_reduce(op, tmp):
    r = []
    for sw in ('v_permlane16_swap_b32', 'v_permlane32_swap_b32'):
        r += [f'v_mov_b32_e32 v{tmp+q}, {vM[q]}' for q in range(4)]
        r += [f'{sw} {vM[q]}, v{tmp+q}' for q in range(4)]
        r += [f'{op} {vM[q]}, {vM[q]}, v{tmp+q}' for q in range(4)]
    return r

FA = 112
def out_store(qb, r):
    b = sbase(0, 1 + 2*(r & 1), qb)
    so = 's22' if qb == 0 else f's{60+qb}'
    return ([f'v_cvt_pk_bf16_f32 v{b+p}, v{vOr(qb, 2*p, r)}, v{vOr(qb, 2*p+1, r)}' for p in range(4)] +
            [f'buffer_store_dwordx4 {rng("v", b, 4)}, v14, s[12:15], {so} offen offset:{256*r}{flags(OPT["wpol"]) if qb*4 + r < OPT["nwt"] else OPOL}'])
def out_group(qb, r):
    return [f'v_mul_f32_e32 v{vOr(qb, db, r)}, v{vOr(qb, db, r)}, v{FA + 4*qb + r}' for db in range(8)] + out_store(qb, r)
def out_pair(qb, r):
    return ([f'v_pk_mul_f32 {rng("v", vOr(qb, db, r), 2)}, {rng("v", vOr(qb, db, r), 2)}, {rng("v", FA + 4*qb + r, 2)}' for db in range(8)]
            + out_store(qb, r) + out_store(qb, r + 1))

def factor_ops(q):
    t = FA + 4*q
    return ([f'v_accvgpr_read_b32 {vM[q]}, a{L0 + 4*q}', f'v_accvgpr_read_b32 v{t}, a{L0 + 4*q + 1}', f'v_add_f32_e32 {vM[q]}, {vM[q]}, v{t}',
             f'v_rcp_f32_e32 {vM[q]}, {vM[q]}', f'ds_write_b32 v12, {vM[q]} offset:{64*q}'],
            f'ds_read_b128 {rng("v", t, 4)}, v13 offset:{64*q}')

EPI_ADDR = f'''
    s_lshl_b32 s53, s16, 10
    s_add_u32 s53, s53, {LDS_SCR}
    v_lshl_add_u32 v13, v3, 4, s53
    v_lshl_add_u32 v12, v7, 2, s53
    v_lshl_add_u32 v12, v3, 8, v12
    v_lshlrev_b32_e32 v14, 10, v3
    v_lshl_add_u32 v14, v7, 4, v14'''

SETUP_K = '''
    v_lshlrev_b32_e32 v89, 3, v88           ; scales: m*8'''
SETUP_V = '''
    v_lshlrev_b32_e32 v89, 4, v13            ; scales: h*16
    s_lshl_b32 s56, s23, 6
    s_add_u32 s49, s49, s56'''
SETUP_REST = f'''
    v_lshrrev_b32_e32 v3, 4, v2               ; g
    v_and_b32_e32 v7, 15, v2                  ; n
    v_lshlrev_b32_e32 {vD1}, 4, v2
    v_add_u32_e32 {vD2}, 0x1000, {vD1}
    v_mov_b32_e32 {vRd}, {vD1}
    s_lshl_b32 s22, s20, 5
    s_add_u32 s22, s22, s21
    s_lshl_b32 s22, s22, 16
    s_lshl_b32 s23, s16, 14
    s_add_u32 s22, s22, s23
    s_add_u32 s23, s21, s16
    s_and_b32 s23, s23, {OPT['rot']}
    s_lshl_b32 s23, s23, 12
    s_xor_b32 s22, s22, s23
    s_xor_b32 s61, s22, 4096
    s_xor_b32 s62, s22, 8192
    s_xor_b32 s63, s22, 12288
    v_lshlrev_b32_e32 v86, 7, v2
    v_xor_b32_e32 v94, v7, v3
    v_lshlrev_b32_e32 v94, 4, v94
    v_lshl_add_u32 v98, v7, 8, v94
    v_lshl_add_u32 v94, v3, 8, v94          ; Q staging source: (lane/16)*256 + ((lane%16)^(lane/16))*16
    v_xor_b32_e32 v95, 64, v94
    v_xor_b32_e32 v96, 0x80, v94
    v_xor_b32_e32 v97, 0xc0, v94
    s_lshl_b32 s100, s16, 14
    s_add_u32 s100, s100, {2*32768}
    s_cmp_eq_u32 s16, 2
    s_cselect_b32 s100, {3*32768 + 16384}, s100
    s_cmp_eq_u32 s16, 3
    s_cselect_b32 s100, {LDS_QX}, s100
    v_add_u32_e32 v98, s100, v98
    v_xor_b32_e32 v99, 64, v98
    v_xor_b32_e32 v100, 0x80, v98
    v_xor_b32_e32 v101, 0xc0, v98
    s_and_b32 s23, s16, 1
    s_lshl_b32 s28, s20, 19                   ; head*512KB
    s_lshl_b32 s4, s23, 13
    s_add_u32 s4, s4, s28
    s_mov_b32 s60, 0xffff0000
    s_mov_b32 s93, 0
    s_getreg_b32 s3, hwreg(HW_REG_XCC_ID, 0, 4)
    v_cmp_gt_u32_e32 vcc, 32, v2
    v_mov_b32_e32 v1, 0
    v_mov_b32_e32 v84, s3
    s_mov_b32 s58, 0x{CSCALE:08x}
    s_mov_b32 s59, 0x{CSCALE:08x}
    v_cndmask_b32_e32 v84, 16, v84, vcc
    s_lshl_b32 s19, s16, 13
    s_lshl_b32 s56, s16, 2
    s_add_u32 s56, s56, {LDS_HS}
    v_mov_b32_e32 v102, s56
    ds_write2_b32 v102, v1, v1 offset1:4
    s_mov_b32 s6, {512 << 10}
    s_mov_b32 s7, 0x20000
    s_mov_b32 s30, {V_OFF + (512 << 10)}
    s_mov_b32 s31, 0x20000
    s_mov_b32 s46, 256
    s_mov_b32 s47, 0x20000
    s_mov_b32 s98, 8192
    s_mov_b32 s99, 0x20000
    s_lshl_b32 s96, s20, 2
    s_add_u32 s96, s96, s16
    s_lshl_b32 s96, s96, 13
    s_add_u32 s96, s96, {FLAG_OFF}
    s_lshl_b32 s101, s21, 7
    s_add_u32 s17, s21, 1
    s_and_b32 s17, s17, 31
    s_lshl_b32 s17, s17, 14
    s_mov_b32 s57, {OPT['spin']}
    s_or_b32 s50, s21, s16
    s_cselect_b32 s50, 99, 12
    s_mov_b32 s18, 15
    s_mov_b32 s10, {16 << 20}
    s_mov_b32 s11, 0x20000
    s_mov_b32 s12, s14
    s_mov_b32 s13, s15
    s_mov_b32 s14, {16 << 20}
    s_mov_b32 s15, 0x20000
    s_mov_b32 s44, s24
    s_mov_b32 s45, s25
    s_lshl_b32 s23, s20, 5
    s_mov_b32 s94, 0'''
SETUP_K2 = f'''
    v_lshrrev_b32_e32 v87, 1, v88
    v_lshlrev_b32_e32 v87, 8, v87
    v_and_b32_e32 v88, 1, v88
    v_lshl_add_u32 v87, v88, 3, v87
    v_lshl_add_u32 v103, v13, 7, v87         ; LDS write: (m/2)*256 + (m%2)*8 + h*128
    s_add_u32 s92, s19, {3*32768}             ; own K goes to slot 3
    v_add_u32_e32 v87, s92, v103
    v_add_u32_e32 v14, s92, {vD1}'''
SETUP_V2 = f'''
    v_and_b32_e32 v87, 1, v88
    v_lshlrev_b32_e32 v87, 12, v87
    v_lshl_add_u32 v87, v13, 9, v87
    v_lshrrev_b32_e32 v88, 1, v88
    v_lshl_add_u32 v103, v88, 4, v87        ; LDS write: (m%2)*4096 + h*512 + (m/2)*16
    v_add_u32_e32 v87, s19, v103
    v_add_u32_e32 v14, s19, {vD1}
    s_add_u32 s4, s4, {V_OFF}'''
SETUP_SRD = '''
    s_add_u32 s4, s26, s4
    s_addc_u32 s5, s27, 0
    s_add_u32 s28, s26, s28
    s_addc_u32 s29, s27, 0
    s_add_u32 s96, s26, s96
    s_addc_u32 s97, s27, 0'''
TAG_STORE = '''
    s_or_b32 s50, s21, s16
    s_cbranch_scc1 L_notag
    s_mov_b32 s44, s24
    s_mov_b32 s45, s25
    s_mov_b32 s46, 256
    s_mov_b32 s47, 0x20000
    s_lshl_b32 s56, s20, 5
    s_lshl_b64 s[88:89], s[94:95], 8
    s_or_b32 s88, s88, 0x80
    v_mov_b32_e32 v1, 0
    v_mov_b32_e32 v80, s88
    v_mov_b32_e32 v81, s89
    s_mov_b64 exec, 1
    buffer_store_dwordx2 v[80:81], v1, s[44:47], s56 offen sc1
    s_mov_b64 exec, -1
L_notag:'''

def gen_core(o, errs, head):
    st = OPT['st']
    SKEW = OPT['skew']
    carry = {}
    for rg, pr, tx in sm_ops(0):
        if st + rg >= 128: carry.setdefault(st + rg - 128, []).append((pr, tx))
    late = set(tx for l in carry.values() for _, tx in l)
    def part_dma(c, slot):
        c.m0 = None
        for grp in range(2):
            c(f's_add_u32 m0, s19, {slot*32768 + grp*4096}\ns_nop 0')
            for i in range(4): c.vm(dma(grp, i), f'p{slot}')
        c('s_add_u32 s17, s17, 16384\ns_and_b32 s17, s17, 0x7ffff')
    def qk0(c, qb):
        c('s_waitcnt lgkmcnt(0)')
        ex = [(kb, r) for kb in range(4) for r in range(4)]
        pend = []
        for i in range(16):
            c(qk_mfma(0, i // 4, qb, i % 4))
            if pend:
                for x in pend: c(x)
                pend = []
            elif ex and 4*ex[0][0] + 3 + 4 <= i:
                kb, r = ex.pop(0)
                ops = [tx for _, _, tx in sm_elem(0, kb, qb, r)]
                c(ops[0]); pend = ops[1:]
        for kb, r in ex:
            ops = [tx for _, _, tx in sm_elem(0, kb, qb, r) if tx not in late]
            if ops and ops[0].startswith('v_exp'):
                c(ops[0]); ops = ops[1:]
            for x in pend: c(x)
            pend = ops
        for x in pend: c(x)
    def path(kind):
        c = Seq()
        tg = 1 if kind == 'k' else 3
        nroll = OPT['nra'] if kind == 'k' else OPT['nrb']
        c(SETUP_K if kind == 'k' else SETUP_V)
        def between():
            c(SETUP_REST)
            c(SETUP_K2 if kind == 'k' else SETUP_V2)
            c(SETUP_SRD)
            if OPT.get('touch'):
                c.vm('buffer_load_dword v90, v1, s[4:7], s55 offen sc1', 'x')
                c.vm('buffer_load_dword v91, v1, s[96:99], 0 offen sc1', 'x')
                c.vm('buffer_load_dword v92, v1, s[12:15], s22 offen sc1', 'x')
                c.vm('buffer_load_dword v93, v1, s[8:11], s22 offen', 'x')
            stampdq(c, 4)
            for x in sel_init(): c(x)
            stampdq(c, 5)
        gen_dequant(c, kind, False, nroll, between)
        stamp(c, 1)
        c.vwait('st')
        c(f'''
L_tag{tg}:
        s_mov_b32 s95, {tg}
        v_cmp_eq_u64_e32 vcc, 0, v[80:81]
        s_cbranch_vccnz L_tagslow
        v_add_u32_e32 v84, v84, v80
        v_mov_b32_e32 v85, v81
        s_mov_b64 exec, 1
        buffer_store_dwordx2 v[84:85], v1, s[96:99], s101 offen
        s_mov_b64 exec, -1
L_nopub{tg}:
        s_barrier''')
        stamp(c, 2)
        def k0_reads():
            c(f'v_add_u32_e32 v12, {3*32768}, {vD1}')
            for f in range(16):
                if f == 12: c(f's_waitcnt lgkmcnt({0 if OPT["stamp"] else 8})')
                c(f'ds_read_b128 {aF(f)}, v12 offset:{frag_off(f)}')
            for x in acc_init(): c(x)
            if OPT.get('trunc'): c('s_mov_b32 s92, 0x07060302')
        def check():
            c(f'''
        s_mov_b32 s57, {OPT['spin']}
        s_cmp_lg_u32 s93, 0
        s_cbranch_scc1 L_help
L_chk{tg}:
        v_cmp_eq_u64_e32 vcc, v[84:85], v[82:83]
        s_nop 0
        s_cmp_eq_u32 vcc_lo, -1
        s_cbranch_scc0 L_pollslow
L_ok{tg}:''')
        if kind == 'k':
            for i in range(8): c.q(i)
            c.vm(POLL, 'poll')
            for i in range(8, 16): c.q(i)
            k0_reads()
            for qb in range(4):
                c.vwait(*([f'q{4*qb + 3}'] + (['poll'] if qb == 1 else [])))
                if qb == 0:
                    stamp(c, 3)
                    c(f's_waitcnt lgkmcnt({0 if OPT["stamp"] else 8})')
                qreads(c, [qb])
                if qb == 0 and OPT['go'] == 1:
                    c('v_mov_b32_e32 v12, 1\nds_write_b32 v102, v12 offset:16')
                if qb == 1:
                    check()
                    stamp(c, 4)
                    part_dma(c, 0)
                    if OPT['go'] == 2: c('v_mov_b32_e32 v12, 1\nds_write_b32 v102, v12 offset:16')
                    if OPT['k2'] == 0: part_dma(c, 1)
                    if OPT['go'] == 3: c('v_mov_b32_e32 v12, 1\nds_write_b32 v102, v12 offset:16')
                if qb == 3 and OPT['k2'] == 1: part_dma(c, 1)
                qk0(c, qb)
        else:
            k0_reads()
            c(f'''
    v_mov_b32_e32 v102, {LDS_HS + 16}
L_go:
    ds_read_b64 v[12:13], v102
    s_waitcnt lgkmcnt(0)
    v_and_b32_e32 v12, v12, v13
    v_cmp_ne_u32_e32 vcc, 1, v12
    s_cbranch_vccnz L_go''')
            stamp(c, 4)
            for i in range(16 - OPT['bsplit']): c.q(i)
            for qb in range(4):
                c.vwait(*([f'q{4*qb + 3}'] + (['poll'] if qb == 3 else [])))
                if qb == 0:
                    stamp(c, 3)
                    if OPT['stamp']: c('s_waitcnt lgkmcnt(0)')
                qreads(c, [qb])
                if qb == 0:
                    for i in range(16 - OPT['bsplit'], 16): c.q(i)
                    c.vm(POLL, 'poll')
                if qb == 3:
                    check()
                    part_dma(c, 1)
                qk0(c, qb)
        stamp(c, 7)
        if kind == 'k':
            c.vwait('p0')
            if SKEW:
                c('''
    v_mov_b32_e32 v12, 1
    ds_write_b32 v102, v12
    v_xor_b32_e32 v102, 4, v102
L_hs:
    ds_read_b32 v12, v102
    s_waitcnt lgkmcnt(0)
    v_cmp_ne_u32_e32 vcc, 1, v12
    s_cbranch_vccnz L_hs''')
        elif SKEW:
            c.vwait('p1')
        if kind == 'v' or not SKEW: c('s_barrier')
        for f in range(D):
            c(f'ds_read_b128 {aF(f)}, {vRd} offset:{frag_off(f)}')
        if kind == 'k' and OPT['k2'] == 2: part_dma(c, 1)
        if kind == 'v' and SKEW:
            part_dma(c, 2)
            c('s_mov_b32 s32, s19\ns_add_u32 s19, s19, 0x18000')
        else:
            c('s_add_u32 s32, s19, 0x18000\ns_add_u32 s19, s19, 0x10000')
        if OPT.get('retry'): c(f's_waitcnt lgkmcnt(0)\ns_sub_u32 s70, {OPT["spin"]}, s57\ns_add_u32 s70, s70, s64\ns_addc_u32 s71, s65, 0\ns_add_u32 s72, s64, s94\ns_addc_u32 s73, s65, 0')
        c(EPI_ADDR)
        stamp(c, 5)
        c(f's_waitcnt lgkmcnt({0 if OPT["stamp"] else D - 4})')
        c('s_branch L_loop_in')
        c.l = fix_hazards(head, c.l, 'start' + kind)
        return c
    c, cb = path('k'), path('v')
    pre_lines = head
    B = Block(256, carry)
    B.stage(0, 0); B.stage(1, 1)
    B.waits.append((256, [(2, j) for j in range(4)]))
    bars = [(256, 0)] if OPT['pairbar'] else [(128, 8), (256, 8)]
    for ge, vm in bars:
        gb = ge + RP - 4*D - 1
        B.mem[gb] += [f's_waitcnt vmcnt({vm})' + (' lgkmcnt(0)' if OPT['pull'] else '')] + ([] if OPT.get('nobar') else ['s_barrier'])
    B.val[256 + RP - 4*D - 1].append((5, f'v_xor_b32_e32 {vRd}, 0x10000, {vRd}'))
    for j in range(16):
        g = OPT['dma0'] + OPT['dmastep'] * j if OPT['pairbar'] else 128*(j // 8) + OPT['dma0'] + 12*(j % 8)
        if j % 4 == 0:
            B.mem[g - 1].append(f's_add_u32 m0, {"s19" if j < 8 else "s32"}, {((j // 4) % 2)*4096}')
        B.mem[g].append(dma((j // 4) % 2, j % 4))
        if j % 8 == 7:
            B.mem[g + 1].append('s_add_u32 s17, s17, 16384')
            B.mem[g + 2].append('s_and_b32 s17, s17, 0x7ffff')
        if j == 15:
            B.mem[g + 3].append('s_xor_b32 s19, s19, 0x10000')
            B.mem[g + 4].append('s_xor_b32 s32, s32, 0x10000')
    if OPT['stamp'] >= 2:
        B.mem[1].append('s_memtime s[84:85]')
        B.mem[2].append('s_memrealtime s[86:87]')
        B.mem[14].insert(0, 's_waitcnt lgkmcnt(0)')
        B.val[18].append((9, f'v_cmp_eq_u32_e32 vcc, s18, v2'))
        for k in range(4):
            B.val[20 + 2*k].append((9, f'v_mov_b32_e32 v124, s{84+k}'))
            B.val[21 + 2*k].append((9, f'v_cndmask_b32_e32 v{120+k}, v{120+k}, v124, vcc'))
    if OPT.get('wb'):
        g = min(x for x in range(OPT['dma0'] + 12*7 + 1, 128) if not B.mem[x] and not B.val[x])
        B.mem[g] += ['s_cmp_eq_u32 s18, s50', 's_cbranch_scc1 L_dowb', 'L_nowb:']
    B.mem[253].append('s_sub_u32 s18, s18, 1')
    B.mem[254].append('s_cmp_lg_u32 s18, 0')
    assert B.finish() == carry
    loop = Out()
    B.emit(loop, 255)
    loop(B.mf[255])
    sc, head = B.gap_lines(255)
    for x in sc: loop(x)
    loop('s_cbranch_scc1 L_loop')
    E = Block(192, carry)
    for i in range(64):
        E.mf[i] = qk_mfma(1, (i % 16) // 4, i // 16, i % 4)
    for i in range(128):
        qb, db, u = i // 32, (i % 32) // 4, i % 4
        E.mf[64 + i] = pv_mfma(db, qb, u % 2, u // 2, aX(2*db + u) if u < 2 else None)
    TP = OPT['tp']
    s0 = max(carry) + 1
    for k in range(16):
        for r in range(4):
            el = sm_elem(1, k % 4, k // 4, r)
            E.val[s0 + TP*k + r].append((0, el[0][2]))
            if r & 1: E.val[s0 + TP*k + 4 + (r // 2 if TP > 5 else 0)].append((2, el[1][2]))
    used = [sum(2 if t.startswith('v_exp') else 1 for _, t in E.val[g]) for g in range(192)]
    def rd(g, ident, reg, off):
        E.mem[g].append(f'ds_read_b128 {reg}, {vRd} offset:{off}'); E.reads.append((g, ident)); used[g] += 1
    for f in range(D, 16): rd(f - D, (0, f), aF(f), frag_off(f))
    free = [g for g in range(10, 60) if used[g] < 2]
    free = sorted(free + [g for g in range(10, 60) if g not in free][:max(0, 16 - len(free))])
    for j in range(16): rd(free[j], (0, 16 + j), aX(j), frag_off(16 + j))
    E.mem[47] += (['s_cmp_ge_u32 s16, 2', 's_cbranch_scc1 L_nobar', 's_waitcnt vmcnt(0)', 's_barrier', 'L_nobar:'] if SKEW else ['s_waitcnt vmcnt(0)', 's_barrier'])
    for j in range(16): rd(max(50 + j, 54 + 2*j), (1, 16 + j), aF(16 + j), 32768 + frag_off(16 + j))
    for m in range(1, 4): E.waits.append((4*m, [(0, 4*m + j) for j in range(4)]))
    E.waits.append((64, [(0, 31), (1, 19)]))
    for m in range(1, 4): E.waits.append((64 + 8*m, [(1, 16 + 4*m + 3)]))
    if OPT['stamp'] >= 2:
        E.mem[20].append('s_memtime s[84:85]')
        E.mem[21].append('s_memrealtime s[86:87]')
        E.mem[44].insert(0, 's_waitcnt lgkmcnt(0)')
        for k in range(4):
            E.val[45].append((9, f'v_writelane_b32 v{120+k}, s{84+k}, 0'))
            E.val[46].append((9, f'v_accvgpr_write_b32 a{212+k}, v{120+k}'))
    E.finish()
    E.mem[1].append(f's_mov_b32 s54, 0x{f32bits(2.0**-40):08x}')
    E.mem[2].append(f's_mov_b32 s55, 0x{f32bits(2.0**60):08x}')
    order = [100]
    def place(ops, g, cap=2):
        for k, (eg, x) in enumerate(ops):
            if x.startswith('s_'):
                g = max(g + 1, eg)
                if g >= 192: return g, ops[k:]
                E.mem[g].append(x)
                continue
            cost = 2 if x.startswith(('v_rcp', 'buffer_')) else 1
            g = max(g, eg)
            memop = not x.startswith('v_')
            if memop: g += 1
            while g < 192 and (used[g] + cost > cap or (memop and any(not t.startswith('s_') for t in E.mem[g]))): g += 1
            if g >= 192: return g, ops[k:]
            order[0] += 1
            if memop: E.mem[g].append(x)
            else: E.val[g].append((order[0], x))
            used[g] += cost
            if x.startswith('v_rcp'): g += 1
        return g, []
    CAP = OPT['cap']
    ready = []
    g = 88
    for qb in range(4):
        E.val[15 + 4*qb].append((30, l_mfma(0, qb)))
        gl = (s0 + TP*4*(qb + 1) + 1) | 3
        E.val[gl].append((30, l_mfma(1, qb)))
        ready.append(gl + 6)
    def chain(qs, g):
        fs = [factor_ops(q) for q in qs]
        ops = [(ready[q], f[0][k]) for k in range(5) for q, f in zip(qs, fs)]
        lo = hi = vM[qs[0]]
        if len(qs) > 1:
            lo, hi = 'v126', 'v127'
            ops += [(0, f'v_minimum3_f32 {lo}, {vM[qs[0]]}, {vM[qs[1]]}, {vM[qs[-1]]}'), (0, f'v_maximum3_f32 {hi}, {vM[qs[0]]}, {vM[qs[1]]}, {vM[qs[-1]]}')]
        ops += [(0, f'v_cmp_nle_f32_e64 s[56:57], s54, {lo}'), (0, f'v_cmp_nge_f32_e32 vcc, s55, {hi}'), (0, 's_waitcnt lgkmcnt(0)')]
        ops += [(0, f[1]) for f in fs]
        ops += [(0, 's_or_b32 s56, s56, vcc_lo'), (0, 's_and_b32 s56, s56, 0xffff'),
                (0, 's_cbranch_scc1 L_fallback' if not OPT.get('nofb') else 's_nop 0')]
        g, left = place(ops, g, CAP); assert not left
        g, left = place([(g + 2, 's_waitcnt lgkmcnt(0)')], g, CAP); assert not left
        return g
    done = lambda qb: 64 + 32*(qb + 1) + 3
    left, rest = [], []
    def groups(qb, g):
        for r in range(4):
            if left or rest or g >= 188 or done(qb) >= 188:
                left.append((qb, r)); continue
            g, l2 = place([(done(qb), x) for x in out_group(qb, r)], g, CAP)
            rest.extend(x for _, x in l2)
        return g
    g = chain([0, 1, 2], g); fready = [g]*3
    g = chain([3], g); fready.append(g)
    g = 0
    for qb in range(4): g = groups(qb, max(g, fready[qb]))
    print('tail: factors', fready, 'left', left, len(rest), file=sys.stderr)
    while left:
        qb, r = left.pop(0)
        if r % 2 == 0:
            rest += out_pair(qb, r); left.pop(0)
        else:
            rest += out_group(qb, r)
    left = [(0, x) for x in rest]
    tail = Out()
    for x in head: tail(x)
    E.emit(tail)
    stamp(tail, 6)
    for _, x in left: tail(x)
    tail.l = fix_hazards(loop.l, tail.l, 'tail')
    lin = pre_lines + c.l + loop.l + ['    ' + x for x in head] + loop.l + tail.l
    errs += check_hazards(lin, 'core') + check_waits(lin, 'core')
    k = tail.l.index('L_nobar:')
    errs += check_hazards(loop.l + tail.l[:k-2] + tail.l[k:], 'tailB')
    lin = pre_lines + cb.l + loop.l
    errs += check_hazards(lin, 'coreB') + check_waits(lin, 'coreB')
    o.l += c.l
    o('L_pathv:')
    o.l += cb.l
    o('.p2align 6')
    o('L_loop:')
    for x in head: o(x)
    o('L_loop_in:')
    o.l += loop.l + tail.l

def gen_main():
    errs = []
    o = Out()
    o('s_cmp_ge_u32 s2, 256\ns_cbranch_scc1 L_end')
    stamp(o, 0)
    if OPT['stamp']: o('s_memrealtime s[80:81]')
    o(f'''
    s_load_dwordx4 s[8:11], s[0:1], 0         ; q, qk
    s_load_dwordx4 s[32:35], s[0:1], 16
    s_load_dwordx4 s[36:39], s[0:1], 32       ; k_zeros, v_scales
    s_load_dwordx4 s[12:15], s[0:1], 48       ; v_zeros, out
    s_load_dwordx4 s[24:27], s[0:1], 64
    s_memrealtime s[94:95]
    v_lshrrev_b32_e32 v1, 6, v0
    v_and_b32_e32 v2, 63, v0                  ; lane
    v_readfirstlane_b32 s16, v1               ; wave
    v_lshrrev_b32_e32 v13, 5, v2              ; h
    v_and_b32_e32 v88, 31, v2                ; m
    v_lshlrev_b32_e32 v12, 12, v13
    v_lshl_add_u32 v12, v88, 4, v12
    s_and_b32 s20, s2, 7
    s_lshr_b32 s21, s2, 3
    s_and_b32 s23, s16, 1
    s_lshl_b32 s48, s20, 20
    s_lshl_b32 s53, s23, 14
    s_add_u32 s48, s48, s53
    s_lshl_b32 s53, s21, 15
    s_add_u32 s53, s53, s48
    s_add_u32 s57, s21, s16
    s_and_b32 s57, s57, {1 if OPT['rot'] else 0}
    s_lshl_b32 s56, s57, 13
    s_add_u32 s53, s53, s56
    s_lshl_b32 s49, s20, 12                   ; head*4096
    s_mov_b32 s51, s21
    s_mov_b32 s42, 32768
    s_mov_b32 s43, 0x20000
    s_waitcnt lgkmcnt(0)''')
    o(TAG_STORE)
    o(f'''
    s_cmp_ge_u32 s16, 2
    s_cselect_b32 s40, s12, s36
    s_cselect_b32 s41, s13, s37
    s_cselect_b32 s36, s38, s34
    s_cselect_b32 s37, s39, s35
    s_cselect_b32 s32, s32, s10
    s_cselect_b32 s33, s33, s11
    s_mov_b32 s34, {8 << 20}
    s_mov_b32 s35, 0x20000
    buffer_load_dwordx4 {rng("v", T0, 4)}, v12, s[32:35], s53 offen{POL}
    buffer_load_dwordx4 {rng("v", T0 + 4, 4)}, v12, s[32:35], s53 offen offset:512{POL}
    s_mov_b32 s38, 32768
    s_mov_b32 s39, 0x20000
    s_cbranch_scc1 L_pathv''')
    head = list(o.l)
    gen_core(o, errs, head)
    o('L_fin:')
    if OPT['stamp']:
        o(f'''
    s_memtime s[86:87]
    s_waitcnt vmcnt(0)
    s_memtime s[84:85]
    s_memrealtime s[82:83]
    s_waitcnt lgkmcnt(0)
    s_mov_b32 s88, s26
    s_mov_b32 s89, s27
    s_mov_b32 s90, 0x10000000
    s_mov_b32 s91, 0x20000
    s_lshl_b32 s101, s2, 2
    s_add_u32 s101, s101, s16
    s_lshl_b32 s92, s101, 7
    s_add_u32 s92, s92, {16 << 20}
    s_lshl_b32 s101, s101, 10
    s_add_u32 s101, s101, {17 << 20}''')
        if OPT.get('dbg'):
            o(f'''
    s_cmp_lg_u32 s16, 0
    s_cbranch_scc1 L_nodbg
    s_mov_b32 s53, 8
    s_cmp_eq_u32 s2, 9
    s_cbranch_scc1 L_dodbg
    s_mov_b32 s53, 40
    s_cmp_eq_u32 s2, 254
    s_cbranch_scc0 L_nodbg
L_dodbg:
    s_sub_u32 s54, s74, s64
    s_sub_u32 s55, s76, s64
    s_sub_u32 s56, s84, s64
    s_sub_u32 s57, s82, s80
    v_mov_b32_e32 v16, s54
    v_mov_b32_e32 v17, s55
    v_mov_b32_e32 v18, s56
    v_mov_b32_e32 v19, s57
    v_mov_b32_e32 v20, s80
    v_mov_b32_e32 v21, s82
    s_mov_b64 exec, 1
    buffer_store_dwordx4 v[16:19], v1, s[44:47], s53 offen
    buffer_store_dwordx2 v[20:21], v1, s[44:47], s53 offen offset:16
    s_mov_b64 exec, -1
    s_nop 1
L_nodbg:''')
        for k in range(24):
            o(f'v_mov_b32_e32 v{16+k}, s{64+k}')
        o('v_mov_b32_e32 v40, 0')
        for k in range(6):
            o(f'buffer_store_dwordx4 {rng("v", 16+4*k, 4)}, v40, s[88:91], s92 offen offset:{16*k}')
        if OPT['stamp'] >= 2:
            o(f'buffer_store_dwordx4 a[212:215], {vD1}, s[88:91], s101 offen')
    o('L_end:\ns_endpgm')
    if OPT.get('wb'): o('L_dowb:\nbuffer_wbl2 sc1\ns_branch L_nowb')
    o(f'''
L_tagslow:
    s_sub_u32 s57, s57, 1
    s_cselect_b32 s93, 1, 0
    s_cbranch_scc1 L_tagout
    s_sleep 1
    buffer_load_dwordx2 v[80:81], v1, s[44:47], s23 offen sc1
    s_waitcnt vmcnt(0)
    s_cmp_eq_u32 s95, 1
    s_cbranch_scc1 L_tag1
    s_branch L_tag3
L_tagout:
    s_cmp_eq_u32 s95, 1
    s_cbranch_scc1 L_nopub1
    s_branch L_nopub3
L_pollslow:
    s_or_b32 s54, vcc_lo, vcc_hi
    s_not_b32 s54, s54
    s_cselect_b32 s55, 0, 1
    s_sub_u32 s57, s57, 1
    s_cselect_b32 s56, 1, 0
    s_cmp_lt_u32 s57, {OPT['spin'] - OPT['upg'] if OPT['spin'] > OPT['upg'] else 0}
    s_cselect_b32 s55, 1, s55
    s_or_b32 s55, s55, s56
    s_cmp_gt_u32 s55, s94
    s_cbranch_scc0 L_noupg
    s_mov_b32 s94, 1
    s_add_u32 s55, s101, 4096
    buffer_wbl2 sc1
    s_waitcnt vmcnt(0)
    s_mov_b32 exec_lo, 0
    s_mov_b32 exec_hi, 1
    buffer_store_dwordx2 v[84:85], v1, s[96:99], s55 offen sc1
    s_mov_b64 exec, -1
L_noupg:
    s_cmp_lg_u32 s56, 0
    s_cbranch_scc1 L_help
    s_cmp_eq_u32 s54, 0
    s_cbranch_scc1 L_polldone
    buffer_load_dwordx2 v[82:83], v86, s[96:99], 0 offen sc1
    s_waitcnt vmcnt(0)
    s_cmp_eq_u32 s95, 1
    s_cbranch_scc1 L_chk1
    s_branch L_chk3
L_polldone:
    s_cmp_eq_u32 s95, 1
    s_cbranch_scc1 L_ok1
    s_branch L_ok3
L_help:
    s_waitcnt lgkmcnt(0)
    v_add_u32_e32 v87, s100, v103
    v_add_u32_e32 v14, s100, {vD1}
    v_lshrrev_b32_e32 v13, 5, v2
    v_and_b32_e32 v88, 31, v2
    v_lshlrev_b32_e32 v12, 12, v13
    v_lshl_add_u32 v12, v88, 4, v12
    s_mov_b32 s52, 31
L_help_go:
    s_add_u32 s51, s21, s52
    s_and_b32 s51, s51, 31
    s_cmp_eq_u32 s95, 1
    s_cbranch_scc0 L_help_v''')
    for kind in 'kv':
        h = Seq()
        if kind == 'v': h('L_help_v:')
        gen_dequant(h, kind, True)
        if kind == 'k': h('s_branch L_help_next')
        errs += check_hazards(h.l, 'help') + check_waits(h.l, 'help')
        o.l += h.l
    o('''
L_help_next:
    s_waitcnt vmcnt(0)
    s_sub_u32 s52, s52, 1
    s_cmp_lg_u32 s52, 0
    s_cbranch_scc1 L_help_go''')
    for x in acc_init(): o(x)
    o('s_branch L_polldone')
    fb = Out()
    def kloads(off):
        for f in range(16):
            if f % 8 == 0: fb(f's_add_u32 s53, s17, {off + (f // 8)*8192}')
            v = vD1 if f % 8 < 4 else vD2
            k = f if off == 0 else 16 + 2*(f % 8) + f // 8
            fb(f'buffer_load_dwordx4 {aF(k)}, {v}, s[28:31], s53 offen offset:{1024*(f%4)} sc1')
        fb('s_waitcnt vmcnt(0)')
    fb('L_fallback:\ns_waitcnt vmcnt(0) lgkmcnt(0)\ns_nop 7\ns_nop 7')
    for q in range(4): fb(f'v_mov_b32_e32 {vM[q]}, 0xff800000')
    fb('s_mov_b32 s17, 0\nL_maxloop:')
    kloads(0)
    for i in range(64): fb(qk_mfma(0, i // 16, (i // 4) % 4, i % 4))
    fb('s_nop 7')
    for kb in range(4):
        for qb in range(4):
            for r in (0, 2):
                fb(f'v_max3_f32 {vM[qb]}, {vM[qb]}, {vSr(0, kb, qb, r)}, {vSr(0, kb, qb, r+1)}')
    fb(f's_add_u32 s17, s17, 16384\ns_cmp_lt_u32 s17, {512 << 10}\ns_cbranch_scc1 L_maxloop')
    for x in lane_reduce('v_max_f32_e32', 16): fb(x)
    for q in range(4):
        for r in range(4): fb(f'v_sub_f32_e32 v{C0 + 4*q + r}, 0, {vM[q]}')
    for x in acc_init(): fb(x)
    fb('s_mov_b32 s17, 0\nL_p2loop:')
    kloads(0)
    for i in range(64): fb(qk_mfma(0, i // 16, (i // 4) % 4, i % 4, True))
    kloads(V_OFF)
    for kb in range(4):
        for qb in range(4):
            el = [sm_elem(0, kb, qb, r) for r in range(4)]
            for r in range(4): fb(el[r][0][2])
            for r in range(4):
                for _, _, tx in el[r][1:]: fb(tx)
    fb('s_nop 1')
    for i in range(64): fb(pv_mfma(i // 8, (i // 2) % 4, i % 2, 0))
    for qb in range(4):
        fb(l_mfma(0, qb))
    fb(f's_add_u32 s17, s17, 16384\ns_cmp_lt_u32 s17, {512 << 10}\ns_cbranch_scc1 L_p2loop')
    fb(EPI_ADDR)
    for q in range(4):
        for x in factor_ops(q)[0]: fb(x)
    fb('s_waitcnt lgkmcnt(0)')
    for q in range(4): fb(factor_ops(q)[1])
    fb('s_waitcnt lgkmcnt(0)')
    for qb in range(4):
        for r in (0, 2):
            for x in out_pair(qb, r): fb(x)
    fb('s_branch L_fin')
    i1, i2 = fb.l.index('L_maxloop:'), fb.l.index('L_p2loop:')
    fb.l = fix_hazards([], fb.l, 'fb')
    i2 = fb.l.index('L_p2loop:')
    errs += check_hazards(fb.l, 'fb') + check_waits(fb.l, 'fb')
    p2 = fb.l[i2:[k for k, x in enumerate(fb.l) if 'L_p2loop' in x][-1] + 1]
    errs += check_hazards(p2 + p2, 'fb2')
    o.l += fb.l
    return o.l, errs

HEADER = open('cdna_kernels/' + NAME + '.s.ref').read().split('; @launch')[0]

DOC = '''; ---------------------------------------------------------------------------------------------------------
;  * every wave owns 64 q rows: S^T = K Q^T and O = P V with v_mfma_f32_16x16x32_bf16, K/V tiles stream through a
; ---------------------------------------------------------------------------------------------------------
'''

def main():
    mn, errs = gen_main()
    for e in errs:
        print(e, file=sys.stderr)
    if errs and not OPT.get('nofb'):
        sys.exit(1)
    nm = NAME + '_kernel'
    txt = HEADER + f'; @launch grid=(256,1,1) block=(256,1,1) lds={LDS_TOTAL}\n'
    txt += DOC + '.amdgcn_target "amdgcn-amd-amdhsa--gfx950"\n.text\n'
    txt += f'.globl {nm}\n.p2align 8\n.type {nm},@function\n{nm}:\n' + '\n'.join(mn) + '\n'
    txt += f'''.section .rodata,"a"
.p2align 6
.amdhsa_kernel {nm}
  .amdhsa_next_free_vgpr 472
  .amdhsa_next_free_sgpr 102
  .amdhsa_accum_offset 256
  .amdhsa_group_segment_fixed_size 0
  .amdhsa_kernarg_size 80
  .amdhsa_user_sgpr_count 2
  .amdhsa_user_sgpr_kernarg_segment_ptr 1
  .amdhsa_system_sgpr_workgroup_id_x 1
  .amdhsa_float_denorm_mode_32 3
.end_amdhsa_kernel
'''
    open(sys.argv[1], 'w').write(txt)

main()
```
